```python
import torch

def _softmax(x, axis=-1):
    return torch.softmax(x, dim=axis)
def _gelu(x):
    return torch.nn.functional.gelu(x, approximate="tanh")
def _silu(x):
    return torch.nn.functional.silu(x)
def _sigmoid(x):
    return torch.sigmoid(x)
def _layernorm(x, axis=-1, eps=1e-5):
    m = x.mean(dim=axis, keepdim=True)
    v = x.var(dim=axis, keepdim=True, unbiased=False)
    return (x - m) / torch.sqrt(v + eps)
def _scatter_add(tgt, idx, src, axis=0):
    return tgt.clone().index_add_(axis, idx, src)
def _segment_sum(src, seg, n):
    out = torch.zeros((n,) + src.shape[1:], dtype=src.dtype)
    return out.index_add_(0, seg, src)
def _pad(x, pw):
    flat = tuple(v for pair in reversed(pw) for v in pair)
    return torch.nn.functional.pad(x, flat)

kernel_name = 'parallel_sum__linear_kernel_hedgehog__swiglu_ffn__prompt'

def setup_inputs():

    _w = (lambda a: (lambda t: t.to(torch.bfloat16) if t.is_floating_point() else t)(torch.as_tensor(a)))
    def _A_setup():
        B, S, D, H = 1, 2048, 640, 32
        Dh = D // H
        return {
            "x": _w((lambda *s: torch.randn(*s, dtype=torch.bfloat16) * 0.05)(B, S, D)),
            "wqkv": _w((lambda *s: torch.randn(*s, dtype=torch.bfloat16) * 0.4)(D, 3 * D)),
            "w_phi": _w((lambda *s: torch.randn(*s, dtype=torch.bfloat16) * 0.4)(H, Dh, Dh) * (Dh ** -0.5)),
            "wo": _w((lambda *s: torch.randn(*s, dtype=torch.bfloat16) * 0.1)(D, D)),
        }
    _A_in = _A_setup()

    def _B_setup():
        B, S, D, F = 1, 2048, 640, 1536
        return {
            "x": _w((lambda *s: torch.randn(*s, dtype=torch.bfloat16) * 0.05)(B, S, D)),
            "w_gate": _w((lambda *s: torch.randn(*s, dtype=torch.bfloat16) * 0.05)(D, F)),
            "w_up": _w((lambda *s: torch.randn(*s, dtype=torch.bfloat16) * 0.05)(D, F)),
            "w_down": _w((lambda *s: torch.randn(*s, dtype=torch.bfloat16) * 0.05)(F, D)),
        }
    _B_in = _B_setup()

    return {
        "A_x": _A_in["x"],
        "A_wqkv": _A_in["wqkv"],
        "A_w_phi": _A_in["w_phi"],
        "A_wo": _A_in["wo"],
        "B_x": _B_in["x"],
        "B_w_gate": _B_in["w_gate"],
        "B_w_up": _B_in["w_up"],
        "B_w_down": _B_in["w_down"],
    }

def reference(A_x, A_wqkv, A_w_phi, A_wo, B_x, B_w_gate, B_w_up, B_w_down):
    def _A_ref(x, wqkv, w_phi, wo):
        B, S, D = x.shape
        H = 32; Dh = D // H
        qkv = (lambda x, *d: x.permute(*d))((x @ wqkv).reshape(B, S, 3, H, Dh), 2, 0, 3, 1, 4)
        q, k, v = qkv[0], qkv[1], qkv[2]
        pq = torch.einsum("bhsd,hdf->bhsf", q, w_phi)
        pk = torch.einsum("bhsd,hdf->bhsf", k, w_phi)
        phi_q = torch.concatenate([_softmax(pq, axis=-1), _softmax(-pq, axis=-1)], axis=-1)
        phi_k = torch.concatenate([_softmax(pk, axis=-1), _softmax(-pk, axis=-1)], axis=-1)
        kv = torch.einsum("bhsf,bhsd->bhfd", phi_k, v)
        z  = torch.einsum("bhsf->bhf", phi_k)
        num = torch.einsum("bhqf,bhfd->bhqd", phi_q, kv)
        den = torch.einsum("bhqf,bhf->bhq", phi_q, z)[..., None] + 1e-6
        o = num / den
        return (lambda x, *d: x.permute(*d))(o, 0, 2, 1, 3).reshape(B, S, D) @ wo

    def _B_ref(x, w_gate, w_up, w_down):
        g = _silu(x @ w_gate)
        u = x @ w_up
        return (g * u) @ w_down

    x = A_x
    xn = _layernorm(x, axis=-1)
    return x + _A_ref(xn, A_wqkv, A_w_phi, A_wo) + _B_ref(xn, B_w_gate, B_w_up, B_w_down)
```

```python
import re

KNAME = "parallel_sum__linear_kernel_hedgehog__swiglu_ffn__prompt"

TRANS = ("v_exp_f32", "v_log_f32", "v_rcp_f32", "v_rsq_f32", "v_sqrt_f32", "v_sin_f32", "v_cos_f32")

reg_re = re.compile(r"\b([vas])(\d+)\b|\b([vas])\[(\d+):(\d+)\]")

def regs_of(op):
    out = []
    op = op.strip()
    for m in reg_re.finditer(op):
        if m.group(1):
            out.append((m.group(1), int(m.group(2))))
        else:
            for i in range(int(m.group(4)), int(m.group(5)) + 1):
                out.append((m.group(3), i))
    if re.search(r"\bvcc\b", op): out += [("s", 106), ("s", 107)]
    if re.search(r"\bm0\b", op): out += [("s", 124)]
    if re.search(r"\bexec\b", op): out += [("s", 126), ("s", 127)]
    return out

class Ins:
    __slots__ = ("text", "op", "dst", "src", "kind", "srcC", "srcAB", "nstates", "comment")
    def __init__(self, text):
        self.text = text
        t = text.split(";")[0].strip()
        self.kind = "other"; self.dst = []; self.src = []; self.srcC = []; self.srcAB = []; self.nstates = 1
        if not t or t.endswith(":") or t.startswith("."):
            self.op = ""; self.kind = "label" if t.endswith(":") else "none"; self.nstates = 0
            return
        parts = t.split(None, 1)
        self.op = parts[0]
        args = parts[1] if len(parts) > 1 else ""
        ops = [a.strip() for a in re.split(r",(?![^\[]*\])", args)] if args else []
        op = self.op
        if op == "s_nop":
            self.kind = "nop"; self.nstates = int(ops[0], 0) + 1; return
        if op.startswith("v_mfma"):
            self.kind = "mfma"
            self.dst = regs_of(ops[0]); self.srcAB = regs_of(ops[1]) + regs_of(ops[2]); self.srcC = regs_of(ops[3].split()[0])
            self.src = self.srcAB + self.srcC
            return
        if op.startswith("buffer_") or op.startswith("global_"):
            self.kind = "vmem"
            lastmods = ops[-1] if ops else ""
            is_lds = bool(re.search(r"\blds\b", t))
            if "load" in op and not is_lds:
                self.dst = regs_of(ops[0]); self.src = [r for o in ops[1:] for r in regs_of(o)]
            elif "atomic" in op:
                self.src = [r for o in ops for r in regs_of(o)]
                if re.search(r"\bsc0\b", t): self.dst = regs_of(ops[0])
            else:
                self.src = [r for o in ops for r in regs_of(o)]
                if is_lds: self.src += [("s", 124)]; self.kind = "vmem_lds"
            if "store" in op: self.kind = "vmem_store"
            return
        if op.startswith("ds_"):
            self.kind = "ds"
            if op.startswith("ds_read") or op.startswith("ds_bpermute") or op.startswith("ds_swizzle") or op.startswith("ds_permute") or "rtn" in op:
                self.dst = regs_of(ops[0]); self.src = [r for o in ops[1:] for r in regs_of(o)]
            else:
                self.src = [r for o in ops for r in regs_of(o)]
            return
        if op.startswith("v_"):
            self.kind = "valu"
            if op.startswith("v_cmp"):
                self.dst = regs_of(ops[0]); self.src = [r for o in ops[1:] for r in regs_of(o)]
            elif op.startswith("v_readfirstlane") or op.startswith("v_readlane"):
                self.dst = regs_of(ops[0]); self.src = [r for o in ops[1:] for r in regs_of(o)]
            elif op.startswith("v_permlane") and "swap" in op:
                self.dst = regs_of(ops[0]) + regs_of(ops[1]); self.src = list(self.dst)
            elif op.startswith("v_add_co") or op.startswith("v_sub_co") or op.startswith("v_addc_co") or op.startswith("v_subb_co"):
                self.dst = regs_of(ops[0]) + regs_of(ops[1]); self.src = [r for o in ops[2:] for r in regs_of(o)]
            else:
                self.dst = regs_of(ops[0]); self.src = [r for o in ops[1:] for r in regs_of(o)]
                if op.startswith("v_fmac") or op.startswith("v_dot2c") or op.startswith("v_writelane"):
                    self.src += self.dst
                if op.startswith("v_cndmask") and len(ops) == 3:
                    self.src += [("s", 106), ("s", 107)]
            return
        if op.startswith("s_"):
            self.kind = "salu"
            if op.startswith("s_cmp") or op.startswith("s_cbranch") or op.startswith("s_branch") or op in ("s_barrier", "s_waitcnt", "s_endpgm", "s_setprio", "s_sleep", "s_bitcmp1_b32", "s_bitcmp0_b32"):
                self.src = [r for o in ops for r in regs_of(o)]
                if op.startswith("s_cbranch") or op.startswith("s_branch"): self.kind = "branch"
            else:
                self.dst = regs_of(ops[0]) if ops else []; self.src = [r for o in ops[1:] for r in regs_of(o)]
                if "saveexec" in op: self.dst += [("s", 126), ("s", 127)]
            return

def is_dpp(t): return "dpp" in t or "row_" in t or "quad_perm" in t

def insert_nops(lines):
    out = []
    hist = []
    pos = 0
    def need(req_pos):
        nonlocal pos
        gap = req_pos - pos
        if gap > 0:
            n = gap
            while n > 0:
                k = min(n, 16)
                out.append(f"s_nop {k-1}")
                n -= k
            pos += gap
    for text in lines:
        for sub in text.split("\n"):
            ins = Ins(sub)
            if ins.kind in ("label", "none"):
                out.append(sub); continue
            req = pos
            S = set(ins.src); D = set(ins.dst)
            for (p, ppos) in reversed(hist):
                d = pos - ppos
                if pos - ppos > 24: break
                end = ppos + p.nstates
                def rq(n):
                    return end + n
                PD = set(p.dst)
                if p.kind == "valu":
                    vw = {r for r in PD if r[0] in "va"}
                    sw = {r for r in PD if r[0] == "s"}
                    if ins.kind == "mfma" and vw & S: req = max(req, rq(2))
                    if ins.kind == "valu":
                        if p.op in TRANS or p.op.replace("_e32", "").replace("_e64", "") in TRANS:
                            if vw & S and ins.op not in TRANS: req = max(req, rq(1))
                            if vw & S and ins.op in TRANS: req = max(req, rq(1))
                        if ins.op.startswith("v_permlane") and vw & S: req = max(req, rq(2))
                        if (ins.op.startswith("v_readlane") or ins.op.startswith("v_readfirstlane")) and vw & S: req = max(req, rq(1))
                        if is_dpp(ins.text) and vw & S: req = max(req, rq(2))
                        if sw & S: req = max(req, rq(2))
                        if (ins.op.startswith("v_readlane") or ins.op.startswith("v_writelane")) and sw & S: req = max(req, rq(4))
                        if ("opsel" in p.text or "op_sel:" in p.text or "sdwa" in p.text) and vw & S: req = max(req, rq(1))
                    if p.op.startswith("v_dot"):
                        if ins.op != p.op and vw & (S | D): req = max(req, rq(3))
                        if ins.op == p.op and vw & (S - D): req = max(req, rq(3))
                    if ins.kind in ("vmem", "vmem_lds", "vmem_store") and sw & S: req = max(req, rq(5))
                    if ins.kind in ("salu", "branch") and sw & S: req = max(req, rq(1))
                    if ("s", 126) in PD and ins.kind == "mfma": req = max(req, rq(4))
                if p.kind == "mfma":
                    if ins.kind == "mfma":
                        if PD & set(ins.srcAB): req = max(req, rq(8))
                        c = set(ins.srcC)
                        if PD & c and c != PD: req = max(req, rq(6))
                        if PD & D and not (PD == D and c == PD):
                            if not (PD & c): req = max(req, rq(6))
                    else:
                        if PD & (S | D) and ins.kind in ("valu", "vmem", "vmem_lds", "vmem_store", "ds"): req = max(req, rq(8))
                        if ins.kind == "valu" and set(p.srcC) & D: req = max(req, rq(3))
                if p.kind == "salu":
                    if ("s", 124) in PD and ins.kind == "vmem_lds": req = max(req, rq(1))
                if p.kind in ("vmem_store",) and ("x4" in p.op or "x3" in p.op):
                    data = set(r for r in p.src if r[0] in "va")
                    if ins.kind == "valu" and data & D: req = max(req, rq(2))
                    elif ins.kind in ("vmem", "ds", "mfma") and data & D: req = max(req, rq(1))
                if p.kind == "ds" and (p.op.startswith("ds_write_b128") or p.op.startswith("ds_write_b96")):
                    data = set(r for r in p.src if r[0] in "va")
                    if ins.kind == "valu" and data & D: req = max(req, rq(2))
            need(req)
            out.append(sub)
            hist.append((ins, pos))
            pos += ins.nstates
            if len(hist) > 64: hist = hist[-48:]
    return out

class Em:
    def __init__(self):
        self.l = []
        self.n = 0
    def __call__(self, s):
        for sub in s.split("\n"):
            m = re.search(r"offset:(\d+)", sub)
            if m:
                v = int(m.group(1))
                if sub.strip().startswith("buffer_"): assert v <= 4095, sub
                if sub.strip().startswith("ds_"): assert v <= 65535, sub
        self.l.append(s)
    def label(self, base="L"):
        self.n += 1
        return f"{base}_{id(self) % 9973}_{self.n}"
    def text(self):
        return "\n".join(insert_nops(self.l))

def header(launches):
    s = ""
    if len(launches) == 1 and launches[0][0] == KNAME + "_kernel":
        n, g, b, l = launches[0]
        s += f"; @launch grid=({g},1,1) block=({b},1,1) lds={l}\n"
    else:
        for n, g, b, l in launches:
            s += f"; @launch kernel={n} grid=({g},1,1) block=({b},1,1) lds={l}\n"
    s += '.amdgcn_target "amdgcn-amd-amdhsa--gfx950"\n'
    return s

def kernel(name, body, vgpr=256, sgpr=102, accum=None, agpr=0):
    if accum is None:
        accum = (vgpr + 3) // 4 * 4
    nfv = accum + agpr if agpr else vgpr
    return f""".text
.globl {name}
.p2align 8
.type {name},@function
{name}:
{body}
s_endpgm
.section .rodata,"a"
.p2align 6
.amdhsa_kernel {name}
  .amdhsa_next_free_vgpr {nfv}
  .amdhsa_next_free_sgpr {sgpr}
  .amdhsa_accum_offset {accum}
  .amdhsa_group_segment_fixed_size 0
  .amdhsa_kernarg_size 88
  .amdhsa_user_sgpr_count 2
  .amdhsa_user_sgpr_kernarg_segment_ptr 1
  .amdhsa_system_sgpr_workgroup_id_x 1
.end_amdhsa_kernel
"""
```

```python
OFF_STATS = 0
OFF_CS = 0x4000
OFF_WF = 0x20000
OFF_ACT = 0x300000
OFF_QF = 0xC00000
OFF_KVP = 0xF80000
WS_BYTES = 268435456
KA_X, KA_WQKV, KA_WPHI, KA_WO, KA_BX, KA_WG, KA_WU, KA_WD, KA_OUT, KA_DBG, KA_WS = [8*i for i in range(11)]
LOG2E = 1.4426950408889634

def srd(e, sreg, ptr_lo, nbytes):
    e(f"s_mov_b32 s{sreg}, s{ptr_lo}")
    e(f"s_and_b32 s{sreg+1}, s{ptr_lo+1}, 0xffff")
    e(f"s_mov_b32 s{sreg+2}, {nbytes}")
    e(f"s_mov_b32 s{sreg+3}, 0x20000")

def udiv_const(e, dst, src, d):
    magic = (1 << 32) // d + 1
    e(f"s_mul_hi_u32 s{dst}, s{src}, {magic}")
```

```python
from asmgen import *
from gen_common import *

def gen_k0():
    e = Em()
    e("s_cmp_ge_u32 s2, 256"); e("s_cbranch_scc1 K0_end")
    e(f"s_load_dwordx2 s[4:5], s[0:1], {KA_X}")
    e(f"s_load_dwordx2 s[6:7], s[0:1], {KA_WQKV}")
    e(f"s_load_dwordx2 s[8:9], s[0:1], {KA_WG}")
    e(f"s_load_dwordx2 s[10:11], s[0:1], {KA_WU}")
    e(f"s_load_dwordx2 s[12:13], s[0:1], {KA_WD}")
    e(f"s_load_dwordx2 s[14:15], s[0:1], {KA_WO}")
    e(f"s_load_dwordx2 s[16:17], s[0:1], {KA_WS}")
    e("v_lshrrev_b32 v1, 6, v0"); e("v_and_b32 v2, 63, v0")
    e("v_readfirstlane_b32 s18, v1")
    e("s_waitcnt lgkmcnt(0)")
    srd(e, 20, 4, 2048*1280)
    srd(e, 24, 16, WS_BYTES)
    e("s_lshl_b32 s19, s2, 3"); e("s_lshl_b32 s28, s18, 1"); e("s_add_u32 s19, s19, s28")
    e("v_lshrrev_b32 v3, 5, v2"); e("v_add_u32 v3, s19, v3")
    e("v_and_b32 v4, 31, v2")
    e("v_mul_u32_u24 v5, 1280, v3"); e("v_lshlrev_b32 v6, 3, v4"); e("v_add_u32 v5, v5, v6")
    for k in range(5):
        e(f"buffer_load_dwordx2 v[{8+2*k}:{9+2*k}], v5, s[20:23], 0 offen offset:{k*256}")
    e("s_cmp_ge_u32 s2, 234"); e("s_cselect_b32 s29, 1, 0")
    udiv_const(e, 30, 2, 3)
    e("s_mul_i32 s31, s30, 3"); e("s_sub_u32 s31, s2, s31")
    e("s_mov_b32 s32, s6"); e("s_mov_b32 s33, s7"); e("s_mov_b32 s34, 3840"); e("s_mov_b32 s35, s30"); e(f"s_mov_b32 s36, {640*3840}")
    e("s_cmp_ge_u32 s30, 30"); e("s_cbranch_scc0 K0_msel")
    e("s_mov_b32 s32, s8"); e("s_mov_b32 s33, s9"); e("s_mov_b32 s34, 3072"); e("s_sub_u32 s35, s30, 30"); e(f"s_mov_b32 s36, {640*3072}")
    e("s_cmp_ge_u32 s30, 54"); e("s_cbranch_scc0 K0_msel")
    e("s_mov_b32 s32, s10"); e("s_mov_b32 s33, s11"); e("s_sub_u32 s35, s30, 54")
    e("K0_msel:")
    e("s_mov_b32 s40, s32"); e("s_and_b32 s41, s33, 0xffff"); e("s_mov_b32 s42, s36"); e("s_mov_b32 s43, 0x20000")
    e("s_cmp_eq_u32 s29, 1"); e("s_cselect_b32 s42, 0, s42")
    e("s_mul_i32 s37, s31, 224"); e("s_lshl_b32 s38, s18, 3"); e("s_add_u32 s37, s37, s38")
    e("v_lshrrev_b32 v20, 3, v2"); e("v_add_u32 v20, s37, v20")
    e("v_mul_lo_u32 v20, v20, s34")
    e("v_and_b32 v21, 7, v2"); e("v_lshlrev_b32 v21, 4, v21")
    e("s_lshl_b32 s39, s35, 7"); e("v_add_u32 v21, s39, v21"); e("v_add_u32 v20, v20, v21")
    e("s_lshl_b32 s44, s34, 5")
    e("s_mov_b32 s45, 0")
    for k in range(7):
        e(f"buffer_load_dwordx4 v[{24+4*k}:{27+4*k}], v20, s[40:43], s45 offen")
        e("s_add_u32 s45, s45, s44")
    e("s_lshl_b32 s46, s2, 2"); e("s_add_u32 s46, s46, s18")
    udiv_const(e, 47, 46, 10)
    e("s_mul_i32 s48, s47, 10"); e("s_sub_u32 s48, s46, s48")
    e("s_mov_b32 s52, s12"); e("s_and_b32 s53, s13, 0xffff"); e(f"s_mov_b32 s54, {1536*1280}"); e("s_mov_b32 s55, 0x20000")
    e("s_mov_b32 s49, s47")
    e("s_cmp_ge_u32 s47, 48"); e("s_cbranch_scc0 K0_wsel")
    e("s_mov_b32 s52, s14"); e("s_and_b32 s53, s15, 0xffff"); e(f"s_mov_b32 s54, {640*1280}"); e("s_sub_u32 s49, s47, 48")
    e("K0_wsel:")
    e("s_cmp_ge_u32 s46, 680"); e("s_cselect_b32 s54, 0, s54")
    e("v_lshrrev_b32 v60, 3, v2"); e("v_mul_u32_u24 v60, 1280, v60"); e("v_and_b32 v61, 7, v2"); e("v_lshlrev_b32 v61, 4, v61"); e("v_add_u32 v60, v60, v61")
    e(f"s_mul_i32 s50, s49, {32*1280}"); e("s_lshl_b32 s51, s48, 7"); e("s_add_u32 s50, s50, s51")
    e("s_lshl_b32 s56, s18, 12"); e("s_add_u32 s56, s56, 8192")
    for k in range(4):
        e(f"s_add_u32 m0, s56, {k*1024}")
        e("buffer_load_dwordx4 v60, s[52:55], s50 offen lds")
        e(f"s_add_u32 s50, s50, {8*1280}")
    e("s_waitcnt vmcnt(11)")
    e("v_mov_b32 v6, 0"); e("v_mov_b32 v7, 0")
    for k in range(10):
        e(f"v_dot2c_f32_bf16 v6, 0x3f803f80, v{8+k}")
        e(f"v_dot2c_f32_bf16 v7, v{8+k}, v{8+k}")
    for sh in (1,2,4,8):
        e(f"v_add_f32_dpp v6, v6, v6 row_shr:{sh} row_mask:0xf bank_mask:0xf bound_ctrl:0")
        e(f"v_add_f32_dpp v7, v7, v7 row_shr:{sh} row_mask:0xf bank_mask:0xf bound_ctrl:0")
    e("v_add_f32_dpp v6, v6, v6 row_bcast:15 row_mask:0xa bank_mask:0xf")
    e("v_add_f32_dpp v7, v7, v7 row_bcast:15 row_mask:0xa bank_mask:0xf")
    e(f"v_mul_f32 v6, {1.0/640!r}, v6")
    e(f"v_mul_f32 v7, {1.0/640!r}, v7")
    e("v_fma_f32 v7, -v6, v6, v7")
    e("v_max_f32 v7, 0, v7")
    e(f"v_add_f32 v7, {1e-5!r}, v7")
    e("v_rsq_f32 v7, v7")
    e("v_lshlrev_b32 v5, 3, v3")
    e("v_cmp_eq_u32 vcc, 31, v4")
    e("s_and_saveexec_b64 s[58:59], vcc")
    e(f"buffer_store_dwordx2 v[6:7], v5, s[24:27], 0 offen offset:{OFF_STATS}")
    e("s_mov_b64 exec, s[58:59]")
    e("s_waitcnt vmcnt(5)")
    for i in range(8): e(f"v_mov_b32 v{64+i}, 0")
    for k in range(7):
        for d in range(4):
            r = 24+4*k+d
            e(f"v_lshlrev_b32 v72, 16, v{r}"); e(f"v_and_b32 v73, 0xffff0000, v{r}")
            e(f"v_add_f32 v{64+2*d}, v{64+2*d}, v72"); e(f"v_add_f32 v{65+2*d}, v{65+2*d}, v73")
    e("v_lshlrev_b32 v74, 5, v0")
    e("ds_write_b128 v74, v[64:67]"); e("ds_write_b128 v74, v[68:71] offset:16")
    e("s_waitcnt lgkmcnt(0)"); e("s_barrier")
    e("s_cmp_eq_u32 s18, 0"); e("s_cbranch_scc0 K0_nocs"); e("s_cmp_eq_u32 s29, 1"); e("s_cbranch_scc1 K0_nocs")
    e("v_lshrrev_b32 v75, 3, v2"); e("v_lshlrev_b32 v75, 5, v75"); e("v_and_b32 v76, 7, v2"); e("v_lshlrev_b32 v76, 2, v76"); e("v_add_u32 v75, v75, v76")
    for g in range(32):
        e(f"ds_read_b32 v{80+g}, v75 offset:{g*256}")
    e("s_waitcnt lgkmcnt(0)")
    for g in range(1,32): e(f"v_add_f32 v80, v80, v{80+g}")
    e("s_mul_i32 s57, s31, 4992"); e("s_lshl_b32 s60, s30, 6"); e("s_add_u32 s57, s57, s60"); e("s_lshl_b32 s57, s57, 2"); e(f"s_add_u32 s57, s57, {OFF_CS}")
    e("v_lshlrev_b32 v77, 2, v2")
    e("buffer_store_dword v80, v77, s[24:27], s57 offen")
    e("K0_nocs:")
    e("s_cmp_ge_u32 s46, 680"); e("s_cbranch_scc1 K0_end")
    e("s_waitcnt vmcnt(0)")
    e("v_lshrrev_b32 v3, 4, v2"); e("v_and_b32 v4, 15, v2"); e("v_lshrrev_b32 v5, 2, v4"); e("v_and_b32 v6, 3, v4")
    e("v_lshlrev_b32 v3, 2, v3"); e("v_add_u32 v3, v3, v5"); e("v_lshlrev_b32 v3, 7, v3"); e("v_lshlrev_b32 v6, 3, v6"); e("v_add_u32 v3, v3, v6"); e("v_add_u32 v3, s56, v3")
    for ft in range(4):
        e(f"ds_read_b64_tr_b16 v[{100+4*ft}:{101+4*ft}], v3 offset:{ft*32}")
        e(f"ds_read_b64_tr_b16 v[{102+4*ft}:{103+4*ft}], v3 offset:{ft*32+16*128}")
    e("v_lshlrev_b32 v7, 4, v2")
    e("s_waitcnt lgkmcnt(0)")
    for ft in range(4):
        e(f"s_lshl_b32 s60, s48, 2"); e(f"s_add_u32 s60, s60, {ft}")
        udiv_const(e, 61, 60, 5)
        e("s_mul_i32 s62, s61, 5"); e("s_sub_u32 s62, s60, s62")
        e("s_mul_i32 s61, s61, 68"); e("s_add_u32 s61, s61, s47"); e("s_mul_i32 s61, s61, 5"); e("s_add_u32 s61, s61, s62"); e("s_lshl_b32 s61, s61, 10"); e(f"s_add_u32 s61, s61, {OFF_WF}")
        e(f"buffer_store_dwordx4 v[{100+4*ft}:{103+4*ft}], v7, s[24:27], s61 offen")
    e("K0_end:")
    return kernel("k0_kernel", e.text(), vgpr=128, sgpr=80)
```

```python
from asmgen import *
from gen_common import *

SLOT = 53248
NST = 10

S_X = 8; S_W = 12; S_W2 = 16; S_WS = 20
S_WAVE = 24; S_RB = 25; S_CG = 26; S_T0 = 27; S_COL0 = 28; S_COL1 = 29
S_LX = 34; S_LW = 35; S_LW2 = 36
S_DSLOT = 40; S_XO = 41; S_WO = 42; S_TMP = 43; S_STG = 44; S_RSLOT = 45; S_T46 = 46; S_DELTA = 47; S_M0X = 48; S_M0W = 49; S_M0W2 = 50
S_ISKV = 51
VL = 255

def place(sched, items, f0, f1):
    M=len(sched); n=len(items)
    for k,it in enumerate(items):
        pos = int((f0 + (f1-f0)*(k+0.5)/n)*M); pos=min(max(pos,0),M-1)
        sched[pos].append(it)
def place_dma(sched, groups, f0, f1):
    M=len(sched); n=len(groups)
    for k,(m0w, ld) in enumerate(groups):
        pos = int((f0 + (f1-f0)*(k+0.5)/n)*M); pos=min(max(pos,0),M-2)
        sched[pos].append(m0w); sched[pos+1].insert(0, ld)

def adv_dma_list(wstride, two_w):
    l = [f"s_add_u32 s{S_XO}, s{S_XO}, 128", f"s_add_u32 s{S_WO}, s{S_WO}, {64*wstride}", f"s_add_u32 s{S_DSLOT}, s{S_DSLOT}, {SLOT}",
         f"s_cmp_ge_u32 s{S_DSLOT}, {3*SLOT}\ns_cselect_b32 s{S_TMP}, {3*SLOT}, 0", f"s_sub_u32 s{S_DSLOT}, s{S_DSLOT}, s{S_TMP}",
         f"s_add_u32 s{S_M0X}, s{S_DSLOT}, s{S_LX}", f"s_add_u32 s{S_M0W}, s{S_DSLOT}, s{S_LW}"]
    if two_w: l.append(f"s_add_u32 s{S_M0W2}, s{S_DSLOT}, s{S_LW2}")
    return l

def emit_prologue_dma(e, dg, wstride, two_w, extras):
    half = len(dg)//2
    e(f"s_mov_b32 s{S_DSLOT}, 0"); e(f"s_mov_b32 s{S_XO}, 0"); e(f"s_mov_b32 s{S_WO}, 0")
    e(f"s_mov_b32 s{S_M0X}, s{S_LX}"); e(f"s_mov_b32 s{S_M0W}, s{S_LW}")
    if two_w: e(f"s_mov_b32 s{S_M0W2}, s{S_LW2}")
    for (a,l) in dg: e(a); e(l)
    for s in adv_dma_list(wstride, two_w): e(s)
    extras()
    for (a,l) in dg: e(a); e(l)
    for s in adv_dma_list(wstride, two_w): e(s)
    for (a,l) in dg[:half]: e(a); e(l)

def emit_mainloop(e, name, NT, NF, XF, WF, dg, reads, bump, wstride, two_w, RSPAN=0.6):
    NTOT = len(dg); half = NTOT//2; M = NT*NF
    def mfmas(setn):
        out=[]
        for tt in range(NT):
            for j in range(NF):
                a = (tt*NF+j)*4
                out.append(f"v_mfma_f32_16x16x32_bf16 v[{a}:{a+3}], a[{WF+(setn*NF+j)*4}:{WF+(setn*NF+j)*4+3}], a[{XF+(setn*NT+tt)*4}:{XF+(setn*NT+tt)*4+3}], v[{a}:{a+3}]")
        return out
    def emit(mf, sched):
        for i,m in enumerate(mf):
            e(m)
            for s in sched[i]: e(s)
    for s in reads(0,0): e(s)
    e("s_waitcnt lgkmcnt(0)")
    e(f"s_mov_b32 s{S_STG}, 0"); e(f"s_mov_b32 s{S_RSLOT}, 0")
    e(f"{name}_loop:")
    sched=[[] for _ in range(M)]
    place(sched, reads(1,1), 0.0, RSPAN)
    place_dma(sched, dg[half:], 0.05, 0.85)
    upd = [f"s_add_u32 s{S_T46}, s{S_RSLOT}, {SLOT}", f"s_cmp_ge_u32 s{S_T46}, {3*SLOT}\ns_cselect_b32 s{S_DELTA}, {3*SLOT}, 0", f"s_sub_u32 s{S_T46}, s{S_T46}, s{S_DELTA}",
           f"s_sub_u32 s{S_DELTA}, s{S_T46}, s{S_RSLOT}", f"s_mov_b32 s{S_RSLOT}, s{S_T46}"]
    place(sched, upd, 0.0, 0.3)
    place(sched, [f"v_add_u32 v{r}, s{S_DELTA}, v{r}" for r in bump], RSPAN+0.03, 0.98)
    adv = adv_dma_list(wstride, two_w) + [f"s_cmp_ge_u32 s{S_STG}, {NST-3}\ns_cselect_b32 s{S_TMP}, 0x40000000, 0", f"s_or_b32 s{S_XO}, s{S_XO}, s{S_TMP}", f"s_or_b32 s{S_WO}, s{S_WO}, s{S_TMP}"]
    place(sched, adv, 0.87, 1.0)
    emit(mfmas(0), sched)
    e(f"s_waitcnt vmcnt({NTOT}) lgkmcnt(0)")
    e("s_barrier")
    sched=[[] for _ in range(M)]
    place(sched, reads(0,0), 0.0, RSPAN)
    place_dma(sched, dg[:half], 0.05, 0.85)
    place(sched, [f"s_add_u32 s{S_STG}, s{S_STG}, 1"], 0.93, 0.95)
    sched[M-1].append(f"s_cmp_lt_u32 s{S_STG}, {NST}")
    emit(mfmas(1), sched)
    e("s_waitcnt lgkmcnt(0)")
    e(f"s_cbranch_scc1 {name}_loop")
    e("s_nop 7")

def x_dma_addr(e, DXA, NXD):
    e(f"v_lshrrev_b32 v200, 3, v{VL}"); e(f"v_lshrrev_b32 v201, 4, v{VL}"); e(f"v_and_b32 v202, 7, v{VL}")
    e(f"s_mul_i32 s30, s{S_WAVE}, {NXD*8}"); e(f"s_add_u32 s30, s30, s{S_T0}")
    e(f"s_mul_i32 s31, s{S_WAVE}, {NXD*4}")
    for i in range(NXD):
        e(f"v_add_u32 v203, {4*i}, v201"); e("v_add_u32 v203, s31, v203"); e("v_and_b32 v203, 7, v203"); e("v_xor_b32 v203, v203, v202"); e("v_lshlrev_b32 v203, 4, v203")
        e(f"v_add_u32 v204, {8*i}, v200"); e("v_add_u32 v204, s30, v204"); e("v_mul_u32_u24 v204, 1280, v204"); e(f"v_add_u32 v{DXA+i}, v203, v204")
    e(f"s_mul_i32 s{S_LX}, s{S_WAVE}, {NXD*1024}")

def x_read_addr(e, XRD, tok_off_s):
    e(f"v_and_b32 v200, 15, v{VL}"); e(f"v_lshrrev_b32 v201, 4, v{VL}")
    e("v_lshrrev_b32 v202, 1, v200"); e("v_xor_b32 v202, v202, v201"); e("v_and_b32 v202, 7, v202"); e("v_lshlrev_b32 v202, 4, v202")
    e("v_lshlrev_b32 v203, 7, v200"); e("v_add_u32 v203, v203, v202"); e(f"v_add_u32 v{XRD}, s{tok_off_s}, v203"); e(f"v_xor_b32 v{XRD+1}, 64, v{XRD}")

def x_reads(XF, NT, XRD, ks, setn):
    return [f"ds_read_b128 a[{XF+(setn*NT+tt)*4}:{XF+(setn*NT+tt)*4+3}], v{XRD+ks} offset:{tt*2048}" for tt in range(NT)]

def load_stats(e, NT, dst_v, tok0_s):
    e(f"v_and_b32 v200, 15, v{VL}"); e(f"v_add_u32 v200, s{tok0_s}, v200"); e("v_lshlrev_b32 v200, 3, v200")
    for tt in range(NT):
        e(f"buffer_load_dwordx2 v[{dst_v+2*tt}:{dst_v+2*tt+1}], v200, s[{S_WS}:{S_WS+3}], 0 offen offset:{OFF_STATS + tt*128}")

def gen_ffn(e):
    NT, NF = 10, 4
    XF = 0; WF = XF + 2*NT*4
    CS = 112
    XRD = 160; WRD = 162; DXA = 164; DWA = 169
    ST = 174
    e("FFN:")
    e(f"s_mul_i32 s{S_T0}, s{S_RB}, 160")
    e(f"s_load_dwordx2 s[4:5], s[0:1], {KA_WG}"); e(f"s_load_dwordx2 s[6:7], s[0:1], {KA_WU}")
    x_dma_addr(e, DXA, 5)
    e(f"v_lshrrev_b32 v200, 4, v{VL}"); e(f"v_and_b32 v201, 15, v{VL}"); e("v_lshlrev_b32 v202, 1, v200")
    e(f"s_lshl_b32 s31, s{S_CG}, 8")
    e(f"s_lshl_b32 s32, s{S_WAVE}, 4")
    for i in range(4):
        sw = ((i >> 1) & 1) << 3
        e(f"v_xor_b32 v203, {sw}, v202"); e("v_xor_b32 v203, v203, v201"); e("v_lshlrev_b32 v203, 4, v203")
        e(f"v_add_u32 v204, {4*i}, v200"); e("v_add_u32 v204, s32, v204"); e("v_mul_u32_u24 v204, 3072, v204"); e("v_add_u32 v204, v204, v203"); e(f"v_add_u32 v{DWA+i}, s31, v204")
    e(f"s_lshl_b32 s{S_LW}, s{S_WAVE}, 12"); e(f"s_add_u32 s{S_LW2}, s{S_LW}, {20480+16384}"); e(f"s_add_u32 s{S_LW}, s{S_LW}, 20480")
    e("s_waitcnt lgkmcnt(0)")
    srd(e, S_W, 4, 640*3072); srd(e, S_W2, 6, 640*3072)
    dg = []
    for i in range(5): dg.append((f"s_add_u32 m0, s{S_M0X}, {i*1024}", f"buffer_load_dwordx4 v{DXA+i}, s[{S_X}:{S_X+3}], s{S_XO} offen lds"))
    for i in range(4): dg.append((f"s_add_u32 m0, s{S_M0W}, {i*1024}", f"buffer_load_dwordx4 v{DWA+i}, s[{S_W}:{S_W+3}], s{S_WO} offen lds"))
    for i in range(4): dg.append((f"s_add_u32 m0, s{S_M0W2}, {i*1024}", f"buffer_load_dwordx4 v{DWA+i}, s[{S_W2}:{S_W2+3}], s{S_WO} offen lds"))
    dg = [dg[0],dg[5],dg[9],dg[1],dg[6],dg[10], dg[2],dg[7],dg[11],dg[3],dg[8],dg[12],dg[4]]
    def extras():
        load_stats(e, NT, ST, S_T0)
        e(f"v_lshrrev_b32 v200, 4, v{VL}"); e("v_lshlrev_b32 v200, 4, v200")
        e(f"s_lshl_b32 s30, s{S_CG}, 7"); e(f"s_lshl_b32 s31, s{S_WAVE}, 5"); e("s_add_u32 s30, s30, s31"); e("s_lshl_b32 s30, s30, 2")
        e("v_add_u32 v200, s30, v200")
        for p in range(3):
            for t4 in range(4):
                base = (1920 if t4 < 2 else 3456) + 16*(t4 & 1)
                e(f"s_mov_b32 s31, {OFF_CS + (p*4992 + base)*4}")
                e(f"buffer_load_dwordx4 v[{p*16+t4*4}:{p*16+t4*4+3}], v200, s[{S_WS}:{S_WS+3}], s31 offen")
    emit_prologue_dma(e, dg, 3072, True, extras)
    e(f"s_mov_b32 s30, 0")
    x_read_addr(e, XRD, 30)
    e(f"v_and_b32 v200, 15, v{VL}"); e(f"v_lshrrev_b32 v201, 4, v{VL}")
    e("v_lshrrev_b32 v202, 2, v200"); e("v_and_b32 v203, 3, v200")
    e("v_lshlrev_b32 v204, 3, v201"); e("v_add_u32 v204, v204, v202"); e("v_lshlrev_b32 v204, 8, v204")
    e("v_lshlrev_b32 v205, 1, v202"); e("v_and_b32 v206, 1, v201"); e("v_lshlrev_b32 v206, 3, v206"); e("v_or_b32 v205, v205, v206")
    e("v_lshrrev_b32 v206, 1, v203"); e(f"s_lshl_b32 s30, s{S_WAVE}, 2"); e("v_add_u32 v206, s30, v206")
    e("v_and_b32 v207, 1, v203"); e("v_lshlrev_b32 v207, 3, v207")
    for j in range(2):
        e(f"v_add_u32 v199, {2*j}, v206"); e("v_xor_b32 v199, v199, v205"); e("v_lshlrev_b32 v199, 4, v199"); e("v_add_u32 v199, v199, v207")
        e("v_add_u32 v199, v199, v204"); e(f"v_add_u32 v{WRD+j}, 20480, v199")
    e(f"s_waitcnt vmcnt({13+6})")
    for i in range(0, 16, 2):
        e(f"v_pk_add_f32 v[{i}:{i+1}], v[{i}:{i+1}], v[{16+i}:{17+i}]")
        e(f"v_pk_add_f32 v[{i}:{i+1}], v[{i}:{i+1}], v[{32+i}:{33+i}]")
    for i in range(16): e(f"v_accvgpr_write_b32 a{CS+i}, v{i}")
    for i in range(160): e(f"v_mov_b32 v{i}, 0")
    e("s_barrier")
    def reads(ks, setn):
        w = []
        for t4 in range(4):
            r = WF + (setn*NF + t4)*4
            off = (16384 if t4 >= 2 else 0) + ks*8192
            w.append(f"ds_read_b64_tr_b16 a[{r}:{r+1}], v{WRD+(t4&1)} offset:{off}")
            w.append(f"ds_read_b64_tr_b16 a[{r+2}:{r+3}], v{WRD+(t4&1)} offset:{off+1024}")
        xs = x_reads(XF, NT, XRD, ks, setn)
        return xs[:1] + w + xs[1:]
    emit_mainloop(e, "FFN", NT, NF, XF, WF, dg, reads, [XRD, XRD+1, WRD, WRD+1], 3072, True)
    for i in range(16): e(f"v_accvgpr_read_b32 v{208+i}, a{CS+i}")
    e(f"v_lshlrev_b32 v196, 4, v{VL}")
    e(f"s_lshl_b32 s30, s{S_CG}, 2"); e(f"s_add_u32 s30, s30, s{S_WAVE}")
    e(f"s_mul_i32 s31, s{S_RB}, 10")
    for tt in range(NT):
        m = ST+2*tt; r = m+1
        A = tt*16
        e(f"v_sub_f32 v224, 0, v{m}")
        e(f"v_mul_f32 v226, {-LOG2E!r}, v{r}")
        e(f"v_mul_f32 v228, v{r}, v{r}"); e("v_rcp_f32 v228, v228")
        for k in range(0, 16, 2):
            e(f"v_pk_fma_f32 v[{A+k}:{A+k+1}], v[{208+k}:{209+k}], v[224:225], v[{A+k}:{A+k+1}] op_sel_hi:[1,0,1]")
        for k in range(0, 8, 2):
            e(f"v_pk_mul_f32 v[{230+k}:{231+k}], v[{A+k}:{A+k+1}], v[226:227] op_sel_hi:[1,0]")
        for k in range(8): e(f"v_exp_f32 v{230+k}, v{230+k}")
        for k in range(0, 8, 2):
            e(f"v_pk_fma_f32 v[{230+k}:{231+k}], v[{230+k}:{231+k}], v[228:229], v[228:229] op_sel_hi:[1,0,0]")
        for k in range(8): e(f"v_rcp_f32 v{230+k}, v{230+k}")
        for k in range(0, 8, 2):
            e(f"v_pk_mul_f32 v[{A+k}:{A+k+1}], v[{A+k}:{A+k+1}], v[{A+8+k}:{A+9+k}]")
        for k in range(0, 8, 2):
            e(f"v_pk_mul_f32 v[{A+k}:{A+k+1}], v[{A+k}:{A+k+1}], v[{230+k}:{231+k}]")
        for k in range(4):
            e(f"v_cvt_pk_bf16_f32 v{A+8+k}, v{A+2*k}, v{A+2*k+1}")
        e(f"s_add_u32 s32, s31, {tt}")
        e("s_cmp_ge_u32 s32, 128"); lab = e.label("FFN_sk"); e(f"s_cbranch_scc1 {lab}")
        e("s_lshr_b32 s33, s32, 2"); e("s_mul_i32 s33, s33, 68"); e("s_add_u32 s33, s33, s30"); e("s_lshl_b32 s33, s33, 2"); e("s_and_b32 s32, s32, 3"); e("s_add_u32 s33, s33, s32")
        e("s_lshl_b32 s33, s33, 10"); e(f"s_add_u32 s33, s33, {OFF_ACT}")
        e(f"buffer_store_dwordx4 v[{A+8}:{A+11}], v196, s[{S_WS}:{S_WS+3}], s33 offen")
        e(f"{lab}:")
    e("s_endpgm")

def fperm():
    ft0 = [('p', 5*q+e_) for q in range(4) for e_ in range(4)]
    ft1 = []
    for q in range(4): ft1 += [('p', 5*q+4), ('m', 5*q), ('m', 5*q+1), ('m', 5*q+2)]
    ft2 = [[('m', 5*q+3), ('m', 5*q+4)] for q in range(4)]
    return ft0, ft1, ft2

def gen_att(e):
    NT, NF = 4, 10
    XF = 0; WF = XF + 2*NT*4
    PHI = 112
    CS = 172
    XRD = 160; WRD = 162; DXA = 172; DWA = 180
    ST = 246
    WPH = 159744
    e("ATT:")
    e(f"s_lshl_b32 s{S_T0}, s{S_RB}, 8")
    e(f"s_load_dwordx2 s[4:5], s[0:1], {KA_WQKV}"); e(f"s_load_dwordx2 s[6:7], s[0:1], {KA_WPHI}")
    x_dma_addr(e, DXA, 8)
    e(f"s_mul_i32 s30, s{S_WAVE}, 5")
    e(f"s_lshl_b32 s31, s{S_COL0}, 1"); e(f"s_lshl_b32 s32, s{S_COL1}, 1"); e("s_sub_u32 s32, s32, s31"); e("s_sub_u32 s32, s32, 160")
    e("s_mov_b32 s33, 0xCCCD")
    for i in range(5):
        e(f"s_add_u32 s37, s30, {i}"); e("s_lshl_b32 s37, s37, 6")
        e(f"v_add_u32 v200, s37, v{VL}")
        e("v_mul_lo_u32 v201, v200, s33"); e("v_lshrrev_b32 v201, 20, v201")
        e("v_mul_u32_u24 v202, 20, v201"); e("v_sub_u32 v202, v200, v202")
        e("v_lshrrev_b32 v203, 2, v201"); e("v_and_b32 v203, 2, v203"); e("v_xor_b32 v202, v202, v203")
        e("v_cmp_le_u32 vcc, 10, v202"); e("v_mov_b32 v204, s32"); e("v_cndmask_b32 v204, 0, v204, vcc")
        e("v_lshlrev_b32 v202, 4, v202"); e("v_add_u32 v202, v202, v204")
        e("v_mul_u32_u24 v201, 3840, v201"); e("v_add_u32 v201, v201, v202"); e(f"v_add_u32 v{DWA+i}, s31, v201")
    e(f"s_lshl_b32 s{S_LW}, s30, 10"); e(f"s_add_u32 s{S_LW}, s{S_LW}, 32768")
    e("s_waitcnt lgkmcnt(0)")
    srd(e, S_W, 4, 640*3840); srd(e, S_W2, 6, 32*800)
    dg = []
    for i in range(8): dg.append((f"s_add_u32 m0, s{S_M0X}, {i*1024}", f"buffer_load_dwordx4 v{DXA+i}, s[{S_X}:{S_X+3}], s{S_XO} offen lds"))
    for i in range(5): dg.append((f"s_add_u32 m0, s{S_M0W}, {i*1024}", f"buffer_load_dwordx4 v{DWA+i}, s[{S_W}:{S_W+3}], s{S_WO} offen lds"))
    dg = [dg[0],dg[8],dg[1],dg[9],dg[2],dg[3],  dg[10],dg[4],dg[5],dg[11],dg[6],dg[12],dg[7]]
    def extras():
        e(f"s_lshl_b32 s30, s{S_WAVE}, 6"); e(f"s_add_u32 s30, s30, s{S_T0}")
        load_stats(e, NT, ST, 30)
        e(f"v_lshrrev_b32 v200, 4, v{VL}"); e("v_mul_u32_u24 v200, 80, v200")
        for p in range(3):
            for half in range(2):
                e(f"s_lshl_b32 s31, s{S_COL0 if half == 0 else S_COL1}, 2"); e(f"s_add_u32 s31, s31, {OFF_CS + p*4992*4}")
                for j in range(5):
                    d = p*40 + (half*5+j)*4
                    e(f"buffer_load_dwordx4 v[{d}:{d+3}], v200, s[{S_WS}:{S_WS+3}], s31 offen offset:{j*16}")
        e(f"v_lshlrev_b32 v201, 4, v{VL}")
        e(f"s_mul_i32 s31, s{S_CG}, 3200"); e(f"s_lshl_b32 s32, s{S_WAVE}, 10"); e("s_add_u32 s31, s31, s32")
        e(f"s_add_u32 m0, s32, {WPH}")
        e(f"s_cmp_eq_u32 s{S_WAVE}, 3"); e("s_cselect_b64 s[52:53], 0xff, -1"); e("s_mov_b64 exec, s[52:53]")
        e(f"buffer_load_dwordx4 v201, s[{S_W2}:{S_W2+3}], s31 offen lds")
        e("s_mov_b64 exec, -1")
    emit_prologue_dma(e, dg, 3840, False, extras)
    e(f"v_mov_b32 v204, 0"); e("v_mov_b32 v205, 0"); e("v_mov_b32 v206, 0"); e("v_mov_b32 v207, 0")
    e(f"v_lshlrev_b32 v203, 4, v{VL}"); e(f"v_add_u32 v203, {WPH+3200}, v203")
    e("s_mov_b32 exec_hi, 0x00ffffff")
    e("ds_write_b128 v203, v[204:207]")
    e("s_mov_b64 exec, -1")
    e(f"s_lshl_b32 s30, s{S_WAVE}, 13")
    x_read_addr(e, XRD, 30)
    e(f"v_and_b32 v200, 15, v{VL}"); e(f"v_lshrrev_b32 v201, 4, v{VL}")
    e("v_lshrrev_b32 v202, 2, v200"); e("v_and_b32 v203, 3, v200")
    e("v_lshlrev_b32 v204, 3, v201"); e("v_add_u32 v204, v204, v202"); e("v_mul_u32_u24 v204, 320, v204")
    e("v_mul_u32_u24 v205, 5, v203")
    e("v_and_b32 v206, 1, v201"); e("v_lshlrev_b32 v206, 2, v206")
    for t in range(10):
        e(f"v_add_u32 v207, {(t%5) + 20*(t//5)}, v205"); e("v_xor_b32 v207, v207, v206"); e("v_lshlrev_b32 v207, 3, v207"); e("v_add_u32 v207, v207, v204"); e(f"v_add_u32 v{WRD+t}, 32768, v207")
    e("v_mul_u32_u24 v208, 800, v201"); e("v_mul_u32_u24 v209, 40, v202"); e("v_add_u32 v208, v208, v209"); e(f"v_add_u32 v208, {WPH}, v208")
    e(f"v_mov_b32 v209, {WPH+3200}")
    e("v_cmp_eq_u32 vcc, v203, v201"); e("v_cndmask_b32 v208, v209, v208, vcc")
    e(f"s_waitcnt vmcnt({13+6}) lgkmcnt(0)")
    for i in range(0, 40, 2):
        e(f"v_pk_add_f32 v[{i}:{i+1}], v[{i}:{i+1}], v[{40+i}:{41+i}]")
        e(f"v_pk_add_f32 v[{i}:{i+1}], v[{i}:{i+1}], v[{80+i}:{81+i}]")
    for i in range(40): e(f"v_accvgpr_write_b32 a{CS+i}, v{i}")
    for i in range(160): e(f"v_mov_b32 v{i}, 0")
    e("s_barrier")
    for jp in range(5):
        for s in range(3):
            r = PHI + (jp*3+s)*4
            e(f"ds_read_b64_tr_b16 a[{r}:{r+1}], v208 offset:{s*320 + jp*8}")
            e(f"ds_read_b64_tr_b16 a[{r+2}:{r+3}], v208 offset:{s*320 + 160 + jp*8}")
    def reads(ks, setn):
        w = []
        for t in range(10):
            r = WF + (setn*NF + t)*4
            w.append(f"ds_read_b64_tr_b16 a[{r}:{r+1}], v{WRD+t} offset:{ks*10240}")
            w.append(f"ds_read_b64_tr_b16 a[{r+2}:{r+3}], v{WRD+t} offset:{ks*10240+1280}")
        xs = x_reads(XF, NT, XRD, ks, setn)
        return xs[:1] + w + xs[1:]
    emit_mainloop(e, "ATT", NT, NF, XF, WF, dg, reads, [XRD, XRD+1] + [WRD+t for t in range(10)], 3840, False)
    e(f"s_cmp_eq_u32 s{S_ISKV}, 1"); e("s_cbranch_scc1 KV_EPI")
    for i in range(40): e(f"v_accvgpr_read_b32 v{160+i}, a{CS+i}")
    e(f"v_lshrrev_b32 v200, 4, v{VL}"); e(f"v_and_b32 v201, 15, v{VL}")
    e(f"v_mul_u32_u24 v202, {128*768}, v200")
    e("v_lshlrev_b32 v203, 4, v201"); e("v_add_u32 v204, v202, v203")
    e(f"s_lshl_b32 s30, s{S_RB}, 4"); e(f"s_lshl_b32 s31, s{S_WAVE}, 2"); e("s_add_u32 s30, s30, s31")
    e(f"s_lshl_b32 s31, s{S_CG}, 3")
    for tt in range(NT):
        m = ST+2*tt; r = m+1
        e(f"v_sub_f32 v208, 0, v{m}"); e(f"v_mov_b32 v210, v{r}")
        for half in range(2):
            A = (tt*10 + half*5)*4
            C = 160 + half*20
            for k in range(0, 20, 2):
                e(f"v_pk_fma_f32 v[{A+k}:{A+k+1}], v[{C+k}:{C+k+1}], v[208:209], v[{A+k}:{A+k+1}] op_sel_hi:[1,0,1]")
            for k in range(0, 20, 2):
                e(f"v_pk_mul_f32 v[{A+k}:{A+k+1}], v[{A+k}:{A+k+1}], v[210:211] op_sel_hi:[1,0]")
            for k in range(10):
                e(f"v_cvt_pk_bf16_f32 v{A+k}, v{A+2*k}, v{A+2*k+1}")
            e(f"s_add_u32 s32, s31, {4*half}"); e("s_lshl_b32 s32, s32, 7"); e("s_add_u32 s32, s32, s30"); e(f"s_add_u32 s32, s32, {tt}")
            e(f"v_mov_b32 v{A+10}, 0"); e(f"v_mov_b32 v{A+11}, 0")
            e("s_mul_i32 s32, s32, 768"); e(f"s_add_u32 s32, s32, {OFF_QF}")
            e(f"buffer_store_dwordx4 v[{A}:{A+3}], v204, s[{S_WS}:{S_WS+3}], s32 offen")
            e(f"buffer_store_dwordx4 v[{A+4}:{A+7}], v204, s[{S_WS}:{S_WS+3}], s32 offen offset:256")
            e(f"buffer_store_dwordx4 v[{A+8}:{A+11}], v204, s[{S_WS}:{S_WS+3}], s32 offen offset:512")
    e("s_endpgm")
    e("KV_EPI:")
    e("s_waitcnt vmcnt(0)")
    e("s_barrier")
    e(f"v_lshrrev_b32 v200, 4, v{VL}"); e(f"v_and_b32 v201, 15, v{VL}")
    e("v_lshlrev_b32 v202, 15, v200"); e("v_lshlrev_b32 v203, 5, v201"); e("v_add_u32 v202, v202, v203")
    e(f"s_lshl_b32 s30, s{S_WAVE}, 11"); e("v_add_u32 v245, s30, v202")
    for i in range(20): e(f"v_accvgpr_read_b32 v{160+i}, a{CS+20+i}")
    for tt in range(NT):
        m = ST+2*tt; r = m+1
        A = (tt*10+5)*4
        e(f"v_sub_f32 v208, 0, v{m}"); e(f"v_mov_b32 v210, v{r}")
        for k in range(0, 20, 2):
            e(f"v_pk_fma_f32 v[{A+k}:{A+k+1}], v[{160+k}:{161+k}], v[208:209], v[{A+k}:{A+k+1}] op_sel_hi:[1,0,1]")
        for k in range(0, 20, 2):
            e(f"v_pk_mul_f32 v[{A+k}:{A+k+1}], v[{A+k}:{A+k+1}], v[210:211] op_sel_hi:[1,0]")
        for k in range(10):
            e(f"v_cvt_pk_bf16_f32 v{A+k}, v{A+2*k}, v{A+2*k+1}")
        e(f"ds_write_b128 v245, v[{A}:{A+3}] offset:{3*8192 + tt*512}")
        e(f"ds_write_b128 v245, v[{A+4}:{A+7}] offset:{3*8192 + tt*512 + 16}")
    for i in range(20): e(f"v_accvgpr_read_b32 v{160+i}, a{CS+i}")
    ft0, ft1, ft2 = fperm()
    P = 180; EM = 200
    for tt in range(NT):
        m = ST+2*tt; r = m+1
        A = (tt*10)*4; AV = A + 20
        e(f"v_sub_f32 v220, 0, v{m}")
        for k in range(0, 20, 2):
            e(f"v_pk_fma_f32 v[{A+k}:{A+k+1}], v[{160+k}:{161+k}], v[220:221], v[{A+k}:{A+k+1}] op_sel_hi:[1,0,1]")
        for k in range(10):
            e(f"v_cvt_pk_bf16_f32 v{A+k}, v{A+2*k}, v{A+2*k+1}")
        e(f"v_mov_b32 v{A+10}, 0"); e(f"v_mov_b32 v{A+11}, 0")
        for jp in range(5):
            for s in range(3):
                c = "0" if s == 0 else f"v[{P+jp*4}:{P+jp*4+3}]"
                e(f"v_mfma_f32_16x16x32_bf16 v[{P+jp*4}:{P+jp*4+3}], a[{PHI+(jp*3+s)*4}:{PHI+(jp*3+s)*4+3}], v[{A+s*4}:{A+s*4+3}], {c}")
        e(f"v_mul_f32 v222, {LOG2E!r}, v{r}")
        e(f"v_sub_f32 v224, 0, v222")
        e(f"v_max3_f32 v226, v{P}, v{P+1}, v{P+2}"); e(f"v_min3_f32 v227, v{P}, v{P+1}, v{P+2}")
        for k in range(3, 19, 2):
            e(f"v_max3_f32 v226, v226, v{P+k}, v{P+k+1}"); e(f"v_min3_f32 v227, v227, v{P+k}, v{P+k+1}")
        e(f"v_max_f32 v226, v226, v{P+19}"); e(f"v_min_f32 v227, v227, v{P+19}")
        e("v_mul_f32 v228, v226, v224")
        e("v_mul_f32 v230, v227, v222")
        for k in range(0, 20, 2):
            e(f"v_pk_fma_f32 v[{EM+k}:{EM+k+1}], v[{P+k}:{P+k+1}], v[224:225], v[230:231] op_sel_hi:[1,0,0]")
        for k in range(0, 20, 2):
            e(f"v_pk_fma_f32 v[{P+k}:{P+k+1}], v[{P+k}:{P+k+1}], v[222:223], v[228:229] op_sel_hi:[1,0,0]")
        for k in range(20): e(f"v_exp_f32 v{P+k}, v{P+k}")
        for k in range(20): e(f"v_exp_f32 v{EM+k}, v{EM+k}")
        e(f"v_pk_add_f32 v[232:233], v[{P}:{P+1}], v[{P+2}:{P+3}]"); e(f"v_pk_add_f32 v[234:235], v[{EM}:{EM+1}], v[{EM+2}:{EM+3}]")
        for k in range(4, 20, 2):
            e(f"v_pk_add_f32 v[232:233], v[232:233], v[{P+k}:{P+k+1}]"); e(f"v_pk_add_f32 v[234:235], v[234:235], v[{EM+k}:{EM+k+1}]")
        e("v_add_f32 v232, v232, v233"); e("v_add_f32 v234, v234, v235")
        e("v_rcp_f32 v232, v232"); e("v_rcp_f32 v234, v234")
        for k in range(0, 20, 2):
            e(f"v_pk_mul_f32 v[{P+k}:{P+k+1}], v[{P+k}:{P+k+1}], v[232:233] op_sel_hi:[1,0]")
            e(f"v_pk_mul_f32 v[{EM+k}:{EM+k+1}], v[{EM+k}:{EM+k+1}], v[234:235] op_sel_hi:[1,0]")
        def reg(x): return (P if x[0] == 'p' else EM) + x[1]
        for k in range(8): e(f"v_cvt_pk_bf16_f32 v{A+k}, v{reg(ft0[2*k])}, v{reg(ft0[2*k+1])}")
        for k in range(8): e(f"v_cvt_pk_bf16_f32 v{A+8+k}, v{reg(ft1[2*k])}, v{reg(ft1[2*k+1])}")
        for q in range(4): e(f"v_cvt_pk_bf16_f32 v{236+2*q}, v{reg(ft2[q][0])}, v{reg(ft2[q][1])}")
        e(f"v_mov_b32 v237, v{AV+8}"); e(f"v_mov_b32 v239, v{AV+9}"); e("v_mov_b32 v241, 0x3f80"); e("v_mov_b32 v243, 0")
        e(f"ds_write_b128 v245, v[{A}:{A+3}] offset:{tt*512}"); e(f"ds_write_b128 v245, v[{A+4}:{A+7}] offset:{tt*512+16}")
        e(f"ds_write_b128 v245, v[{A+8}:{A+11}] offset:{8192+tt*512}"); e(f"ds_write_b128 v245, v[{A+12}:{A+15}] offset:{8192+tt*512+16}")
        e(f"ds_write_b128 v245, v[236:239] offset:{2*8192+tt*512}"); e(f"ds_write_b128 v245, v[240:243] offset:{2*8192+tt*512+16}")
    e("s_waitcnt lgkmcnt(0)")
    e("s_barrier")
    e(f"v_lshrrev_b32 v200, 4, v{VL}"); e(f"v_and_b32 v201, 15, v{VL}"); e("v_lshrrev_b32 v202, 2, v201"); e("v_and_b32 v203, 3, v201")
    e("v_lshlrev_b32 v200, 2, v200"); e("v_add_u32 v200, v200, v202"); e("v_lshlrev_b32 v200, 5, v200"); e("v_lshlrev_b32 v203, 3, v203"); e("v_add_u32 v200, v200, v203")
    e(f"s_lshl_b32 s30, s{S_WAVE}, 15"); e("v_add_u32 v200, s30, v200")
    KA = 0
    FR = 32
    for i in range(24): e(f"v_mov_b32 v{KA+i}, 0")
    def kvreads(ks, st):
        for sub in range(4):
            rr = FR + (st*4+sub)*4
            e(f"ds_read_b64_tr_b16 v[{rr}:{rr+1}], v200 offset:{sub*8192 + ks*1024}")
            e(f"ds_read_b64_tr_b16 v[{rr+2}:{rr+3}], v200 offset:{sub*8192 + ks*1024 + 512}")
    kvreads(0, 0)
    for ks in range(8):
        st = ks & 1
        if ks < 7:
            kvreads(ks+1, st^1); e("s_waitcnt lgkmcnt(8)")
        else:
            e("s_waitcnt lgkmcnt(0)")
        for ft in range(3):
            for dt in range(2):
                a = KA + (ft*2+dt)*4
                Af = FR + (st*4+ft)*4
                Bf = FR + (st*4 + (3 if dt == 0 else 2))*4
                e(f"v_mfma_f32_16x16x32_bf16 v[{a}:{a+3}], v[{Af}:{Af+3}], v[{Bf}:{Bf+3}], v[{a}:{a+3}]")
    e(f"s_lshl_b32 s30, s{S_RB}, 5"); e(f"s_lshl_b32 s31, s{S_CG}, 2"); e("s_add_u32 s30, s30, s31"); e(f"s_add_u32 s30, s30, s{S_WAVE}")
    e("s_mul_i32 s30, s30, 5120"); e(f"s_add_u32 s30, s30, {OFF_KVP}")
    e(f"v_lshlrev_b32 v201, 5, v{VL}"); e(f"v_lshlrev_b32 v202, 3, v{VL}")
    for dt in range(2):
        a0 = KA + (0*2+dt)*4; a1 = KA + (1*2+dt)*4; a2 = KA + (2*2+dt)*4
        if dt == 1: e("s_add_u32 s30, s30, 2560")
        e(f"buffer_store_dwordx4 v[{a0}:{a0+3}], v201, s[{S_WS}:{S_WS+3}], s30 offen")
        e(f"buffer_store_dwordx4 v[{a1}:{a1+3}], v201, s[{S_WS}:{S_WS+3}], s30 offen offset:16")
        e(f"buffer_store_dwordx2 v[{a2}:{a2+1}], v202, s[{S_WS}:{S_WS+3}], s30 offen offset:2048")
    e("s_endpgm")

def gen_k1():
    e = Em()
    e("s_cmp_ge_u32 s2, 256"); e("s_cbranch_scc1 K1_end")
    e(f"s_load_dwordx2 s[4:5], s[0:1], {KA_X}"); e(f"s_load_dwordx2 s[6:7], s[0:1], {KA_WS}")
    e("v_lshrrev_b32 v1, 6, v0"); e(f"v_and_b32 v{VL}, 63, v0"); e(f"v_readfirstlane_b32 s{S_WAVE}, v1")
    e("s_and_b32 s30, s2, 7"); e("s_lshr_b32 s31, s2, 3")
    e("s_lshr_b32 s32, s30, 2"); e("s_and_b32 s33, s30, 3")
    e("s_waitcnt lgkmcnt(0)")
    srd(e, S_X, 4, 2048*1280); srd(e, S_WS, 6, WS_BYTES)
    e("s_cmp_lt_u32 s31, 8"); e("s_cbranch_scc1 K1_kv")
    e("s_cmp_lt_u32 s31, 12"); e("s_cbranch_scc1 K1_q")
    e("s_sub_u32 s34, s31, 12"); e("s_mul_i32 s35, s32, 20"); e("s_add_u32 s34, s34, s35")
    e("s_cmp_ge_u32 s34, 39"); e("s_cbranch_scc1 K1_end")
    udiv_const(e, S_RB, 34, 3)
    e(f"s_mul_i32 s35, s{S_RB}, 3"); e("s_sub_u32 s35, s34, s35"); e("s_mul_i32 s36, s33, 3"); e(f"s_add_u32 s{S_CG}, s35, s36")
    e("s_branch FFN")
    e("K1_kv:")
    e("s_lshl_b32 s34, s33, 1"); e("s_and_b32 s35, s31, 1"); e(f"s_add_u32 s{S_CG}, s34, s35")
    e("s_lshl_b32 s34, s32, 2"); e("s_lshr_b32 s35, s31, 1"); e(f"s_add_u32 s{S_RB}, s34, s35")
    e(f"s_mul_i32 s34, s{S_CG}, 80"); e(f"s_add_u32 s{S_COL0}, s34, 640"); e(f"s_add_u32 s{S_COL1}, s34, 1280"); e(f"s_mov_b32 s{S_ISKV}, 1")
    e("s_branch ATT")
    e("K1_q:")
    e(f"s_mov_b32 s{S_CG}, s33"); e("s_lshl_b32 s34, s32, 2"); e("s_sub_u32 s35, s31, 8"); e(f"s_add_u32 s{S_RB}, s34, s35")
    e(f"s_mul_i32 s{S_COL0}, s33, 160"); e(f"s_add_u32 s{S_COL1}, s{S_COL0}, 80"); e(f"s_mov_b32 s{S_ISKV}, 0")
    e("s_branch ATT")
    gen_ffn(e)
    gen_att(e)
    e("K1_end:")
    return kernel("k1_kernel", e.text(), vgpr=256, accum=256, agpr=256, sgpr=80)
```

```python
from asmgen import *
from gen_common import *

S_X = 8; S_OUT = 12; S_DBG = 16; S_WS = 20; S_WPHI = 28
S_WAVE = 24; S_RB64 = 25; S_CG = 26; S_HEAD = 27; S_RB256 = 32
VL = 255
LDS_PHI = 86016
LDS_KV = 0
DEPTH = 6

def gen_k2():
    e = Em()
    e("s_cmp_ge_u32 s2, 256"); e("s_cbranch_scc1 K2_end")
    e(f"s_load_dwordx2 s[4:5], s[0:1], {KA_X}"); e(f"s_load_dwordx2 s[6:7], s[0:1], {KA_WS}")
    e(f"s_load_dwordx2 s[34:35], s[0:1], {KA_OUT}"); e(f"s_load_dwordx2 s[36:37], s[0:1], {KA_DBG}"); e(f"s_load_dwordx2 s[38:39], s[0:1], {KA_WPHI}")
    e("v_lshrrev_b32 v1, 6, v0"); e(f"v_and_b32 v{VL}, 63, v0"); e(f"v_readfirstlane_b32 s{S_WAVE}, v1")
    e("s_and_b32 s40, s2, 7"); e("s_lshr_b32 s41, s2, 3")
    e("s_lshr_b32 s42, s40, 1"); e("s_lshl_b32 s42, s42, 3"); e("s_lshr_b32 s43, s41, 2"); e(f"s_add_u32 s{S_RB64}, s42, s43")
    e("s_and_b32 s42, s40, 1"); e("s_lshl_b32 s42, s42, 2"); e("s_and_b32 s43, s41, 3"); e(f"s_add_u32 s{S_CG}, s42, s43")
    e("s_lshl_b32 s42, s40, 2"); e("s_and_b32 s43, s41, 3"); e(f"s_add_u32 s{S_HEAD}, s42, s43"); e(f"s_lshr_b32 s{S_RB256}, s2, 5")
    e("s_waitcnt lgkmcnt(0)")
    srd(e, S_X, 4, 2048*1280); srd(e, S_WS, 6, WS_BYTES); srd(e, S_OUT, 34, 2048*1280); srd(e, S_DBG, 36, 256); srd(e, S_WPHI, 38, 32*800)
    WS = f"s[{S_WS}:{S_WS+3}]"
    e(f"v_and_b32 v200, 15, v{VL}"); e(f"v_lshrrev_b32 v201, 4, v{VL}")
    e(f"v_lshlrev_b32 v202, 5, v{VL}"); e(f"v_lshlrev_b32 v203, 3, v{VL}")
    e(f"s_lshl_b32 s40, s{S_WAVE}, 1")
    for pp in range(2):
        e(f"s_add_u32 s41, s40, {pp}"); e("s_lshl_b32 s41, s41, 5"); e(f"s_add_u32 s41, s41, s{S_HEAD}"); e("s_mul_i32 s41, s41, 5120"); e(f"s_add_u32 s41, s41, {OFF_KVP}")
        for dt in range(2):
            b = pp*24 + dt*12
            if dt == 1: e("s_add_u32 s41, s41, 2560")
            e(f"buffer_load_dwordx4 v[{b}:{b+3}], v202, {WS}, s41 offen")
            e(f"buffer_load_dwordx4 v[{b+4}:{b+7}], v202, {WS}, s41 offen offset:16")
            e(f"buffer_load_dwordx2 v[{b+8}:{b+9}], v203, {WS}, s41 offen offset:2048")
    e("v_lshlrev_b32 v204, 4, v200"); e("v_min_u32 v205, 2, v201"); e("v_lshlrev_b32 v205, 8, v205"); e("v_add_u32 v205, v205, v204")
    e(f"s_lshl_b32 s41, s{S_HEAD}, 7"); e(f"s_lshl_b32 s42, s{S_RB256}, 4"); e("s_add_u32 s41, s41, s42"); e(f"s_lshl_b32 s42, s{S_WAVE}, 2"); e("s_add_u32 s41, s41, s42")
    e("s_mul_i32 s41, s41, 768"); e(f"s_add_u32 s41, s41, {OFF_QF}")
    for i in range(4):
        e(f"buffer_load_dwordx4 v[{48+4*i}:{51+4*i}], v205, {WS}, s41 offen offset:{i*768}")
    e(f"v_lshlrev_b32 v207, 4, v{VL}")
    e(f"s_cmp_eq_u32 s{S_WAVE}, 0"); e("s_cbranch_scc0 K2_nophi")
    e(f"s_mul_i32 s41, s{S_HEAD}, 800"); e(f"s_mov_b32 m0, {LDS_PHI}")
    e("s_mov_b32 exec_hi, 0x3ffff")
    e(f"buffer_load_dwordx4 v207, s[{S_WPHI}:{S_WPHI+3}], s41 offen lds")
    e("s_mov_b64 exec, -1")
    e("K2_nophi:")
    e("v_mov_b32 v208, 0"); e("v_mov_b32 v209, 0"); e("v_mov_b32 v210, 0"); e("v_mov_b32 v211, 0")
    e(f"v_add_u32 v207, {LDS_PHI+800}, v207")
    e("s_mov_b32 exec_hi, 0x3")
    e("ds_write_b128 v207, v[208:211]")
    e("s_mov_b64 exec, -1")
    e("s_mov_b32 s43, 0xCCCD")
    e(f"s_lshl_b32 s41, s{S_RB64}, 6"); e(f"s_lshl_b32 s42, s{S_WAVE}, 4"); e("s_add_u32 s41, s41, s42")
    e(f"s_mul_i32 s44, s{S_CG}, 160")
    for it in range(5):
        e(f"v_add_u32 v212, {it*64}, v{VL}"); e("v_mul_lo_u32 v213, v212, s43"); e("v_lshrrev_b32 v213, 20, v213")
        e("v_mul_u32_u24 v214, 20, v213"); e("v_sub_u32 v214, v212, v214")
        e("v_add_u32 v215, s41, v213"); e("v_mul_u32_u24 v215, 1280, v215"); e("v_lshlrev_b32 v216, 3, v214"); e("v_add_u32 v215, v215, v216"); e(f"v_add_u32 v{74+it}, s44, v215")
        e("v_add_u32 v215, s42, v213"); e("v_mul_u32_u24 v215, 336, v215"); e("v_lshlrev_b32 v216, 4, v214"); e(f"v_add_u32 v{79+it}, v215, v216")
        e(f"buffer_load_dwordx2 v[{64+2*it}:{65+2*it}], v{74+it}, s[{S_X}:{S_X+3}], 0 offen")
    e("s_waitcnt vmcnt(9)")
    for k in range(0, 24, 2):
        if k % 12 < 10: e(f"v_pk_add_f32 v[{k}:{k+1}], v[{k}:{k+1}], v[{24+k}:{25+k}]")
    e(f"v_mul_u32_u24 v217, 48, v{VL}"); e(f"s_mul_i32 s41, s{S_WAVE}, 6144"); e("v_add_u32 v217, s41, v217")
    for dt in range(2):
        for k in range(3):
            e(f"ds_write_b128 v217, v[{dt*12+4*k}:{dt*12+4*k+3}] offset:{dt*3072+16*k}")
    e("s_waitcnt vmcnt(0) lgkmcnt(0)")
    e("s_barrier")
    e(f"v_mul_u32_u24 v218, 48, v{VL}")
    e("v_and_b32 v219, 1, v200"); e("v_and_b32 v220, 2, v200"); e("v_lshlrev_b32 v220, 1, v220"); e("v_add_u32 v219, v219, v220"); e("v_add_u32 v219, 2, v219")
    e("v_lshlrev_b32 v220, 4, v201"); e("v_add_u32 v219, v219, v220"); e("v_mul_u32_u24 v219, 48, v219"); e("v_add_u32 v219, 3072, v219")
    e("v_add_u32 v220, 10, v220"); e("v_mul_u32_u24 v220, 48, v220"); e("v_add_u32 v220, 3072, v220")
    for tl, av in enumerate((218, 219, 220)):
        D = 84 + 12*tl
        for w in range(4):
            T = D if w == 0 else 120 + 12*(w-1)
            for k in range(3):
                e(f"ds_read_b128 v[{T+4*k}:{T+4*k+3}], v{av} offset:{w*6144+16*k}")
        e("s_waitcnt lgkmcnt(0)")
        for w in range(1, 4):
            for k in range(0, 10, 2):
                e(f"v_pk_add_f32 v[{D+k}:{D+k+1}], v[{D+k}:{D+k+1}], v[{120+12*(w-1)+k}:{120+12*(w-1)+k+1}]")
    AK = 160
    for tl in range(3):
        D = 84 + 12*tl
        for k in range(4): e(f"v_cvt_pk_bf16_f32 v{AK+tl*8+k}, v{D+2*k}, v{D+2*k+1}")
        e(f"v_cvt_pk_bf16_f32 v{AK+tl*8+4}, v{D+8}, v{D+9}")
        for k in range(5, 8): e(f"v_mov_b32 v{AK+tl*8+k}, 0")
    AP = 184
    e("v_lshrrev_b32 v221, 2, v200"); e("v_mul_u32_u24 v221, 5, v221"); e("v_and_b32 v222, 3, v200"); e("v_add_u32 v222, v222, v221"); e("v_add_u32 v223, 4, v221")
    e("v_mul_u32_u24 v221, 320, v201")
    e("v_lshlrev_b32 v222, 1, v222"); e("v_add_u32 v222, v222, v221"); e(f"v_add_u32 v222, {LDS_PHI}, v222")
    e("v_lshlrev_b32 v223, 1, v223"); e("v_add_u32 v223, v223, v221"); e(f"v_add_u32 v223, {LDS_PHI}, v223")
    for tl, av in enumerate((222, 223)):
        for u in range(8):
            e(f"ds_read_u16 v{120+tl*8+u}, v{av} offset:{u*40}")
    e("s_waitcnt lgkmcnt(0)")
    for tl in range(2):
        for k in range(4):
            e(f"v_lshl_or_b32 v{AP+tl*4+k}, v{120+tl*8+2*k+1}, 16, v{120+tl*8+2*k}")
    e(f"s_mul_i32 s41, s{S_HEAD}, 5")
    for dst, gsrc in ((224, "v201"), (225, None)):
        if gsrc: e(f"v_add_u32 v226, s41, {gsrc}")
        else: e("s_add_u32 s42, s41, 4"); e("v_mov_b32 v226, s42")
        e("v_lshrrev_b32 v227, 3, v226"); e("v_lshlrev_b32 v227, 12, v227")
        e("v_and_b32 v228, 3, v226"); e("v_lshlrev_b32 v228, 8, v228"); e("v_add_u32 v227, v227, v228")
        e("v_lshrrev_b32 v228, 2, v226"); e("v_and_b32 v228, 1, v228"); e("v_lshlrev_b32 v228, 3, v228"); e("v_add_u32 v227, v227, v228")
        e("v_lshlrev_b32 v228, 4, v200"); e(f"v_add_u32 v{dst}, v227, v228")
    P = 0; EM = 8
    for i in range(4):
        B = 48 + 4*i
        e(f"v_mfma_f32_16x16x32_bf16 v[0:3], v[{AP}:{AP+3}], v[{B}:{B+3}], 0")
        e(f"v_mfma_f32_16x16x32_bf16 v[4:7], v[{AP+4}:{AP+7}], v[{B}:{B+3}], 0")
        e("v_max3_f32 v16, v0, v1, v2"); e("v_max3_f32 v16, v16, v3, v4")
        e("v_min3_f32 v17, v0, v1, v2"); e("v_min3_f32 v17, v17, v3, v4")
        for sw in ("v_permlane16_swap_b32", "v_permlane32_swap_b32"):
            e("v_mov_b32 v18, v16"); e("v_mov_b32 v19, v17")
            e(f"{sw} v16, v18"); e(f"{sw} v17, v19")
            e("v_max_f32 v16, v16, v18"); e("v_min_f32 v17, v17, v19")
        e(f"v_mul_f32 v16, {-LOG2E!r}, v16"); e(f"v_mul_f32 v17, {LOG2E!r}, v17")
        e(f"v_mov_b32 v20, {LOG2E!r}")
        for k in range(5):
            e(f"v_fma_f32 v{EM+k}, -v{k}, v20, v17")
        for k in range(5):
            e(f"v_fma_f32 v{k}, v{k}, v20, v16")
        for k in range(5): e(f"v_exp_f32 v{k}, v{k}")
        for k in range(5): e(f"v_exp_f32 v{EM+k}, v{EM+k}")
        e("v_add_f32 v16, v0, v1"); e("v_add_f32 v17, v8, v9")
        e("v_add_f32 v16, v16, v2"); e("v_add_f32 v17, v17, v10")
        e("v_add_f32 v16, v16, v3"); e("v_add_f32 v17, v17, v11")
        e("v_add_f32 v16, v16, v4"); e("v_add_f32 v17, v17, v12")
        for sw in ("v_permlane16_swap_b32", "v_permlane32_swap_b32"):
            e("v_mov_b32 v18, v16"); e("v_mov_b32 v19, v17")
            e(f"{sw} v16, v18"); e(f"{sw} v17, v19")
            e("v_add_f32 v16, v16, v18"); e("v_add_f32 v17, v17, v19")
        e("v_rcp_f32 v16, v16"); e("v_rcp_f32 v17, v17")
        for k in range(5): e(f"v_mul_f32 v{k}, v{k}, v16")
        for k in range(5): e(f"v_mul_f32 v{EM+k}, v{EM+k}, v17")
        e("v_cvt_pk_bf16_f32 v24, v0, v1"); e("v_cvt_pk_bf16_f32 v25, v2, v3"); e("v_cvt_pk_bf16_f32 v26, v4, v8"); e("v_cvt_pk_bf16_f32 v27, v9, v10")
        e("v_cvt_pk_bf16_f32 v28, v11, v12"); e("v_mov_b32 v29, 0"); e("v_mov_b32 v30, 0"); e("v_mov_b32 v31, 0")
        for tl in range(3):
            d = 32 + 4*tl
            e(f"v_mfma_f32_16x16x32_bf16 v[{d}:{d+3}], v[{AK+tl*8}:{AK+tl*8+3}], v[24:27], 0")
        for tl in range(3):
            d = 32 + 4*tl
            e(f"v_mfma_f32_16x16x32_bf16 v[{d}:{d+3}], v[{AK+tl*8+4}:{AK+tl*8+7}], v[28:31], v[{d}:{d+3}]")
        e(f"v_add_f32 v40, {1e-6!r}, v40"); e("v_rcp_f32 v40, v40")
        for k in range(8): e(f"v_mul_f32 v{32+k}, v{32+k}, v40")
        e("v_cvt_pk_bf16_f32 v32, v32, v33"); e("v_cvt_pk_bf16_f32 v33, v34, v35"); e("v_cvt_pk_bf16_f32 v36, v36, v37"); e("v_cvt_pk_bf16_f32 v37, v38, v39")
        e(f"s_lshl_b32 s41, s{S_RB256}, 2"); e(f"s_add_u32 s41, s41, s{S_WAVE}"); e("s_mul_i32 s41, s41, 68"); e("s_add_u32 s41, s41, 48"); e("s_lshl_b32 s41, s41, 12"); e(f"s_add_u32 s41, s41, {OFF_ACT + i*1024}")
        e(f"buffer_store_dwordx2 v[32:33], v224, {WS}, s41 offen sc1")
        e("s_mov_b64 exec, 0xffff")
        e(f"buffer_store_dwordx2 v[36:37], v225, {WS}, s41 offen sc1")
        e("s_mov_b64 exec, -1")
    e("s_waitcnt vmcnt(0)")
    e("s_barrier")
    e(f"s_cmp_eq_u32 s{S_WAVE}, 0"); e("s_cbranch_scc0 K2_noflag")
    e(f"s_lshl_b32 s41, s{S_RB256}, 2"); e("v_mov_b32 v1, s41"); e("v_mov_b32 v2, 1")
    e("s_mov_b64 exec, 1")
    e(f"buffer_atomic_add v2, v1, s[{S_DBG}:{S_DBG+3}], 0 offen")
    e("s_mov_b64 exec, -1")
    e("K2_noflag:")
    e(f"v_lshlrev_b32 v200, 4, v{VL}"); e("v_add_u32 v201, 4096, v200")
    e(f"s_mul_i32 s44, s{S_RB64}, 68"); e("s_lshl_b32 s44, s44, 12"); e(f"s_add_u32 s44, s44, {OFF_ACT}")
    e(f"s_mul_i32 s45, s{S_CG}, {68*5*1024}"); e(f"s_add_u32 s45, s45, {OFF_WF}")
    e(f"s_mul_i32 s46, s{S_WAVE}, {12*4096}"); e("s_add_u32 s46, s46, s44")
    e(f"s_mul_i32 s47, s{S_WAVE}, {12*5120}"); e("s_add_u32 s47, s47, s45")
    e(f"s_mul_i32 s48, s{S_WAVE}, {5*4096}"); e("s_add_u32 s48, s48, s44"); e(f"s_add_u32 s48, s48, {48*4096}")
    e(f"s_mul_i32 s49, s{S_WAVE}, {5*5120}"); e("s_add_u32 s49, s49, s45"); e(f"s_add_u32 s49, s49, {48*5120}")
    for i in range(80): e(f"v_mov_b32 v{i+84}, 0")
    ACC = 84
    def issue(k, sa, sw_, mods=""):
        st = (k % DEPTH)*36
        for ti in range(4):
            e(f"buffer_load_dwordx4 a[{st+4*ti}:{st+4*ti+3}], v200, {WS}, s{sa} offen offset:{ti*1024}{mods}")
        for ft in range(4):
            e(f"buffer_load_dwordx4 a[{st+16+4*ft}:{st+16+4*ft+3}], v200, {WS}, s{sw_} offen offset:{ft*1024}")
        e(f"buffer_load_dwordx4 a[{st+32}:{st+35}], v201, {WS}, s{sw_} offen")
        e(f"s_add_u32 s{sa}, s{sa}, 4096"); e(f"s_add_u32 s{sw_}, s{sw_}, 5120")
    def compute(k):
        st = (k % DEPTH)*36
        for ti in range(4):
            for ft in range(5):
                a = ACC + (ti*5+ft)*4
                e(f"v_mfma_f32_16x16x32_bf16 v[{a}:{a+3}], a[{st+16+4*ft}:{st+16+4*ft+3}], a[{st+4*ti}:{st+4*ti+3}], v[{a}:{a+3}]")
    for k in range(DEPTH): issue(k, 46, 47)
    for k in range(12):
        nout = min(DEPTH-1, 11-k)
        e(f"s_waitcnt vmcnt({nout*9})")
        compute(k)
        if k + DEPTH < 12: issue(k+DEPTH, 46, 47)
    e(f"s_lshr_b32 s41, s{S_RB64}, 2"); e("s_lshl_b32 s41, s41, 2"); e("v_mov_b32 v1, s41")
    e("s_mov_b32 s50, 0")
    e("K2_poll:")
    e(f"buffer_load_dword v2, v1, s[{S_DBG}:{S_DBG+3}], 0 offen sc1")
    e("s_waitcnt vmcnt(0)")
    e("v_readfirstlane_b32 s42, v2")
    e("s_cmp_ge_u32 s42, 32"); e("s_cbranch_scc1 K2_go")
    e("s_add_u32 s50, s50, 1"); e("s_cmp_ge_u32 s50, 0x40000"); e("s_cbranch_scc1 K2_go")
    e("s_sleep 2"); e("s_branch K2_poll")
    e("K2_go:")
    for k in range(5): issue(12+k, 48, 49, " sc1")
    for k in range(5):
        e(f"s_waitcnt vmcnt({(4-k)*9})")
        compute(12+k)
    e("s_barrier")
    e(f"v_and_b32 v202, 15, v{VL}"); e(f"v_lshrrev_b32 v203, 4, v{VL}")
    e("v_mul_u32_u24 v202, 336, v202"); e("v_lshlrev_b32 v203, 4, v203"); e("v_add_u32 v202, v202, v203")
    e(f"s_mul_i32 s41, s{S_WAVE}, 21504"); e("v_add_u32 v202, s41, v202")
    for ti in range(4):
        for ft in range(5):
            a = ACC + (ti*5+ft)*4
            e(f"ds_write_b128 v202, v[{a}:{a+3}] offset:{ti*16*336 + ft*64}")
    e("s_waitcnt lgkmcnt(0)"); e("s_barrier")
    for it in range(5):
        for w in range(4):
            e(f"ds_read_b128 v[{4*w}:{4*w+3}], v{79+it} offset:{w*21504}")
        e("s_waitcnt lgkmcnt(0)")
        for w in range(1, 4):
            e(f"v_pk_add_f32 v[0:1], v[0:1], v[{4*w}:{4*w+1}]"); e(f"v_pk_add_f32 v[2:3], v[2:3], v[{4*w+2}:{4*w+3}]")
        x0 = 64+2*it
        e(f"v_lshlrev_b32 v16, 16, v{x0}"); e(f"v_and_b32 v17, 0xffff0000, v{x0}"); e(f"v_lshlrev_b32 v18, 16, v{x0+1}"); e(f"v_and_b32 v19, 0xffff0000, v{x0+1}")
        e("v_pk_add_f32 v[0:1], v[0:1], v[16:17]"); e("v_pk_add_f32 v[2:3], v[2:3], v[18:19]")
        e("v_cvt_pk_bf16_f32 v20, v0, v1"); e("v_cvt_pk_bf16_f32 v21, v2, v3")
        e(f"buffer_store_dwordx2 v[20:21], v{74+it}, s[{S_OUT}:{S_OUT+3}], 0 offen")
    e("K2_end:")
    return kernel("k2_kernel", e.text(), vgpr=256, accum=256, agpr=256, sgpr=80)
```

```python
import sys
from asmgen import *
from gen_common import *
from k0 import gen_k0
from k1 import gen_k1
if __name__ == "__main__":
    out = sys.argv[1] if len(sys.argv) > 1 else "full.s"
    ks = [("k0_kernel", 256, 256, 24576), ("k1_kernel", 256, 256, 163840)]
    s = header(ks) + gen_k0() + gen_k1()
    try:
        from k2 import gen_k2
        ks.append(("k2_kernel", 256, 256, 98304))
        s = header(ks) + gen_k0() + gen_k1() + gen_k2()
    except ImportError:
        pass
    open(out, "w").write(s)
```

```python
import re

KNAME = "parallel_sum__linear_kernel_hedgehog__swiglu_ffn__prompt"

TRANS = ("v_exp_f32", "v_log_f32", "v_rcp_f32", "v_rsq_f32", "v_sqrt_f32", "v_sin_f32", "v_cos_f32")

reg_re = re.compile(r"\b([vas])(\d+)\b|\b([vas])\[(\d+):(\d+)\]")

def regs_of(op):
    out = []
    op = op.strip()
    for m in reg_re.finditer(op):
        if m.group(1):
            out.append((m.group(1), int(m.group(2))))
        else:
            for i in range(int(m.group(4)), int(m.group(5)) + 1):
                out.append((m.group(3), i))
    if re.search(r"\bvcc\b", op): out += [("s", 106), ("s", 107)]
    if re.search(r"\bm0\b", op): out += [("s", 124)]
    if re.search(r"\bexec\b", op): out += [("s", 126), ("s", 127)]
    return out

class Ins:
    __slots__ = ("text", "op", "dst", "src", "kind", "srcC", "srcAB", "nstates", "comment")
    def __init__(self, text):
        self.text = text
        t = text.split(";")[0].strip()
        self.kind = "other"; self.dst = []; self.src = []; self.srcC = []; self.srcAB = []; self.nstates = 1
        if not t or t.endswith(":") or t.startswith("."):
            self.op = ""; self.kind = "label" if t.endswith(":") else "none"; self.nstates = 0
            return
        parts = t.split(None, 1)
        self.op = parts[0]
        args = parts[1] if len(parts) > 1 else ""
        ops = [a.strip() for a in re.split(r",(?![^\[]*\])", args)] if args else []
        op = self.op
        if op == "s_nop":
            self.kind = "nop"; self.nstates = int(ops[0], 0) + 1; return
        if op.startswith("v_mfma"):
            self.kind = "mfma"
            self.dst = regs_of(ops[0]); self.srcAB = regs_of(ops[1]) + regs_of(ops[2]); self.srcC = regs_of(ops[3].split()[0])
            self.src = self.srcAB + self.srcC
            return
        if op.startswith("buffer_") or op.startswith("global_"):
            self.kind = "vmem"
            lastmods = ops[-1] if ops else ""
            is_lds = bool(re.search(r"\blds\b", t))
            if "load" in op and not is_lds:
                self.dst = regs_of(ops[0]); self.src = [r for o in ops[1:] for r in regs_of(o)]
            elif "atomic" in op:
                self.src = [r for o in ops for r in regs_of(o)]
                if re.search(r"\bsc0\b", t): self.dst = regs_of(ops[0])
            else:
                self.src = [r for o in ops for r in regs_of(o)]
                if is_lds: self.src += [("s", 124)]; self.kind = "vmem_lds"
            if "store" in op: self.kind = "vmem_store"
            return
        if op.startswith("ds_"):
            self.kind = "ds"
            if op.startswith("ds_read") or op.startswith("ds_bpermute") or op.startswith("ds_swizzle") or op.startswith("ds_permute") or "rtn" in op:
                self.dst = regs_of(ops[0]); self.src = [r for o in ops[1:] for r in regs_of(o)]
            else:
                self.src = [r for o in ops for r in regs_of(o)]
            return
        if op.startswith("v_"):
            self.kind = "valu"
            if op.startswith("v_cmp"):
                self.dst = regs_of(ops[0]); self.src = [r for o in ops[1:] for r in regs_of(o)]
            elif op.startswith("v_readfirstlane") or op.startswith("v_readlane"):
                self.dst = regs_of(ops[0]); self.src = [r for o in ops[1:] for r in regs_of(o)]
            elif op.startswith("v_permlane") and "swap" in op:
                self.dst = regs_of(ops[0]) + regs_of(ops[1]); self.src = list(self.dst)
            elif op.startswith("v_add_co") or op.startswith("v_sub_co") or op.startswith("v_addc_co") or op.startswith("v_subb_co"):
                self.dst = regs_of(ops[0]) + regs_of(ops[1]); self.src = [r for o in ops[2:] for r in regs_of(o)]
            else:
                self.dst = regs_of(ops[0]); self.src = [r for o in ops[1:] for r in regs_of(o)]
                if op.startswith("v_fmac") or op.startswith("v_dot2c") or op.startswith("v_writelane"):
                    self.src += self.dst
                if op.startswith("v_cndmask") and len(ops) == 3:
                    self.src += [("s", 106), ("s", 107)]
            return
        if op.startswith("s_"):
            self.kind = "salu"
            if op.startswith("s_cmp") or op.startswith("s_cbranch") or op.startswith("s_branch") or op in ("s_barrier", "s_waitcnt", "s_endpgm", "s_setprio", "s_sleep", "s_bitcmp1_b32", "s_bitcmp0_b32"):
                self.src = [r for o in ops for r in regs_of(o)]
                if op.startswith("s_cbranch") or op.startswith("s_branch"): self.kind = "branch"
            else:
                self.dst = regs_of(ops[0]) if ops else []; self.src = [r for o in ops[1:] for r in regs_of(o)]
                if "saveexec" in op: self.dst += [("s", 126), ("s", 127)]
            return

def is_dpp(t): return "dpp" in t or "row_" in t or "quad_perm" in t

def insert_nops(lines):
    out = []
    hist = []
    pos = 0
    def need(req_pos):
        nonlocal pos
        gap = req_pos - pos
        if gap > 0:
            n = gap
            while n > 0:
                k = min(n, 16)
                out.append(f"s_nop {k-1}")
                n -= k
            pos += gap
    for text in lines:
        for sub in text.split("\n"):
            ins = Ins(sub)
            if ins.kind in ("label", "none"):
                out.append(sub); continue
            req = pos
            S = set(ins.src); D = set(ins.dst)
            for (p, ppos) in reversed(hist):
                d = pos - ppos
                if pos - ppos > 24: break
                end = ppos + p.nstates
                def rq(n):
                    return end + n
                PD = set(p.dst)
                if p.kind == "valu":
                    vw = {r for r in PD if r[0] in "va"}
                    sw = {r for r in PD if r[0] == "s"}
                    if ins.kind == "mfma" and vw & S: req = max(req, rq(2))
                    if ins.kind == "valu":
                        if p.op in TRANS or p.op.replace("_e32", "").replace("_e64", "") in TRANS:
                            if vw & S and ins.op not in TRANS: req = max(req, rq(1))
                            if vw & S and ins.op in TRANS: req = max(req, rq(1))
                        if ins.op.startswith("v_permlane") and vw & S: req = max(req, rq(2))
                        if (ins.op.startswith("v_readlane") or ins.op.startswith("v_readfirstlane")) and vw & S: req = max(req, rq(1))
                        if is_dpp(ins.text) and vw & S: req = max(req, rq(2))
                        if sw & S: req = max(req, rq(2))
                        if (ins.op.startswith("v_readlane") or ins.op.startswith("v_writelane")) and sw & S: req = max(req, rq(4))
                        if ("opsel" in p.text or "op_sel:" in p.text or "sdwa" in p.text) and vw & S: req = max(req, rq(1))
                    if p.op.startswith("v_dot"):
                        if ins.op != p.op and vw & (S | D): req = max(req, rq(3))
                        if ins.op == p.op and vw & (S - D): req = max(req, rq(3))
                    if ins.kind in ("vmem", "vmem_lds", "vmem_store") and sw & S: req = max(req, rq(5))
                    if ins.kind in ("salu", "branch") and sw & S: req = max(req, rq(1))
                    if ("s", 126) in PD and ins.kind == "mfma": req = max(req, rq(4))
                if p.kind == "mfma":
                    if ins.kind == "mfma":
                        if PD & set(ins.srcAB): req = max(req, rq(8))
                        c = set(ins.srcC)
                        if PD & c and c != PD: req = max(req, rq(6))
                        if PD & D and not (PD == D and c == PD):
                            if not (PD & c): req = max(req, rq(6))
                    else:
                        if PD & (S | D) and ins.kind in ("valu", "vmem", "vmem_lds", "vmem_store", "ds"): req = max(req, rq(8))
                        if ins.kind == "valu" and set(p.srcC) & D: req = max(req, rq(3))
                if p.kind == "salu":
                    if ("s", 124) in PD and ins.kind == "vmem_lds": req = max(req, rq(1))
                if p.kind in ("vmem_store",) and ("x4" in p.op or "x3" in p.op):
                    data = set(r for r in p.src if r[0] in "va")
                    if ins.kind == "valu" and data & D: req = max(req, rq(2))
                    elif ins.kind in ("vmem", "ds", "mfma") and data & D: req = max(req, rq(1))
                if p.kind == "ds" and (p.op.startswith("ds_write_b128") or p.op.startswith("ds_write_b96")):
                    data = set(r for r in p.src if r[0] in "va")
                    if ins.kind == "valu" and data & D: req = max(req, rq(2))
            need(req)
            out.append(sub)
            hist.append((ins, pos))
            pos += ins.nstates
            if len(hist) > 64: hist = hist[-48:]
    return out

class Em:
    def __init__(self):
        self.l = []
        self.n = 0
    def __call__(self, s):
        for sub in s.split("\n"):
            m = re.search(r"offset:(\d+)", sub)
            if m:
                v = int(m.group(1))
                if sub.strip().startswith("buffer_"): assert v <= 4095, sub
                if sub.strip().startswith("ds_"): assert v <= 65535, sub
        self.l.append(s)
    def label(self, base="L"):
        self.n += 1
        return f"{base}_{id(self) % 9973}_{self.n}"
    def text(self):
        return "\n".join(insert_nops(self.l))

def header(launches):
    s = ""
    if len(launches) == 1 and launches[0][0] == KNAME + "_kernel":
        n, g, b, l = launches[0]
        s += f"; @launch grid=({g},1,1) block=({b},1,1) lds={l}\n"
    else:
        for n, g, b, l in launches:
            s += f"; @launch kernel={n} grid=({g},1,1) block=({b},1,1) lds={l}\n"
    s += '.amdgcn_target "amdgcn-amd-amdhsa--gfx950"\n'
    return s

def kernel(name, body, vgpr=256, sgpr=102, accum=None, agpr=0):
    if accum is None:
        accum = (vgpr + 3) // 4 * 4
    nfv = accum + agpr if agpr else vgpr
    return f""".text
.globl {name}
.p2align 8
.type {name},@function
{name}:
{body}
s_endpgm
.section .rodata,"a"
.p2align 6
.amdhsa_kernel {name}
  .amdhsa_next_free_vgpr {nfv}
  .amdhsa_next_free_sgpr {sgpr}
  .amdhsa_accum_offset {accum}
  .amdhsa_group_segment_fixed_size 0
  .amdhsa_kernarg_size 88
  .amdhsa_user_sgpr_count 2
  .amdhsa_user_sgpr_kernarg_segment_ptr 1
  .amdhsa_system_sgpr_workgroup_id_x 1
.end_amdhsa_kernel
"""

class Vm:
    def __init__(self, e):
        self.e = e; self.q = []
    def issue(self, text, tag, cond=False):
        self.e(text); self.q.append((tag, cond))
    def note(self, tag, cond=False):
        self.q.append((tag, cond))
    def wait(self, tags, extra=""):
        if isinstance(tags, str): tags = [tags]
        last = -1
        for i, (t, c) in enumerate(self.q):
            if t in tags: last = i
        if last < 0:
            if extra: self.e(f"s_waitcnt {extra}")
            return
        n = sum(1 for (t, c) in self.q[last+1:] if not c)
        n = min(n, 63)
        self.e(f"s_waitcnt vmcnt({n}) {extra}".strip())
        self.q = self.q[last+1:]
    def waitall(self, extra=""):
        self.e(f"s_waitcnt vmcnt(0) {extra}".strip()); self.q = []
    def count(self): return len(self.q)
```

```python
OFF_STATS = 0
OFF_CS = 0x4000
OFF_WF = 0x20000
OFF_ACT = 0x300000
OFF_QF = 0xC00000
OFF_KVP = 0xF80000
OFF_FLAG = 0x1100000
WS_BYTES = 268435456
KA_X, KA_WQKV, KA_WPHI, KA_WO, KA_BX, KA_WG, KA_WU, KA_WD, KA_OUT, KA_DBG, KA_WS = [8*i for i in range(11)]
LOG2E = 1.4426950408889634

def srd(e, sreg, ptr_lo, nbytes):
    e(f"s_mov_b32 s{sreg}, s{ptr_lo}")
    e(f"s_and_b32 s{sreg+1}, s{ptr_lo+1}, 0xffff")
    e(f"s_mov_b32 s{sreg+2}, {nbytes}")
    e(f"s_mov_b32 s{sreg+3}, 0x20000")

def udiv_const(e, dst, src, d):
    magic = (1 << 32) // d + 1
    e(f"s_mul_hi_u32 s{dst}, s{src}, {magic}")

import os
STAMPS = int(os.environ.get("STAMPS", "0"))
OFF_TS = 0x2000000
STAMP_BASE = [64]
def stamp(e, idx, force=False):
    if not STAMPS: return
    if STAMPS == 2 and not force: return
    e("s_memrealtime s[100:101]")
    e("s_waitcnt lgkmcnt(0)")
    e(f"s_mov_b32 s{STAMP_BASE[0]+idx}, s100")
def stamp_flush_part(e, kern, idxs, ws_srd, wave_s, wave, vtmp):
    if not STAMPS: return
    lab = e.label("TSF")
    e(f"s_cmp_eq_u32 s{wave_s}, {wave}"); e(f"s_cbranch_scc0 {lab}")
    e(f"s_lshl_b32 s100, s2, 6"); e(f"s_add_u32 s100, s100, {OFF_TS + kern*256*64}")
    e("s_mov_b64 exec, 1")
    e(f"v_mov_b32 v{vtmp+1}, 0")
    for i in idxs:
        e(f"v_mov_b32 v{vtmp}, s{STAMP_BASE[0]+i}")
        e(f"buffer_store_dword v{vtmp}, v{vtmp+1}, s[{ws_srd}:{ws_srd+3}], s100 offen offset:{4*i}")
    e("s_mov_b64 exec, -1")
    e(f"{lab}:")
def stamp_flush(e, kern, n, ws_srd, wave_s, vtmp=250):
    stamp_flush_part(e, kern, list(range(n)), ws_srd, wave_s, 0, vtmp)
```

```python
from asmgen import *
from gen_common import *
import os

SLOT = 53248
NST = 10
S_X = 8; S_W = 12; S_W2 = 16; S_WS = 20
S_WAVE = 24; S_RB = 25; S_CG = 26; S_T0 = 27; S_COL0 = 28; S_COL1 = 29
S_LX = 34; S_LW = 35; S_LW2 = 36; S_N = 37
S_DSLOT = 40; S_XO = 41; S_WO = 42; S_TMP = 43; S_STG = 44; S_RSLOT = 45; S_T46 = 46; S_DELTA = 47; S_M0X = 48; S_M0W = 49; S_M0W2 = 50
S_ISKV = 51; S_EXTRA = 52; S_DBG = 56
S_PTR = 4
VL = 255
POLL_STAGE = 4; CHECK_STAGE = 7; FLAG_STAGE = 1
NFLAG = 78

def zip_ratio(e, main, side):
    n, m = len(main), len(side)
    j = 0
    for i, it in enumerate(main):
        it() if callable(it) else e(it)
        while j < m and (j+1)*n <= (i+1)*m + 0:
            side[j]() if callable(side[j]) else e(side[j]); j += 1
    while j < m:
        side[j]() if callable(side[j]) else e(side[j]); j += 1

def zip2(e, a, b):
    n = max(len(a), len(b))
    for i in range(n):
        for s in (a, b):
            if i < len(s): s[i]() if callable(s[i]) else e(s[i])

def place(sched, items, f0, f1):
    M=len(sched); n=len(items)
    for k,it in enumerate(items):
        pos = int((f0 + (f1-f0)*(k+0.5)/n)*M); pos=min(max(pos,0),M-1)
        sched[pos].append(it)
def place_dma(sched, groups, f0, f1):
    M=len(sched); n=len(groups)
    for k,(m0w, ld) in enumerate(groups):
        pos = int((f0 + (f1-f0)*(k+0.5)/n)*M); pos=min(max(pos,0),M-2)
        sched[pos].append(m0w); sched[pos+1].insert(0, ld)

def adv_dma_list(wstride, two_w):
    l = [f"s_add_u32 s{S_XO}, s{S_XO}, 128", f"s_add_u32 s{S_WO}, s{S_WO}, {64*wstride}", f"s_add_u32 s{S_DSLOT}, s{S_DSLOT}, {SLOT}",
         f"s_cmp_ge_u32 s{S_DSLOT}, {3*SLOT}\ns_cselect_b32 s{S_TMP}, {3*SLOT}, 0", f"s_sub_u32 s{S_DSLOT}, s{S_DSLOT}, s{S_TMP}",
         f"s_add_u32 s{S_M0X}, s{S_DSLOT}, s{S_LX}", f"s_add_u32 s{S_M0W}, s{S_DSLOT}, s{S_LW}"]
    if two_w: l.append(f"s_add_u32 s{S_M0W2}, s{S_DSLOT}, s{S_LW2}")
    return l

def dma_init(e, two_w):
    e(f"s_mov_b32 s{S_DSLOT}, 0"); e(f"s_mov_b32 s{S_XO}, 0"); e(f"s_mov_b32 s{S_WO}, 0")
    e(f"s_mov_b32 s{S_M0X}, s{S_LX}"); e(f"s_mov_b32 s{S_M0W}, s{S_LW}")
    if two_w: e(f"s_mov_b32 s{S_M0W2}, s{S_LW2}")
def dma_full(e, dg, wstride, two_w):
    for (a,l) in dg: e(a); e(l)
    for s in adv_dma_list(wstride, two_w): e(s)

def emit_mainloop(e, name, NT, NF, XF, WF, dg, reads, bump, wstride, two_w, late_loads, n_late, is_ffn, first_extra, VP, RSPAN=0.6):
    NTOT = len(dg); half = NTOT//2; M = NT*NF
    def mfmas(setn):
        out=[]
        for tt in range(NT):
            for j in range(NF):
                a = (tt*NF+j)*4
                out.append(f"v_mfma_f32_16x16x32_bf16 v[{a}:{a+3}], a[{WF+(setn*NF+j)*4}:{WF+(setn*NF+j)*4+3}], a[{XF+(setn*NT+tt)*4}:{XF+(setn*NT+tt)*4+3}], v[{a}:{a+3}]")
        return out
    def emit(mf, sched):
        for i,m in enumerate(mf):
            e(m)
            for s in sched[i]: e(s)
    stamp(e, 1)
    e(f"v_lshlrev_b32 v{VP+1}, 7, v{VL}"); e(f"v_mov_b32 v{VP}, 0")
    for s in reads(0,0): e(s)
    e("s_waitcnt lgkmcnt(0)")
    e(f"s_mov_b32 s{S_STG}, 0"); e(f"s_mov_b32 s{S_RSLOT}, 0"); e(f"s_mov_b32 s{S_EXTRA}, {first_extra}")
    e(f"{name}_loop:")
    sched=[[] for _ in range(M)]
    place(sched, reads(1,1), 0.0, RSPAN)
    place_dma(sched, dg[half:], 0.05, 0.85)
    upd = [f"s_add_u32 s{S_T46}, s{S_RSLOT}, {SLOT}", f"s_cmp_ge_u32 s{S_T46}, {3*SLOT}\ns_cselect_b32 s{S_DELTA}, {3*SLOT}, 0", f"s_sub_u32 s{S_T46}, s{S_T46}, s{S_DELTA}",
           f"s_sub_u32 s{S_DELTA}, s{S_T46}, s{S_RSLOT}", f"s_mov_b32 s{S_RSLOT}, s{S_T46}"]
    place(sched, upd, 0.0, 0.3)
    place(sched, [f"v_add_u32 v{r}, s{S_DELTA}, v{r}" for r in bump], RSPAN+0.03, 0.98)
    adv = adv_dma_list(wstride, two_w) + [f"s_cmp_ge_u32 s{S_STG}, {NST-3}\ns_cselect_b32 s{S_TMP}, 0x40000000, 0", f"s_or_b32 s{S_XO}, s{S_XO}, s{S_TMP}", f"s_or_b32 s{S_WO}, s{S_WO}, s{S_TMP}"]
    place(sched, adv, 0.87, 1.0)
    sched[M-1].append(f"s_cmp_eq_u32 s{S_EXTRA}, 0")
    emit(mfmas(0), sched)
    e(f"s_cbranch_scc0 {name}_wx")
    e(f"s_waitcnt vmcnt({NTOT}) lgkmcnt(0)")
    e(f"{name}_w0:")
    e(f"s_cmp_eq_u32 s{S_STG}, {CHECK_STAGE}"); e(f"s_cbranch_scc1 {name}_chk")
    e(f"{name}_bar:")
    e("s_barrier")
    e(f"s_cmp_eq_u32 s{S_STG}, {POLL_STAGE}"); e(f"s_cbranch_scc1 {name}_poll")
    if is_ffn:
        e(f"s_cmp_eq_u32 s{S_STG}, {FLAG_STAGE}"); e(f"s_cbranch_scc1 {name}_flag")
    e(f"s_cmp_eq_u32 s{S_STG}, {CHECK_STAGE}"); e(f"s_cbranch_scc1 {name}_late")
    e(f"{name}_go:")
    sched=[[] for _ in range(M)]
    place(sched, reads(0,0), 0.0, RSPAN)
    place_dma(sched, dg[:half], 0.05, 0.85)
    place(sched, [f"s_add_u32 s{S_STG}, s{S_STG}, 1"], 0.93, 0.95)
    sched[M-1].append(f"s_cmp_lt_u32 s{S_STG}, {NST}")
    emit(mfmas(1), sched)
    e("s_waitcnt lgkmcnt(0)")
    e(f"s_cbranch_scc1 {name}_loop")
    e(f"s_branch {name}_done")
    e(f"{name}_wx:")
    vals = sorted(set([1, n_late] + ([first_extra] if first_extra else [])))
    for v in vals:
        lab = e.label(f"{name}_x")
        e(f"s_cmp_eq_u32 s{S_EXTRA}, {v}"); e(f"s_cbranch_scc0 {lab}")
        e(f"s_waitcnt vmcnt({min(63, NTOT+v)}) lgkmcnt(0)"); e(f"s_mov_b32 s{S_EXTRA}, 0"); e(f"s_branch {name}_w0")
        e(f"{lab}:")
    e(f"s_waitcnt vmcnt({NTOT}) lgkmcnt(0)"); e(f"s_mov_b32 s{S_EXTRA}, 0"); e(f"s_branch {name}_w0")
    e(f"{name}_chk:")
    e(f"s_cmp_eq_u32 s{S_WAVE}, 0"); e(f"s_cbranch_scc0 {name}_bar")
    e(f"s_mov_b32 s53, 0")
    e(f"{name}_chk2:")
    e("s_mov_b64 exec, 3")
    e(f"v_cmp_ne_u32 vcc, {NFLAG}, v{VP}")
    e("s_mov_b64 exec, -1")
    e("s_nop 1")
    e(f"s_cbranch_vccz {name}_bar")
    e("s_add_u32 s53, s53, 1"); e("s_cmp_ge_u32 s53, 0x40000"); e(f"s_cbranch_scc1 {name}_bar")
    e("s_sleep 8")
    e("s_mov_b64 exec, 3")
    e(f"buffer_load_dword v{VP}, v{VP+1}, s[{S_DBG}:{S_DBG+3}], 0 offen sc1")
    e("s_mov_b64 exec, -1")
    e("s_waitcnt vmcnt(0)")
    e(f"s_branch {name}_chk2")
    e(f"{name}_poll:")
    e(f"s_cmp_eq_u32 s{S_WAVE}, 0"); e(f"s_cbranch_scc0 {name}_go")
    e(f"v_lshlrev_b32 v{VP+1}, 7, v{VL}")
    e("s_mov_b64 exec, 3")
    e(f"buffer_load_dword v{VP}, v{VP+1}, s[{S_DBG}:{S_DBG+3}], 0 offen sc1")
    e("s_mov_b64 exec, -1")
    e(f"s_mov_b32 s{S_EXTRA}, 1"); e(f"s_branch {name}_go")
    if is_ffn:
        e(f"{name}_flag:")
        e(f"s_cmp_eq_u32 s{S_WAVE}, 0"); e(f"s_cbranch_scc0 {name}_go")
        e(f"s_and_b32 s53, s{S_N}, 1"); e("s_lshl_b32 s53, s53, 7"); e(f"v_mov_b32 v{VP+1}, s53"); e(f"v_mov_b32 v{VP}, 1")
        e("s_mov_b64 exec, 1")
        e(f"buffer_atomic_add v{VP}, v{VP+1}, s[{S_DBG}:{S_DBG+3}], 0 offen")
        e("s_mov_b64 exec, -1")
        e(f"s_mov_b32 s{S_EXTRA}, 1"); e(f"s_branch {name}_go")
    e(f"{name}_late:")
    late_loads()
    e(f"s_mov_b32 s{S_EXTRA}, {n_late}"); e(f"s_branch {name}_go")
    e(f"{name}_done:")
    e("s_nop 7")
    stamp(e, 2)

def x_dma_addr(e, DXA, NXD):
    e(f"v_lshrrev_b32 v200, 3, v{VL}"); e(f"v_lshrrev_b32 v201, 4, v{VL}"); e(f"v_and_b32 v202, 7, v{VL}")
    e(f"s_mul_i32 s30, s{S_WAVE}, {NXD*8}"); e(f"s_add_u32 s30, s30, s{S_T0}")
    e(f"s_mul_i32 s31, s{S_WAVE}, {NXD*4}")
    e("v_add_u32 v204, s30, v200"); e("v_mul_u32_u24 v204, 1280, v204")
    for par in range(2):
        e(f"v_add_u32 v203, {4*par}, v201"); e("v_add_u32 v203, s31, v203"); e("v_and_b32 v203, 7, v203"); e("v_xor_b32 v203, v203, v202"); e("v_lshlrev_b32 v203, 4, v203")
        e(f"v_add_u32 v{205+par}, v203, v204")
    for i in range(NXD):
        e(f"v_add_u32 v{DXA+i}, {8*i*1280}, v{205+(i&1)}")
    e(f"s_mul_i32 s{S_LX}, s{S_WAVE}, {NXD*1024}")

def x_read_addr(e, XRD, tok_off_s):
    e(f"v_and_b32 v200, 15, v{VL}"); e(f"v_lshrrev_b32 v201, 4, v{VL}")
    e("v_lshrrev_b32 v202, 1, v200"); e("v_xor_b32 v202, v202, v201"); e("v_and_b32 v202, 7, v202"); e("v_lshlrev_b32 v202, 4, v202")
    e("v_lshlrev_b32 v203, 7, v200"); e("v_add_u32 v203, v203, v202"); e(f"v_add_u32 v{XRD}, s{tok_off_s}, v203"); e(f"v_xor_b32 v{XRD+1}, 64, v{XRD}")

def x_reads(XF, NT, XRD, ks, setn):
    return [f"ds_read_b128 a[{XF+(setn*NT+tt)*4}:{XF+(setn*NT+tt)*4+3}], v{XRD+ks} offset:{tt*2048}" for tt in range(NT)]

def load_stats(e, NT, dst_v, tok0_s, tmp):
    e(f"v_and_b32 v{tmp}, 15, v{VL}"); e(f"v_add_u32 v{tmp}, s{tok0_s}, v{tmp}"); e(f"v_lshlrev_b32 v{tmp}, 3, v{tmp}")
    for tt in range(NT):
        e(f"buffer_load_dwordx2 v[{dst_v+2*tt}:{dst_v+2*tt+1}], v{tmp}, s[{S_WS}:{S_WS+3}], 0 offen offset:{OFF_STATS + tt*128} sc1")

def sentinel(e):
    e("v_mov_b32 v240, -1"); e("v_mov_b32 v241, -1"); e(f"s_lshl_b32 s30, s{S_WAVE}, 6"); e(f"v_add_u32 v242, s30, v{VL}"); e("v_lshlrev_b32 v242, 3, v242")
    e("s_lshr_b32 s30, s2, 3"); e("s_mul_i32 s30, s30, 68"); e("s_add_u32 s30, s30, 48"); e("s_lshl_b32 s30, s30, 12")
    e("s_and_b32 s31, s2, 7"); e("s_mul_i32 s31, s31, 10240"); e("s_add_u32 s30, s30, s31"); e(f"s_add_u32 s30, s30, {OFF_ACT}")
    for k in range(5):
        e(f"buffer_store_dwordx2 v[240:241], v242, s[{S_WS}:{S_WS+3}], s30 offen sc1")
        if k < 4: e("s_add_u32 s30, s30, 2048")

def gen_ffn(e):
    NT, NF = 10, 4
    XF = 0; WF = XF + 2*NT*4
    CS = 112
    XRD = 160; WRD = 162; DXA = 164; DWA = 169
    ST = 174
    VP = 194
    SOFF = 80
    e("FFN:")
    e(f"s_mul_i32 s{S_T0}, s{S_RB}, 160")
    e(f"s_load_dwordx2 s[4:5], s[0:1], {KA_WG}"); e(f"s_load_dwordx2 s[6:7], s[0:1], {KA_WU}"); e(f"s_load_dwordx2 s[60:61], s[0:1], {KA_WQKV}")
    x_dma_addr(e, DXA, 5)
    e(f"v_lshrrev_b32 v200, 4, v{VL}"); e(f"v_and_b32 v201, 15, v{VL}"); e("v_lshlrev_b32 v202, 1, v200")
    e(f"s_lshl_b32 s31, s{S_CG}, 8")
    e(f"s_lshl_b32 s32, s{S_WAVE}, 4")
    e("v_add_u32 v204, s32, v200"); e("v_mul_u32_u24 v204, 3072, v204"); e("v_add_u32 v204, s31, v204")
    for par in range(2):
        e(f"v_xor_b32 v203, {par<<3}, v202"); e("v_xor_b32 v203, v203, v201"); e("v_lshlrev_b32 v203, 4, v203"); e(f"v_add_u32 v{205+par}, v203, v204")
    for i in range(4): e(f"v_add_u32 v{DWA+i}, {4*i*3072}, v{205+((i>>1)&1)}")
    e(f"s_lshl_b32 s{S_LW}, s{S_WAVE}, 12"); e(f"s_add_u32 s{S_LW2}, s{S_LW}, {20480+16384}"); e(f"s_add_u32 s{S_LW}, s{S_LW}, 20480")
    e("s_waitcnt lgkmcnt(0)")
    srd(e, S_W, 4, 640*3072); srd(e, S_W2, 6, 640*3072)
    dg = []
    for i in range(5): dg.append((f"s_add_u32 m0, s{S_M0X}, {i*1024}", f"buffer_load_dwordx4 v{DXA+i}, s[{S_X}:{S_X+3}], s{S_XO} offen lds"))
    for i in range(4): dg.append((f"s_add_u32 m0, s{S_M0W}, {i*1024}", f"buffer_load_dwordx4 v{DWA+i}, s[{S_W}:{S_W+3}], s{S_WO} offen lds"))
    for i in range(4): dg.append((f"s_add_u32 m0, s{S_M0W2}, {i*1024}", f"buffer_load_dwordx4 v{DWA+i}, s[{S_W2}:{S_W2+3}], s{S_WO} offen lds"))
    dg = [dg[0],dg[5],dg[9],dg[1],dg[6],dg[10], dg[2],dg[7],dg[11],dg[3],dg[8],dg[12],dg[4]]
    dma_init(e, True)
    dma_full(e, dg, 3072, True)
    e(f"s_lshl_b32 s30, s{S_N}, 4"); e(f"s_lshl_b32 s31, s{S_WAVE}, 2"); e("s_add_u32 s30, s30, s31")
    e(f"v_lshrrev_b32 v200, 5, v{VL}"); e("v_add_u32 v196, s30, v200")
    e(f"v_and_b32 v197, 31, v{VL}")
    e("v_mul_u32_u24 v201, 1280, v196"); e("v_lshlrev_b32 v202, 3, v197"); e("v_add_u32 v201, v201, v202")
    e(f"s_cmp_ge_u32 s{S_N}, 128"); e("s_cselect_b32 s31, 0x40000000, 0")
    e("s_add_u32 s32, s31, 2560")
    for ps in range(2):
        for k in range(5):
            e(f"buffer_load_dwordx2 v[{ps*10+2*k}:{ps*10+2*k+1}], v201, s[{S_X}:{S_X+3}], s{31+ps} offen offset:{k*256}")
    e(f"s_lshr_b32 s30, s{S_N}, 1")
    e("s_mov_b32 s64, s60"); e("s_and_b32 s65, s61, 0xffff"); e(f"s_mov_b32 s66, {640*3840}"); e("s_mov_b32 s67, 0x20000"); e("s_mov_b32 s33, 3840"); e("s_mov_b32 s32, s30")
    e("s_cmp_ge_u32 s30, 30"); e("s_cbranch_scc0 FFN_msel")
    e("s_mov_b32 s64, s4"); e("s_and_b32 s65, s5, 0xffff"); e(f"s_mov_b32 s66, {640*3072}"); e("s_mov_b32 s33, 3072"); e("s_sub_u32 s32, s30, 30")
    e("s_cmp_ge_u32 s30, 54"); e("s_cbranch_scc0 FFN_msel")
    e("s_mov_b32 s64, s6"); e("s_and_b32 s65, s7, 0xffff"); e("s_sub_u32 s32, s30, 54")
    e("FFN_msel:")
    e(f"s_and_b32 s31, s{S_N}, 1"); e("s_mul_i32 s31, s31, 320"); e(f"s_lshl_b32 s53, s{S_WAVE}, 3"); e("s_add_u32 s31, s31, s53")
    e(f"v_lshrrev_b32 v200, 3, v{VL}"); e("v_add_u32 v200, s31, v200"); e("v_mul_lo_u32 v200, v200, s33")
    e(f"v_and_b32 v201, 7, v{VL}"); e("v_lshlrev_b32 v201, 4, v201"); e("s_lshl_b32 s32, s32, 7"); e("v_add_u32 v201, s32, v201"); e("v_add_u32 v200, v200, v201")
    e("s_lshl_b32 s33, s33, 5"); e("s_mov_b32 s31, 0")
    for k in range(10):
        e(f"buffer_load_dwordx4 v[{20+4*k}:{23+4*k}], v200, s[64:67], s31 offen")
        if k < 9: e("s_add_u32 s31, s31, s33")
    dma_full(e, dg, 3072, True)
    e(f"s_mov_b32 s30, 0")
    x_read_addr(e, XRD, 30)
    e(f"v_and_b32 v200, 15, v{VL}"); e(f"v_lshrrev_b32 v201, 4, v{VL}")
    e("v_lshrrev_b32 v202, 2, v200"); e("v_and_b32 v203, 3, v200")
    e("v_lshlrev_b32 v204, 3, v201"); e("v_add_u32 v204, v204, v202"); e("v_lshlrev_b32 v204, 8, v204")
    e("v_lshlrev_b32 v205, 1, v202"); e("v_and_b32 v206, 1, v201"); e("v_lshlrev_b32 v206, 3, v206"); e("v_or_b32 v205, v205, v206")
    e("v_lshrrev_b32 v206, 1, v203"); e(f"s_lshl_b32 s30, s{S_WAVE}, 2"); e("v_add_u32 v206, s30, v206")
    e("v_and_b32 v207, 1, v203"); e("v_lshlrev_b32 v207, 3, v207")
    for j in range(2):
        e(f"v_add_u32 v199, {2*j}, v206"); e("v_xor_b32 v199, v199, v205"); e("v_lshlrev_b32 v199, 4, v199"); e("v_add_u32 v199, v199, v207")
        e("v_add_u32 v199, v199, v204"); e(f"v_add_u32 v{WRD+j}, 20480, v199")
    e(f"s_lshl_b32 s30, s{S_CG}, 2"); e(f"s_add_u32 s30, s30, s{S_WAVE}"); e(f"s_mul_i32 s31, s{S_RB}, 10")
    for tt in range(NT):
        d = SOFF+tt
        e(f"s_add_u32 s32, s31, {tt}"); e("s_lshr_b32 s33, s32, 2"); e("s_mul_i32 s33, s33, 68"); e("s_add_u32 s33, s33, s30"); e("s_lshl_b32 s33, s33, 2")
        e("s_and_b32 s53, s32, 3"); e("s_add_u32 s33, s33, s53"); e("s_lshl_b32 s33, s33, 10"); e(f"s_add_u32 s33, s33, {OFF_ACT}")
        e("s_cmp_ge_u32 s32, 128"); e(f"s_cselect_b32 s{d}, 0x7ffffff0, s33")
    for i in range(60, 160): e(f"v_mov_b32 v{i}, 0")
    e("s_waitcnt vmcnt(13)")
    st = []
    for ps in range(2):
        a = []
        S0 = 200+2*ps; S1 = S0+1
        a.append(f"v_mov_b32 v{S0}, 0"); a.append(f"v_mov_b32 v{S1}, 0")
        for k in range(10):
            a.append(f"v_dot2c_f32_bf16 v{S0}, 0x3f803f80, v{ps*10+k}"); a.append(f"v_dot2c_f32_bf16 v{S1}, v{ps*10+k}, v{ps*10+k}")
        for sh in (1,2,4,8):
            a.append(f"v_add_f32_dpp v{S0}, v{S0}, v{S0} row_shr:{sh} row_mask:0xf bank_mask:0xf bound_ctrl:0")
            a.append(f"v_add_f32_dpp v{S1}, v{S1}, v{S1} row_shr:{sh} row_mask:0xf bank_mask:0xf bound_ctrl:0")
        a.append(f"v_add_f32_dpp v{S0}, v{S0}, v{S0} row_bcast:15 row_mask:0xa bank_mask:0xf")
        a.append(f"v_add_f32_dpp v{S1}, v{S1}, v{S1} row_bcast:15 row_mask:0xa bank_mask:0xf")
        a.append(f"v_mul_f32 v{S0}, {1.0/640!r}, v{S0}"); a.append(f"v_mul_f32 v{S1}, {1.0/640!r}, v{S1}")
        a.append(f"v_fma_f32 v{S1}, -v{S0}, v{S0}, v{S1}"); a.append(f"v_max_f32 v{S1}, 0, v{S1}"); a.append(f"v_add_f32 v{S1}, {1e-5!r}, v{S1}"); a.append(f"v_rsq_f32 v{S1}, v{S1}")
        st.append(a)
    cs = []
    for i in range(8): cs.append(f"v_mov_b32 v{204+i}, 0")
    for k in range(10):
        for d in range(4):
            r = 20+4*k+d
            cs.append(f"v_lshlrev_b32 v212, 16, v{r}"); cs.append(f"v_and_b32 v213, 0xffff0000, v{r}")
            cs.append(f"v_pk_add_f32 v[{204+2*d}:{205+2*d}], v[{204+2*d}:{205+2*d}], v[212:213]")
    zip2(e, st[0], st[1])
    for it in cs: e(it)
    SCR = 2*SLOT
    e(f"s_lshl_b32 s30, s{S_WAVE}, 11"); e(f"v_lshlrev_b32 v214, 5, v{VL}"); e("v_add_u32 v214, s30, v214"); e(f"v_add_u32 v214, {SCR}, v214")
    e("ds_write_b128 v214, v[204:207]"); e("ds_write_b128 v214, v[208:211] offset:16")
    e("v_lshlrev_b32 v196, 3, v196")
    e(f"s_cmp_ge_u32 s{S_N}, 128"); e(f"s_cselect_b32 s31, 0x40000000, {OFF_STATS}"); e("s_add_u32 s32, s31, 16")
    e("v_cmp_eq_u32 vcc, 31, v197"); e("s_mov_b64 exec, vcc")
    e(f"buffer_store_dwordx2 v[200:201], v196, s[{S_WS}:{S_WS+3}], s31 offen sc1")
    e(f"buffer_store_dwordx2 v[202:203], v196, s[{S_WS}:{S_WS+3}], s32 offen sc1")
    e("s_mov_b64 exec, -1")
    for i in range(60): e(f"v_mov_b32 v{i}, 0")
    e("s_waitcnt lgkmcnt(0)"); e("s_barrier")
    e(f"v_and_b32 v200, 15, v{VL}"); e(f"s_lshl_b32 s30, s{S_WAVE}, 4"); e("v_add_u32 v200, s30, v200")
    e("v_lshrrev_b32 v201, 3, v200"); e("v_lshlrev_b32 v201, 5, v201"); e("v_and_b32 v202, 7, v200"); e("v_lshlrev_b32 v202, 2, v202"); e("v_add_u32 v201, v201, v202")
    e(f"v_lshrrev_b32 v202, 4, v{VL}"); e("v_lshlrev_b32 v202, 11, v202"); e("v_add_u32 v201, v201, v202"); e(f"v_add_u32 v201, {SCR}, v201")
    for i in range(8): e(f"ds_read_b32 v{204+i}, v201 offset:{i*256}")
    e("s_waitcnt lgkmcnt(0)")
    e("v_add_f32 v204, v204, v205"); e("v_add_f32 v206, v206, v207"); e("v_add_f32 v208, v208, v209"); e("v_add_f32 v210, v210, v211")
    e("v_add_f32 v204, v204, v206"); e("v_add_f32 v208, v208, v210"); e("v_add_f32 v204, v204, v208")
    for sw in ("v_permlane16_swap_b32", "v_permlane32_swap_b32"):
        e("v_mov_b32 v205, v204"); e(f"{sw} v204, v205"); e("v_add_f32 v204, v204, v205")
    e(f"s_and_b32 s30, s{S_N}, 1"); e("s_mul_i32 s30, s30, 4992"); e(f"s_lshr_b32 s31, s{S_N}, 1"); e("s_lshl_b32 s31, s31, 6"); e("s_add_u32 s30, s30, s31"); e("s_lshl_b32 s30, s30, 2"); e(f"s_add_u32 s30, s30, {OFF_CS}")
    e("v_lshlrev_b32 v200, 2, v200")
    e("s_mov_b64 exec, 0xffff")
    e(f"buffer_store_dword v204, v200, s[{S_WS}:{S_WS+3}], s30 offen sc1")
    e("s_mov_b64 exec, -1")
    e("s_barrier")
    for (a,l) in dg[:len(dg)//2]: e(a); e(l)
    def reads(ks, setn):
        w = []
        for t4 in range(4):
            r = WF + (setn*NF + t4)*4
            off = (16384 if t4 >= 2 else 0) + ks*8192
            w.append(f"ds_read_b64_tr_b16 a[{r}:{r+1}], v{WRD+(t4&1)} offset:{off}")
            w.append(f"ds_read_b64_tr_b16 a[{r+2}:{r+3}], v{WRD+(t4&1)} offset:{off+1024}")
        xs = x_reads(XF, NT, XRD, ks, setn)
        return xs[:1] + w + xs[1:]
    def late():
        load_stats(e, NT, ST, S_T0, VP)
        e(f"v_lshrrev_b32 v{VP}, 4, v{VL}"); e(f"v_lshlrev_b32 v{VP}, 4, v{VP}")
        e(f"s_lshl_b32 s30, s{S_CG}, 7"); e(f"s_lshl_b32 s31, s{S_WAVE}, 5"); e("s_add_u32 s30, s30, s31"); e("s_lshl_b32 s30, s30, 2")
        e(f"v_add_u32 v{VP}, s30, v{VP}")
        for p in range(2):
            for t4 in range(4):
                base = (1920 if t4 < 2 else 3456) + 16*(t4 & 1)
                e(f"s_mov_b32 s31, {OFF_CS + (p*4992 + base)*4}")
                e(f"buffer_load_dwordx4 a[{CS+p*16+t4*4}:{CS+p*16+t4*4+3}], v{VP}, s[{S_WS}:{S_WS+3}], s31 offen sc1")
    emit_mainloop(e, "FFN", NT, NF, XF, WF, dg, reads, [XRD, XRD+1, WRD, WRD+1], 3072, True, late, NT+8, True, 3, VP)
    e("s_waitcnt vmcnt(0)")
    e("s_barrier")
    e(f"s_load_dwordx2 s[4:5], s[0:1], {KA_WD}"); e(f"s_load_dwordx2 s[6:7], s[0:1], {KA_WO}")
    e(f"v_lshrrev_b32 v196, 3, v{VL}"); e("v_mul_u32_u24 v196, 1280, v196"); e(f"v_and_b32 v197, 7, v{VL}"); e("v_lshlrev_b32 v197, 4, v197"); e("v_add_u32 v196, v196, v197")
    e("s_waitcnt lgkmcnt(0)")
    for rnd in range(2):
        U = 68+rnd*4
        e(f"s_lshl_b32 s{U}, s{S_N}, 2"); e(f"s_add_u32 s{U}, s{U}, s{S_WAVE}")
        if rnd: e(f"s_add_u32 s{U}, s{U}, 624")
        udiv_const(e, U+1, U, 10)
        e(f"s_mul_i32 s{U+2}, s{U+1}, 10"); e(f"s_sub_u32 s{U+2}, s{U}, s{U+2}")
        e("s_mov_b32 s64, s4"); e("s_and_b32 s65, s5, 0xffff"); e(f"s_mov_b32 s66, {1536*1280}"); e("s_mov_b32 s67, 0x20000"); e(f"s_mov_b32 s30, s{U+1}")
        lab = e.label("FFN_ws")
        e(f"s_cmp_ge_u32 s{U+1}, 48"); e(f"s_cbranch_scc0 {lab}")
        e("s_mov_b32 s64, s6"); e("s_and_b32 s65, s7, 0xffff"); e(f"s_mov_b32 s66, {640*1280}"); e(f"s_sub_u32 s30, s{U+1}, 48")
        e(f"{lab}:")
        e(f"s_cmp_ge_u32 s{U}, 680"); e("s_cselect_b32 s66, 0, s66")
        e(f"s_mul_i32 s30, s30, {32*1280}"); e(f"s_lshl_b32 s31, s{U+2}, 7"); e("s_add_u32 s30, s30, s31")
        e(f"s_lshl_b32 s31, s{S_WAVE}, 13"); e(f"s_add_u32 s31, s31, {rnd*4096}")
        for k in range(4):
            e(f"s_add_u32 m0, s31, {k*1024}")
            e("buffer_load_dwordx4 v196, s[64:67], s30 offen lds")
            if k < 3: e(f"s_add_u32 s30, s30, {8*1280}")
    for i in range(16): e(f"v_accvgpr_read_b32 v{224+i}, a{CS+i}")
    for i in range(16): e(f"v_accvgpr_read_b32 v{196+i}, a{CS+16+i}")
    for i in range(0, 16, 2): e(f"v_pk_add_f32 v[{224+i}:{225+i}], v[{224+i}:{225+i}], v[{196+i}:{197+i}]")
    e(f"v_lshlrev_b32 v240, 4, v{VL}")
    def tile(tt, R):
        s = []; a = s.append
        m = ST+2*tt; r = m+1; A = tt*16
        a(f"v_sub_f32 v{R}, 0, v{m}"); a(f"v_mul_f32 v{R+2}, {-LOG2E!r}, v{r}"); a(f"v_mul_f32 v{R+4}, v{r}, v{r}"); a(f"v_rcp_f32 v{R+4}, v{R+4}")
        for k in range(0, 16, 2): a(f"v_pk_fma_f32 v[{A+k}:{A+k+1}], v[{224+k}:{225+k}], v[{R}:{R+1}], v[{A+k}:{A+k+1}] op_sel_hi:[1,0,1]")
        E = R+6
        for k in range(0, 8, 2): a(f"v_pk_mul_f32 v[{E+k}:{E+k+1}], v[{A+k}:{A+k+1}], v[{R+2}:{R+3}] op_sel_hi:[1,0]")
        for k in range(8): a(f"v_exp_f32 v{E+k}, v{E+k}")
        for k in range(0, 8, 2): a(f"v_pk_mul_f32 v[{A+k}:{A+k+1}], v[{A+k}:{A+k+1}], v[{A+8+k}:{A+9+k}]")
        for k in range(0, 8, 2): a(f"v_pk_fma_f32 v[{E+k}:{E+k+1}], v[{E+k}:{E+k+1}], v[{R+4}:{R+5}], v[{R+4}:{R+5}] op_sel_hi:[1,0,0]")
        for k in range(8): a(f"v_rcp_f32 v{E+k}, v{E+k}")
        for k in range(0, 8, 2): a(f"v_pk_mul_f32 v[{A+k}:{A+k+1}], v[{A+k}:{A+k+1}], v[{E+k}:{E+k+1}]")
        for k in range(4): a(f"v_cvt_pk_bf16_f32 v{A+8+k}, v{A+2*k}, v{A+2*k+1}")
        a(f"buffer_store_dwordx4 v[{A+8}:{A+11}], v240, s[{S_WS}:{S_WS+3}], s{SOFF+tt} offen")
        return s
    for tt in range(0, NT, 2): zip2(e, tile(tt, 196), tile(tt+1, 210))
    e("s_waitcnt vmcnt(10)")
    e(f"v_lshrrev_b32 v3, 4, v{VL}"); e(f"v_and_b32 v4, 15, v{VL}"); e("v_lshrrev_b32 v5, 2, v4"); e("v_and_b32 v6, 3, v4")
    e("v_lshlrev_b32 v3, 2, v3"); e("v_add_u32 v3, v3, v5"); e("v_lshlrev_b32 v3, 7, v3"); e("v_lshlrev_b32 v6, 3, v6"); e("v_add_u32 v3, v3, v6")
    e(f"s_lshl_b32 s31, s{S_WAVE}, 13"); e("v_add_u32 v3, s31, v3")
    for rnd in range(2):
        U = 68+rnd*4
        lab = e.label("FFN_wf")
        e(f"s_cmp_ge_u32 s{U}, 680"); e(f"s_cbranch_scc1 {lab}")
        for ft in range(4):
            e(f"ds_read_b64_tr_b16 v[{16+4*ft}:{17+4*ft}], v3 offset:{rnd*4096+ft*32}")
            e(f"ds_read_b64_tr_b16 v[{18+4*ft}:{19+4*ft}], v3 offset:{rnd*4096+ft*32+16*128}")
        e("s_waitcnt lgkmcnt(0)")
        for ft in range(4):
            e(f"s_lshl_b32 s30, s{U+2}, 2"); e(f"s_add_u32 s30, s30, {ft}")
            udiv_const(e, 31, 30, 5)
            e("s_mul_i32 s32, s31, 5"); e("s_sub_u32 s32, s30, s32")
            e("s_mul_i32 s31, s31, 68"); e(f"s_add_u32 s31, s31, s{U+1}"); e("s_mul_i32 s31, s31, 5"); e("s_add_u32 s31, s31, s32"); e("s_lshl_b32 s31, s31, 10"); e(f"s_add_u32 s31, s31, {OFF_WF}")
            e(f"buffer_store_dwordx4 v[{16+4*ft}:{19+4*ft}], v240, s[{S_WS}:{S_WS+3}], s31 offen")
        e(f"{lab}:")
    sentinel(e)
    if STAMPS: e("s_waitcnt vmcnt(0)")
    stamp(e, 3); stamp_flush(e, 1, 4, S_WS, S_WAVE)
    e("s_endpgm")

def fperm():
    ft0 = [('p', 5*q+e_) for q in range(4) for e_ in range(4)]
    ft1 = []
    for q in range(4): ft1 += [('p', 5*q+4), ('m', 5*q), ('m', 5*q+1), ('m', 5*q+2)]
    ft2 = [[('m', 5*q+3), ('m', 5*q+4)] for q in range(4)]
    return ft0, ft1, ft2

def gen_att(e):
    NT, NF = 4, 10
    XF = 0; WF = XF + 2*NT*4
    PHI = 112
    CS = 172
    XRD = 160; WRD = 162; DXA = 172; DWA = 180
    VP = 186
    ST = 246
    WPH = 159744
    e("ATT:")
    e(f"s_lshl_b32 s{S_T0}, s{S_RB}, 8")
    e(f"s_load_dwordx2 s[4:5], s[0:1], {KA_WQKV}"); e(f"s_load_dwordx2 s[6:7], s[0:1], {KA_WPHI}")
    x_dma_addr(e, DXA, 8)
    e(f"s_mul_i32 s30, s{S_WAVE}, 5")
    e(f"s_lshl_b32 s31, s{S_COL0}, 1"); e(f"s_lshl_b32 s32, s{S_COL1}, 1"); e("s_sub_u32 s32, s32, s31"); e("s_sub_u32 s32, s32, 160")
    e("s_mov_b32 s33, 0xCCCD")
    for i in range(5):
        e(f"s_add_u32 s53, s30, {i}"); e("s_lshl_b32 s53, s53, 6")
        e(f"v_add_u32 v200, s53, v{VL}")
        e("v_mul_lo_u32 v201, v200, s33"); e("v_lshrrev_b32 v201, 20, v201")
        e("v_mul_u32_u24 v202, 20, v201"); e("v_sub_u32 v202, v200, v202")
        e("v_lshrrev_b32 v203, 2, v201"); e("v_and_b32 v203, 2, v203"); e("v_xor_b32 v202, v202, v203")
        e("v_cmp_le_u32 vcc, 10, v202"); e("v_mov_b32 v204, s32"); e("v_cndmask_b32 v204, 0, v204, vcc")
        e("v_lshlrev_b32 v202, 4, v202"); e("v_add_u32 v202, v202, v204")
        e("v_mul_u32_u24 v201, 3840, v201"); e("v_add_u32 v201, v201, v202"); e(f"v_add_u32 v{DWA+i}, s31, v201")
    e(f"s_lshl_b32 s{S_LW}, s30, 10"); e(f"s_add_u32 s{S_LW}, s{S_LW}, 32768")
    e("s_waitcnt lgkmcnt(0)")
    srd(e, S_W, 4, 640*3840); srd(e, S_W2, 6, 32*800)
    dg = []
    for i in range(8): dg.append((f"s_add_u32 m0, s{S_M0X}, {i*1024}", f"buffer_load_dwordx4 v{DXA+i}, s[{S_X}:{S_X+3}], s{S_XO} offen lds"))
    for i in range(5): dg.append((f"s_add_u32 m0, s{S_M0W}, {i*1024}", f"buffer_load_dwordx4 v{DWA+i}, s[{S_W}:{S_W+3}], s{S_WO} offen lds"))
    dg = [dg[0],dg[8],dg[1],dg[9],dg[2],dg[3],  dg[10],dg[4],dg[5],dg[11],dg[6],dg[12],dg[7]]
    dma_init(e, False)
    dma_full(e, dg, 3840, False)
    e(f"v_lshlrev_b32 v201, 4, v{VL}")
    e(f"s_mul_i32 s31, s{S_CG}, 3200"); e(f"s_lshl_b32 s32, s{S_WAVE}, 10"); e("s_add_u32 s31, s31, s32")
    e(f"s_add_u32 m0, s32, {WPH}")
    e(f"s_cmp_eq_u32 s{S_WAVE}, 3"); e("s_cselect_b64 s[54:55], 0xff, -1"); e("s_mov_b64 exec, s[54:55]")
    e(f"buffer_load_dwordx4 v201, s[{S_W2}:{S_W2+3}], s31 offen lds")
    e("s_mov_b64 exec, -1")
    dma_full(e, dg, 3840, False)
    for (a,l) in dg[:len(dg)//2]: e(a); e(l)
    e(f"v_mov_b32 v204, 0"); e("v_mov_b32 v205, 0"); e("v_mov_b32 v206, 0"); e("v_mov_b32 v207, 0")
    e(f"v_lshlrev_b32 v203, 4, v{VL}"); e(f"v_add_u32 v203, {WPH+3200}, v203")
    e("s_mov_b32 exec_hi, 0x00ffffff")
    e("ds_write_b128 v203, v[204:207]")
    e("s_mov_b64 exec, -1")
    e(f"s_lshl_b32 s30, s{S_WAVE}, 13")
    x_read_addr(e, XRD, 30)
    e(f"v_and_b32 v200, 15, v{VL}"); e(f"v_lshrrev_b32 v201, 4, v{VL}")
    e("v_lshrrev_b32 v202, 2, v200"); e("v_and_b32 v203, 3, v200")
    e("v_lshlrev_b32 v204, 3, v201"); e("v_add_u32 v204, v204, v202"); e("v_mul_u32_u24 v204, 320, v204")
    e("v_mul_u32_u24 v205, 5, v203")
    e("v_and_b32 v206, 1, v201"); e("v_lshlrev_b32 v206, 2, v206")
    for t in range(10):
        e(f"v_add_u32 v207, {(t%5) + 20*(t//5)}, v205"); e("v_xor_b32 v207, v207, v206"); e("v_lshlrev_b32 v207, 3, v207"); e("v_add_u32 v207, v207, v204"); e(f"v_add_u32 v{WRD+t}, 32768, v207")
    e("v_mul_u32_u24 v208, 800, v201"); e("v_mul_u32_u24 v209, 40, v202"); e("v_add_u32 v208, v208, v209"); e(f"v_add_u32 v245, {WPH}, v208")
    e(f"v_mov_b32 v209, {WPH+3200}")
    e("v_cmp_eq_u32 vcc, v203, v201"); e("v_cndmask_b32 v245, v209, v245, vcc")
    for i in range(160): e(f"v_mov_b32 v{i}, 0")
    e(f"s_waitcnt vmcnt({13+6}) lgkmcnt(0)")
    e("s_barrier")
    def reads(ks, setn):
        w = []
        for t in range(10):
            r = WF + (setn*NF + t)*4
            w.append(f"ds_read_b64_tr_b16 a[{r}:{r+1}], v{WRD+t} offset:{ks*10240}")
            w.append(f"ds_read_b64_tr_b16 a[{r+2}:{r+3}], v{WRD+t} offset:{ks*10240+1280}")
        xs = x_reads(XF, NT, XRD, ks, setn)
        return xs[:1] + w + xs[1:]
    def late():
        e(f"s_lshl_b32 s30, s{S_WAVE}, 6"); e(f"s_add_u32 s30, s30, s{S_T0}")
        load_stats(e, NT, ST, 30, VP)
        e(f"v_lshrrev_b32 v{VP}, 4, v{VL}"); e(f"v_mul_u32_u24 v{VP}, 80, v{VP}")
        for p in range(2):
            for half in range(2):
                e(f"s_lshl_b32 s31, s{S_COL0 if half == 0 else S_COL1}, 2"); e(f"s_add_u32 s31, s31, {OFF_CS + p*4992*4}")
                for j in range(5):
                    d = CS + p*40 + (half*5+j)*4
                    e(f"buffer_load_dwordx4 a[{d}:{d+3}], v{VP}, s[{S_WS}:{S_WS+3}], s31 offen offset:{j*16} sc1")
    emit_mainloop(e, "ATT", NT, NF, XF, WF, dg, reads, [XRD, XRD+1] + [WRD+t for t in range(10)], 3840, False, late, NT+20, False, 0, VP)
    e("s_waitcnt vmcnt(0)")
    e(f"s_cmp_eq_u32 s{S_ISKV}, 1"); e("s_cbranch_scc1 KV_EPI")
    for i in range(40): e(f"v_accvgpr_read_b32 v{160+i}, a{CS+i}")
    for i in range(40): e(f"v_accvgpr_read_b32 v{200+i}, a{CS+40+i}")
    for i in range(0, 40, 2): e(f"v_pk_add_f32 v[{160+i}:{161+i}], v[{160+i}:{161+i}], v[{200+i}:{201+i}]")
    e(f"v_lshrrev_b32 v200, 4, v{VL}"); e(f"v_and_b32 v201, 15, v{VL}")
    e(f"v_mul_u32_u24 v202, {128*768}, v200")
    e("v_lshlrev_b32 v203, 4, v201"); e("v_add_u32 v204, v202, v203")
    e(f"s_lshl_b32 s30, s{S_RB}, 4"); e(f"s_lshl_b32 s31, s{S_WAVE}, 2"); e("s_add_u32 s30, s30, s31")
    e(f"s_lshl_b32 s31, s{S_CG}, 3")
    for tt in range(NT):
        m = ST+2*tt; r = m+1
        e(f"v_sub_f32 v208, 0, v{m}"); e(f"v_mov_b32 v210, v{r}")
        strs = []
        for half in range(2):
            s = []; a = s.append
            A = (tt*10 + half*5)*4; C = 160 + half*20
            for k in range(0, 20, 2): a(f"v_pk_fma_f32 v[{A+k}:{A+k+1}], v[{C+k}:{C+k+1}], v[208:209], v[{A+k}:{A+k+1}] op_sel_hi:[1,0,1]")
            for k in range(0, 20, 2): a(f"v_pk_mul_f32 v[{A+k}:{A+k+1}], v[{A+k}:{A+k+1}], v[210:211] op_sel_hi:[1,0]")
            for k in range(10): a(f"v_cvt_pk_bf16_f32 v{A+k}, v{A+2*k}, v{A+2*k+1}")
            a(f"v_mov_b32 v{A+10}, 0"); a(f"v_mov_b32 v{A+11}, 0")
            sx = 60+half
            a(f"s_add_u32 s{sx}, s31, {4*half}"); a(f"s_lshl_b32 s{sx}, s{sx}, 7"); a(f"s_add_u32 s{sx}, s{sx}, s30"); a(f"s_add_u32 s{sx}, s{sx}, {tt}")
            a(f"s_mul_i32 s{sx}, s{sx}, 768"); a(f"s_add_u32 s{sx}, s{sx}, {OFF_QF}")
            a(f"buffer_store_dwordx4 v[{A}:{A+3}], v204, s[{S_WS}:{S_WS+3}], s{sx} offen")
            a(f"buffer_store_dwordx4 v[{A+4}:{A+7}], v204, s[{S_WS}:{S_WS+3}], s{sx} offen offset:256")
            a(f"buffer_store_dwordx4 v[{A+8}:{A+11}], v204, s[{S_WS}:{S_WS+3}], s{sx} offen offset:512")
            strs.append(s)
        zip2(e, strs[0], strs[1])
    sentinel(e)
    if STAMPS: e("s_waitcnt vmcnt(0)")
    stamp(e, 3); stamp_flush(e, 1, 4, S_WS, S_WAVE)
    e("s_endpgm")
    e("KV_EPI:")
    e("s_barrier")
    for jp in range(5):
        for s in range(3):
            r = PHI + (jp*3+s)*4
            e(f"ds_read_b64_tr_b16 a[{r}:{r+1}], v245 offset:{s*320 + jp*8}")
            e(f"ds_read_b64_tr_b16 a[{r+2}:{r+3}], v245 offset:{s*320 + 160 + jp*8}")
    e(f"v_lshrrev_b32 v200, 4, v{VL}"); e(f"v_and_b32 v201, 15, v{VL}")
    e("v_lshlrev_b32 v202, 15, v200"); e("v_lshlrev_b32 v203, 5, v201"); e("v_add_u32 v202, v202, v203")
    e(f"s_lshl_b32 s30, s{S_WAVE}, 11"); e("v_add_u32 v244, s30, v202")
    for i in range(40): e(f"v_accvgpr_read_b32 v{160+i}, a{CS+i}")
    for i in range(40): e(f"v_accvgpr_read_b32 v{200+i}, a{CS+40+i}")
    for i in range(0, 40, 2): e(f"v_pk_add_f32 v[{160+i}:{161+i}], v[{160+i}:{161+i}], v[{200+i}:{201+i}]")
    def vtile(tt, R):
        s = []; a = s.append
        m = ST+2*tt; r = m+1; A = (tt*10+5)*4
        a(f"v_sub_f32 v{R}, 0, v{m}"); a(f"v_mov_b32 v{R+2}, v{r}")
        for k in range(0, 20, 2): a(f"v_pk_fma_f32 v[{A+k}:{A+k+1}], v[{180+k}:{181+k}], v[{R}:{R+1}], v[{A+k}:{A+k+1}] op_sel_hi:[1,0,1]")
        for k in range(0, 20, 2): a(f"v_pk_mul_f32 v[{A+k}:{A+k+1}], v[{A+k}:{A+k+1}], v[{R+2}:{R+3}] op_sel_hi:[1,0]")
        for k in range(10): a(f"v_cvt_pk_bf16_f32 v{A+k}, v{A+2*k}, v{A+2*k+1}")
        a(f"ds_write_b128 v244, v[{A}:{A+3}] offset:{3*8192 + tt*512}")
        a(f"ds_write_b128 v244, v[{A+4}:{A+7}] offset:{3*8192 + tt*512 + 16}")
        return s
    zip2(e, vtile(0, 200), vtile(1, 204)); zip2(e, vtile(2, 200), vtile(3, 204))
    ft0, ft1, ft2 = fperm()
    Pb = [180, 200]; EM = 220
    def stageA(tt):
        s = []; a = s.append
        m = ST+2*tt; A = tt*40; P = Pb[tt & 1]
        a(f"v_sub_f32 v240, 0, v{m}")
        for k in range(0, 20, 2): a(f"v_pk_fma_f32 v[{A+k}:{A+k+1}], v[{160+k}:{161+k}], v[240:241], v[{A+k}:{A+k+1}] op_sel_hi:[1,0,1]")
        for k in range(10): a(f"v_cvt_pk_bf16_f32 v{A+k}, v{A+2*k}, v{A+2*k+1}")
        a(f"v_mov_b32 v{A+10}, 0"); a(f"v_mov_b32 v{A+11}, 0")
        for sidx in range(3):
            for jp in range(5):
                c = "0" if sidx == 0 else f"v[{P+jp*4}:{P+jp*4+3}]"
                a(f"v_mfma_f32_16x16x32_bf16 v[{P+jp*4}:{P+jp*4+3}], a[{PHI+(jp*3+sidx)*4}:{PHI+(jp*3+sidx)*4+3}], v[{A+sidx*4}:{A+sidx*4+3}], {c}")
        return s
    def stageB(tt):
        s = []; a = s.append
        r = ST+2*tt+1; A = tt*40; AV = A+20; P = Pb[tt & 1]
        C, NC, MXC, MNC, MX, MN, SP, SM_ = AV, AV+2, AV+4, AV+6, AV+10, AV+11, AV+12, AV+14
        a(f"v_mul_f32 v{C}, {LOG2E!r}, v{r}"); a(f"v_sub_f32 v{NC}, 0, v{C}")
        a(f"v_max3_f32 v{MX}, v{P}, v{P+1}, v{P+2}"); a(f"v_min3_f32 v{MN}, v{P}, v{P+1}, v{P+2}")
        for k in range(3, 19, 2):
            a(f"v_max3_f32 v{MX}, v{MX}, v{P+k}, v{P+k+1}"); a(f"v_min3_f32 v{MN}, v{MN}, v{P+k}, v{P+k+1}")
        a(f"v_max_f32 v{MX}, v{MX}, v{P+19}"); a(f"v_min_f32 v{MN}, v{MN}, v{P+19}")
        a(f"v_mul_f32 v{MXC}, v{MX}, v{NC}"); a(f"v_mul_f32 v{MNC}, v{MN}, v{C}")
        for k in range(0, 20, 2): a(f"v_pk_fma_f32 v[{EM+k}:{EM+k+1}], v[{P+k}:{P+k+1}], v[{NC}:{NC+1}], v[{MNC}:{MNC+1}] op_sel_hi:[1,0,0]")
        for k in range(0, 20, 2): a(f"v_pk_fma_f32 v[{P+k}:{P+k+1}], v[{P+k}:{P+k+1}], v[{C}:{C+1}], v[{MXC}:{MXC+1}] op_sel_hi:[1,0,0]")
        for k in range(20): a(f"v_exp_f32 v{EM+k}, v{EM+k}")
        for k in range(20): a(f"v_exp_f32 v{P+k}, v{P+k}")
        a(f"v_pk_add_f32 v[{SM_}:{SM_+1}], v[{EM}:{EM+1}], v[{EM+2}:{EM+3}]"); a(f"v_pk_add_f32 v[{SP}:{SP+1}], v[{P}:{P+1}], v[{P+2}:{P+3}]")
        for k in range(4, 20, 2):
            a(f"v_pk_add_f32 v[{SM_}:{SM_+1}], v[{SM_}:{SM_+1}], v[{EM+k}:{EM+k+1}]"); a(f"v_pk_add_f32 v[{SP}:{SP+1}], v[{SP}:{SP+1}], v[{P+k}:{P+k+1}]")
        a(f"v_add_f32 v{SM_}, v{SM_}, v{SM_+1}"); a(f"v_add_f32 v{SP}, v{SP}, v{SP+1}")
        a(f"v_rcp_f32 v{SM_}, v{SM_}"); a(f"v_rcp_f32 v{SP}, v{SP}")
        for k in range(0, 20, 2):
            a(f"v_pk_mul_f32 v[{EM+k}:{EM+k+1}], v[{EM+k}:{EM+k+1}], v[{SM_}:{SM_+1}] op_sel_hi:[1,0]")
            a(f"v_pk_mul_f32 v[{P+k}:{P+k+1}], v[{P+k}:{P+k+1}], v[{SP}:{SP+1}] op_sel_hi:[1,0]")
        def reg(x): return (P if x[0] == 'p' else EM) + x[1]
        I = AV+12
        for k in range(8): a(f"v_cvt_pk_bf16_f32 v{A+k}, v{reg(ft0[2*k])}, v{reg(ft0[2*k+1])}")
        a(f"ds_write_b128 v244, v[{A}:{A+3}] offset:{tt*512}"); a(f"ds_write_b128 v244, v[{A+4}:{A+7}] offset:{tt*512+16}")
        for k in range(8): a(f"v_cvt_pk_bf16_f32 v{A+8+k}, v{reg(ft1[2*k])}, v{reg(ft1[2*k+1])}")
        a(f"ds_write_b128 v244, v[{A+8}:{A+11}] offset:{8192+tt*512}"); a(f"ds_write_b128 v244, v[{A+12}:{A+15}] offset:{8192+tt*512+16}")
        for q in range(4): a(f"v_cvt_pk_bf16_f32 v{I+2*q}, v{reg(ft2[q][0])}, v{reg(ft2[q][1])}")
        a(f"v_mov_b32 v{I+1}, v{AV+8}"); a(f"v_mov_b32 v{I+3}, v{AV+9}"); a(f"v_mov_b32 v{I+5}, 0x3f80"); a(f"v_mov_b32 v{I+7}, 0")
        a(f"ds_write_b128 v244, v[{I}:{I+3}] offset:{2*8192+tt*512}"); a(f"ds_write_b128 v244, v[{I+4}:{I+7}] offset:{2*8192+tt*512+16}")
        return s
    e("s_waitcnt lgkmcnt(0)")
    for it in stageA(0): e(it)
    for tt in range(NT):
        if tt+1 < NT: zip_ratio(e, stageB(tt), stageA(tt+1))
        else:
            for it in stageB(tt): e(it)
    e("s_waitcnt lgkmcnt(0)")
    stamp(e, 4)
    e("s_barrier")
    stamp(e, 5)
    e(f"v_lshrrev_b32 v200, 4, v{VL}"); e(f"v_and_b32 v201, 15, v{VL}"); e("v_lshrrev_b32 v202, 2, v201"); e("v_and_b32 v203, 3, v201")
    e("v_lshlrev_b32 v200, 2, v200"); e("v_add_u32 v200, v200, v202"); e("v_lshlrev_b32 v200, 5, v200"); e("v_lshlrev_b32 v203, 3, v203"); e("v_add_u32 v200, v200, v203")
    e(f"s_lshl_b32 s30, s{S_WAVE}, 15"); e("v_add_u32 v200, s30, v200")
    KA = 0; FR = 32
    def kvreads(ks, st_):
        for sub in range(4):
            rr = FR + (st_*4+sub)*4
            e(f"ds_read_b64_tr_b16 v[{rr}:{rr+1}], v200 offset:{sub*8192 + ks*1024}")
            e(f"ds_read_b64_tr_b16 v[{rr+2}:{rr+3}], v200 offset:{sub*8192 + ks*1024 + 512}")
    NSET = 3
    def kvreads(ks):
        st_ = ks % NSET
        for sub in range(4):
            rr = FR + (st_*4+sub)*4
            e(f"ds_read_b64_tr_b16 v[{rr}:{rr+1}], v200 offset:{sub*8192 + ks*1024}")
            e(f"ds_read_b64_tr_b16 v[{rr+2}:{rr+3}], v200 offset:{sub*8192 + ks*1024 + 512}")
    kvreads(0)
    for i in range(24): e(f"v_mov_b32 v{KA+i}, 0")
    for ks in range(8):
        st_ = ks % NSET
        if ks < 7:
            kvreads(ks+1); e("s_waitcnt lgkmcnt(8)")
        else:
            e("s_waitcnt lgkmcnt(0)")
        for ft in range(3):
            for dt in range(2):
                a = KA + (ft*2+dt)*4
                Af = FR + (st_*4+ft)*4
                Bf = FR + (st_*4 + (3 if dt == 0 else 2))*4
                e(f"v_mfma_f32_16x16x32_bf16 v[{a}:{a+3}], v[{Af}:{Af+3}], v[{Bf}:{Bf+3}], v[{a}:{a+3}]")
    e(f"s_lshl_b32 s30, s{S_RB}, 5"); e(f"s_lshl_b32 s31, s{S_CG}, 2"); e("s_add_u32 s30, s30, s31"); e(f"s_add_u32 s30, s30, s{S_WAVE}")
    e("s_mul_i32 s30, s30, 5120"); e(f"s_add_u32 s30, s30, {OFF_KVP}")
    e(f"v_lshlrev_b32 v201, 5, v{VL}"); e(f"v_lshlrev_b32 v202, 3, v{VL}")
    for dt in range(2):
        a0 = KA + (0*2+dt)*4; a1 = KA + (1*2+dt)*4; a2 = KA + (2*2+dt)*4
        if dt == 1: e("s_add_u32 s30, s30, 2560")
        e(f"buffer_store_dwordx4 v[{a0}:{a0+3}], v201, s[{S_WS}:{S_WS+3}], s30 offen")
        e(f"buffer_store_dwordx4 v[{a1}:{a1+3}], v201, s[{S_WS}:{S_WS+3}], s30 offen offset:16")
        e(f"buffer_store_dwordx2 v[{a2}:{a2+1}], v202, s[{S_WS}:{S_WS+3}], s30 offen offset:2048")
    sentinel(e)
    if STAMPS: e("s_waitcnt vmcnt(0)")
    stamp(e, 3); stamp_flush(e, 1, 6, S_WS, S_WAVE)
    e("s_endpgm")

def gen_k1():
    e = Em()
    STAMP_BASE[0] = 90
    e("s_cmp_ge_u32 s2, 256"); e("s_cbranch_scc1 K1_end")
    e(f"s_load_dwordx2 s[4:5], s[0:1], {KA_X}"); e(f"s_load_dwordx2 s[6:7], s[0:1], {KA_WS}"); e(f"s_load_dwordx2 s[62:63], s[0:1], {KA_DBG}")
    e("v_lshrrev_b32 v1, 6, v0"); e(f"v_and_b32 v{VL}, 63, v0"); e(f"v_readfirstlane_b32 s{S_WAVE}, v1")
    stamp(e, 0)
    e("s_and_b32 s30, s2, 7"); e("s_lshr_b32 s31, s2, 3")
    e("s_lshr_b32 s32, s30, 2"); e("s_and_b32 s33, s30, 3")
    e("s_waitcnt lgkmcnt(0)")
    srd(e, S_X, 4, 2048*1280); srd(e, S_WS, 6, WS_BYTES); srd(e, S_DBG, 62, 256)
    e("s_cmp_lt_u32 s31, 8"); e("s_cbranch_scc1 K1_kv")
    e("s_cmp_lt_u32 s31, 12"); e("s_cbranch_scc1 K1_q")
    e("s_sub_u32 s34, s31, 12"); e("s_mul_i32 s35, s32, 20"); e("s_add_u32 s34, s34, s35")
    e("s_cmp_ge_u32 s34, 39"); e("s_cbranch_scc1 K1_idle")
    udiv_const(e, S_RB, 34, 3)
    e(f"s_mul_i32 s35, s{S_RB}, 3"); e("s_sub_u32 s35, s34, s35"); e("s_mul_i32 s36, s33, 3"); e(f"s_add_u32 s{S_CG}, s35, s36")
    e(f"s_mul_i32 s{S_N}, s33, 39"); e(f"s_add_u32 s{S_N}, s{S_N}, s34")
    e("s_branch FFN")
    e("K1_kv:")
    e("s_lshl_b32 s34, s33, 1"); e("s_and_b32 s35, s31, 1"); e(f"s_add_u32 s{S_CG}, s34, s35")
    e("s_lshl_b32 s34, s32, 2"); e("s_lshr_b32 s35, s31, 1"); e(f"s_add_u32 s{S_RB}, s34, s35")
    e(f"s_mul_i32 s34, s{S_CG}, 80"); e(f"s_add_u32 s{S_COL0}, s34, 640"); e(f"s_add_u32 s{S_COL1}, s34, 1280"); e(f"s_mov_b32 s{S_ISKV}, 1")
    e("s_branch ATT")
    e("K1_q:")
    e(f"s_mov_b32 s{S_CG}, s33"); e("s_lshl_b32 s34, s32, 2"); e("s_sub_u32 s35, s31, 8"); e(f"s_add_u32 s{S_RB}, s34, s35")
    e(f"s_mul_i32 s{S_COL0}, s33, 160"); e(f"s_add_u32 s{S_COL1}, s{S_COL0}, 80"); e(f"s_mov_b32 s{S_ISKV}, 0")
    e("s_branch ATT")
    e("K1_idle:")
    sentinel(e)
    e("s_endpgm")
    gen_ffn(e)
    gen_att(e)
    e("K1_end:")
    return kernel("k1_kernel", e.text(), vgpr=256, accum=256, agpr=256, sgpr=102)
```

```python
from asmgen import *
from gen_common import *

S_X = 8; S_OUT = 12; S_DBG = 16; S_WS = 20; S_WPHI = 28
S_WAVE = 24; S_RB64 = 25; S_CG = 26; S_HEAD = 27; S_RB256 = 32
LDS_PHI = 86016
LDS_KVX = 88064
LDS_CNT = 112640
K2_LDS = 112704
import os
NBUF = 4; LOOK = int(os.environ.get('K2_LOOK', 3))
NOMFMA = int(os.environ.get('K2_NOMFMA', 0)); PRIO = int(os.environ.get('K2_PRIO', 3)); NOO = int(os.environ.get('K2_NOO', 0))
VL = 175

def zip_streams(e, streams):
    n = max(len(s) for s in streams)
    for i in range(n):
        for s in streams:
            if i < len(s):
                it = s[i]
                if callable(it): it()
                else: e(it)

def gen_k2():
    e = Em()
    STAMP_BASE[0] = 64
    e("s_cmp_ge_u32 s2, 256"); e("s_cbranch_scc1 K2_end")
    e(f"s_load_dwordx2 s[4:5], s[0:1], {KA_X}"); e(f"s_load_dwordx2 s[6:7], s[0:1], {KA_WS}")
    e(f"s_load_dwordx2 s[34:35], s[0:1], {KA_OUT}"); e(f"s_load_dwordx2 s[36:37], s[0:1], {KA_DBG}"); e(f"s_load_dwordx2 s[38:39], s[0:1], {KA_WPHI}")
    e("v_lshrrev_b32 v1, 6, v0"); e(f"v_and_b32 v{VL}, 63, v0"); e(f"v_readfirstlane_b32 s33, v1")
    stamp(e, 0)
    e("s_and_b32 s40, s2, 7"); e("s_lshr_b32 s41, s2, 3")
    e("s_lshr_b32 s42, s40, 1"); e("s_lshl_b32 s42, s42, 3"); e("s_lshr_b32 s43, s41, 2"); e(f"s_add_u32 s{S_RB64}, s42, s43")
    e("s_and_b32 s42, s40, 1"); e("s_lshl_b32 s42, s42, 2"); e("s_and_b32 s43, s41, 3"); e(f"s_add_u32 s{S_CG}, s42, s43")
    e("s_lshl_b32 s42, s40, 2"); e("s_and_b32 s43, s41, 3"); e(f"s_add_u32 s{S_HEAD}, s42, s43"); e(f"s_lshr_b32 s{S_RB256}, s2, 5")
    e(f"s_and_b32 s{S_WAVE}, s33, 3")
    e("s_waitcnt lgkmcnt(0)")
    srd(e, S_WS, 6, WS_BYTES); srd(e, S_DBG, 36, 256)
    WS = f"s[{S_WS}:{S_WS+3}]"
    e("s_cmp_ge_u32 s33, 4"); e("s_cbranch_scc1 K2_OW")
    vm = Vm(e)
    e(f"v_lshlrev_b32 v144, 4, v{VL}"); e("v_add_u32 v145, 4096, v144"); e(f"v_lshlrev_b32 v171, 3, v{VL}")
    e(f"s_mul_i32 s44, s{S_RB64}, 68"); e("s_lshl_b32 s44, s44, 12"); e(f"s_add_u32 s44, s44, {OFF_ACT}")
    e(f"s_mul_i32 s45, s{S_CG}, {68*5*1024}"); e(f"s_add_u32 s45, s45, {OFF_WF}")
    e(f"s_mul_i32 s46, s{S_WAVE}, {12*4096}"); e("s_add_u32 s46, s46, s44")
    e(f"s_mul_i32 s47, s{S_WAVE}, {12*5120}"); e("s_add_u32 s47, s47, s45")
    e(f"s_mul_i32 s48, s{S_WAVE}, {5*4096}"); e("s_add_u32 s48, s48, s44"); e(f"s_add_u32 s48, s48, {48*4096}")
    e(f"s_mul_i32 s49, s{S_WAVE}, {5*5120}"); e("s_add_u32 s49, s49, s45"); e(f"s_add_u32 s49, s49, {48*5120}")
    def act_loads(k):
        st = (k % NBUF)*36; sa = 46 if k < 12 else 48
        if k < 12:
            l = [(f"buffer_load_dwordx4 v[{st+4*ti}:{st+4*ti+3}], v144, {WS}, s{sa} offen offset:{ti*1024}", f"a{k}") for ti in range(4)]
        else:
            l = []
            for ti in range(4):
                l.append((f"buffer_load_dwordx2 v[{st+4*ti}:{st+4*ti+1}], v171, {WS}, s{sa} offen offset:{ti*1024} sc1", f"a{k}"))
                l.append((f"buffer_load_dwordx2 v[{st+4*ti+2}:{st+4*ti+3}], v171, {WS}, s{sa} offen offset:{ti*1024+512} sc1", f"a{k}"))
        l.append((f"s_add_u32 s{sa}, s{sa}, 4096", None))
        return l
    def w_loads(k):
        st = (k % NBUF)*36; sw_ = 47 if k < 12 else 49
        l = [(f"buffer_load_dwordx4 v[{st+16+4*ft}:{st+16+4*ft+3}], v144, {WS}, s{sw_} offen offset:{ft*1024}", f"w{k}") for ft in range(4)]
        l.append((f"buffer_load_dwordx4 v[{st+32}:{st+35}], v145, {WS}, s{sw_} offen", f"w{k}"))
        l.append((f"s_add_u32 s{sw_}, s{sw_}, 5120", None))
        return l
    def put(items):
        for t, tag in items:
            if tag: vm.issue(t, tag)
            else: e(t)
    e("s_barrier")
    for k in range(LOOK):
        put(act_loads(k)); put(w_loads(k))
    for i in range(80): e(f"v_accvgpr_write_b32 a{i}, 0")
    srd(e, S_X, 4, 2048*1280); srd(e, S_OUT, 34, 2048*1280)
    def kstep(k, items):
        vm.wait([f"a{k}", f"w{k}"])
        st = (k % NBUF)*36
        if k >= 12 and not NOO:
            lt = e.label("K2_v"); lo = e.label("K2_vo")
            e(f"s_mov_b32 s50, 0")
            e(f"{lt}:")
            e(f"v_max3_u32 v172, v{st}, v{st+1}, v{st+2}")
            for r in range(3, 15, 2): e(f"v_max3_u32 v172, v172, v{st+r}, v{st+r+1}")
            e(f"v_max_u32 v172, v172, v{st+15}")
            e("v_cmp_eq_u32 vcc, -1, v172")
            e(f"s_cbranch_vccz {lo}")
            e("s_add_u32 s50, s50, 1"); e("s_cmp_ge_u32 s50, 0x20000"); e(f"s_cbranch_scc1 {lo}")
            e(f"s_add_u32 s51, s53, {(k-12)*4096}")
            for ti in range(4):
                e(f"buffer_load_dwordx2 v[{st+4*ti}:{st+4*ti+1}], v171, {WS}, s51 offen offset:{ti*1024} sc1")
                e(f"buffer_load_dwordx2 v[{st+4*ti+2}:{st+4*ti+3}], v171, {WS}, s51 offen offset:{ti*1024+512} sc1")
            e("s_waitcnt vmcnt(0)")
            e(f"s_branch {lt}")
            e(f"{lo}:")
        mf = []
        for ti in range(4):
            for ft in range(5):
                a = (ti*5+ft)*4
                mf.append(f"v_mfma_f32_16x16x32_bf16 a[{a}:{a+3}], v[{st+16+4*ft}:{st+16+4*ft+3}], v[{st+4*ti}:{st+4*ti+3}], a[{a}:{a+3}]")
        n = len(items); pos = [int((j+0.5)*20/max(n,1)) for j in range(n)]
        for i, m in enumerate(mf):
            if not NOMFMA: e(m)
            for j in range(n):
                if pos[j] == i:
                    t, tag = items[j]
                    if tag: vm.issue(t, tag)
                    else: e(t)
    e("s_mov_b32 s53, s48")
    for k in range(17):
        nk = k + LOOK
        items = (act_loads(nk) + w_loads(nk)) if nk < 17 else []
        if k == 12:
            stamp(e, 3)
            e("s_mov_b32 s43, 0xCCCD")
            e(f"s_lshl_b32 s41, s{S_RB64}, 6"); e(f"s_lshl_b32 s42, s{S_WAVE}, 4"); e("s_add_u32 s41, s41, s42")
            e(f"s_mul_i32 s44, s{S_CG}, 160")
            for it in range(5):
                e(f"v_add_u32 v166, {it*64}, v{VL}"); e("v_mul_lo_u32 v167, v166, s43"); e("v_lshrrev_b32 v167, 20, v167")
                e("v_mul_u32_u24 v168, 20, v167"); e("v_sub_u32 v168, v166, v168")
                e("v_add_u32 v169, s41, v167"); e("v_mul_u32_u24 v169, 1280, v169"); e("v_lshlrev_b32 v170, 3, v168"); e("v_add_u32 v169, v169, v170"); e(f"v_add_u32 v{156+it}, s44, v169")
                e("v_add_u32 v169, s42, v167"); e("v_mul_u32_u24 v169, 336, v169"); e("v_lshlrev_b32 v170, 4, v168"); e(f"v_add_u32 v{161+it}, v169, v170")
                vm.issue(f"buffer_load_dwordx2 v[{146+2*it}:{147+2*it}], v{156+it}, s[{S_X}:{S_X+3}], 0 offen", "x")
        kstep(k, items)
        if k == 12: stamp(e, 4)
    stamp(e, 5)
    e(f"v_and_b32 v166, 15, v{VL}"); e(f"v_lshrrev_b32 v167, 4, v{VL}")
    e(f"v_mul_u32_u24 v166, 336, v166"); e("v_lshlrev_b32 v167, 4, v167"); e("v_add_u32 v166, v166, v167")
    e(f"s_mul_i32 s41, s{S_WAVE}, 21504"); e("v_add_u32 v166, s41, v166")
    e("s_nop 7")
    for ti in range(4):
        for ft in range(5):
            a = (ti*5+ft)*4
            e(f"ds_write_b128 v166, a[{a}:{a+3}] offset:{ti*16*336 + ft*64}")
    vm.wait("x", "lgkmcnt(0)"); e("s_barrier")
    for it in range(5):
        for w in range(4):
            e(f"ds_read_b128 v[{16*it+4*w}:{16*it+4*w+3}], v{161+it} offset:{w*21504}")
    for it in range(5):
        e(f"s_waitcnt lgkmcnt({min(15,4*(4-it))})")
        b = 16*it
        for w in range(1, 4):
            e(f"v_pk_add_f32 v[{b}:{b+1}], v[{b}:{b+1}], v[{b+4*w}:{b+4*w+1}]"); e(f"v_pk_add_f32 v[{b+2}:{b+3}], v[{b+2}:{b+3}], v[{b+4*w+2}:{b+4*w+3}]")
        x0 = 146+2*it
        e(f"v_lshlrev_b32 v100, 16, v{x0}"); e(f"v_and_b32 v101, 0xffff0000, v{x0}"); e(f"v_lshlrev_b32 v102, 16, v{x0+1}"); e(f"v_and_b32 v103, 0xffff0000, v{x0+1}")
        e(f"v_pk_add_f32 v[{b}:{b+1}], v[{b}:{b+1}], v[100:101]"); e(f"v_pk_add_f32 v[{b+2}:{b+3}], v[{b+2}:{b+3}], v[102:103]")
        e(f"v_cvt_pk_bf16_f32 v{b+4}, v{b}, v{b+1}"); e(f"v_cvt_pk_bf16_f32 v{b+5}, v{b+2}, v{b+3}")
        e(f"buffer_store_dwordx2 v[{b+4}:{b+5}], v{156+it}, s[{S_OUT}:{S_OUT+3}], 0 offen")
    if STAMPS: e("s_waitcnt vmcnt(0)")
    stamp(e, 6)
    stamp_flush_part(e, 2, [0,3,4,5,6], S_WS, 33, 0, 170)
    e("s_endpgm")
    e("K2_OW:")
    e(f"s_setprio {PRIO}")
    if NOO:
        e("s_barrier"); e("s_endpgm")
    vm = Vm(e)
    e(f"v_and_b32 v144, 15, v{VL}"); e(f"v_lshrrev_b32 v145, 4, v{VL}")
    e(f"v_lshlrev_b32 v146, 5, v{VL}"); e(f"v_lshlrev_b32 v147, 3, v{VL}"); e(f"v_lshlrev_b32 v148, 4, v{VL}")
    PB = 0
    e(f"s_lshl_b32 s40, s{S_WAVE}, 1")
    for pp in range(2):
        e(f"s_add_u32 s41, s40, {pp}"); e("s_lshl_b32 s41, s41, 5"); e(f"s_add_u32 s41, s41, s{S_HEAD}"); e("s_mul_i32 s41, s41, 5120"); e(f"s_add_u32 s41, s41, {OFF_KVP}")
        for dt in range(2):
            b = PB + pp*24 + dt*12
            if dt == 1: e("s_add_u32 s41, s41, 2560")
            vm.issue(f"buffer_load_dwordx4 v[{b}:{b+3}], v146, {WS}, s41 offen", "po")
            vm.issue(f"buffer_load_dwordx4 v[{b+4}:{b+7}], v146, {WS}, s41 offen offset:16", "po")
            vm.issue(f"buffer_load_dwordx2 v[{b+8}:{b+9}], v147, {WS}, s41 offen offset:2048", "po")
    QB = 48
    e("v_lshlrev_b32 v149, 4, v144"); e("v_min_u32 v150, 2, v145"); e("v_lshlrev_b32 v150, 8, v150"); e("v_add_u32 v150, v150, v149")
    e(f"s_lshl_b32 s41, s{S_HEAD}, 7"); e(f"s_lshl_b32 s42, s{S_RB256}, 4"); e("s_add_u32 s41, s41, s42"); e(f"s_lshl_b32 s42, s{S_WAVE}, 2"); e("s_add_u32 s41, s41, s42")
    e("s_mul_i32 s41, s41, 768"); e(f"s_add_u32 s41, s41, {OFF_QF}")
    for i in range(4):
        vm.issue(f"buffer_load_dwordx4 v[{QB+4*i}:{QB+4*i+3}], v150, {WS}, s41 offen offset:{i*768}", "q")
    srd(e, S_WPHI, 38, 32*800)
    e(f"s_cmp_eq_u32 s{S_WAVE}, 0"); e("s_cbranch_scc0 K2_nophi")
    e(f"s_mul_i32 s41, s{S_HEAD}, 800"); e(f"s_mov_b32 m0, {LDS_PHI}")
    e("s_mov_b32 exec_hi, 0x3ffff")
    vm.issue(f"buffer_load_dwordx4 v148, s[{S_WPHI}:{S_WPHI+3}], s41 offen lds", "phi", cond=True)
    e("s_mov_b64 exec, -1")
    e("v_mov_b32 v152, 0"); e("v_mov_b32 v153, 0"); e("v_mov_b32 v154, 0"); e("v_mov_b32 v155, 0")
    e(f"v_add_u32 v151, {LDS_PHI+800}, v148")
    e("s_mov_b32 exec_hi, 0x3")
    e("ds_write_b128 v151, v[152:155]")
    e("s_mov_b64 exec, 1")
    e(f"v_mov_b32 v151, {LDS_CNT}")
    e("ds_write_b128 v151, v[152:155]")
    e("s_mov_b64 exec, -1")
    e("s_waitcnt lgkmcnt(0)")
    e("K2_nophi:")
    e("s_barrier")
    e(f"v_mul_u32_u24 v156, 48, v{VL}"); e(f"s_mul_i32 s41, s{S_WAVE}, 6144"); e(f"s_add_u32 s41, s41, {LDS_KVX}"); e("v_add_u32 v156, s41, v156")
    e(f"v_mul_u32_u24 v157, 48, v{VL}"); e(f"v_add_u32 v157, {LDS_KVX}, v157")
    e("v_and_b32 v158, 1, v144"); e("v_and_b32 v159, 2, v144"); e("v_lshlrev_b32 v159, 1, v159"); e("v_add_u32 v158, v158, v159"); e("v_add_u32 v158, 2, v158")
    e("v_lshlrev_b32 v159, 4, v145"); e("v_add_u32 v158, v158, v159"); e("v_mul_u32_u24 v158, 48, v158"); e(f"v_add_u32 v158, {LDS_KVX+3072}, v158")
    e("v_add_u32 v159, 10, v159"); e("v_mul_u32_u24 v159, 48, v159"); e(f"v_add_u32 v159, {LDS_KVX+3072}, v159")
    e("v_lshrrev_b32 v160, 2, v144"); e("v_mul_u32_u24 v160, 5, v160"); e("v_and_b32 v161, 3, v144"); e("v_add_u32 v161, v161, v160"); e("v_add_u32 v162, 4, v160")
    e("v_mul_u32_u24 v160, 320, v145")
    e("v_lshlrev_b32 v161, 1, v161"); e("v_add_u32 v161, v161, v160"); e(f"v_add_u32 v161, {LDS_PHI}, v161")
    e("v_lshlrev_b32 v162, 1, v162"); e("v_add_u32 v162, v162, v160"); e(f"v_add_u32 v162, {LDS_PHI}, v162")
    e(f"s_mul_i32 s41, s{S_HEAD}, 5")
    for dst, gsrc in ((163, "v145"), (164, None)):
        if gsrc: e(f"v_add_u32 v165, s41, {gsrc}")
        else: e("s_add_u32 s42, s41, 4"); e("v_mov_b32 v165, s42")
        e("v_lshrrev_b32 v166, 3, v165"); e("v_lshlrev_b32 v166, 12, v166")
        e("v_and_b32 v167, 7, v165"); e("v_lshlrev_b32 v167, 7, v167"); e("v_add_u32 v166, v166, v167")
        e("v_lshlrev_b32 v167, 3, v144"); e(f"v_add_u32 v{dst}, v166, v167")
    e(f"s_lshl_b32 s52, s{S_RB256}, 2"); e(f"s_add_u32 s52, s52, s{S_WAVE}"); e("s_mul_i32 s52, s52, 68"); e("s_add_u32 s52, s52, 48"); e("s_lshl_b32 s52, s52, 12"); e(f"s_add_u32 s52, s52, {OFF_ACT}")
    e(f"v_mov_b32 v168, {LDS_CNT}"); e("v_mov_b32 v169, 1")
    vm.wait("po")
    for k in range(0, 24, 2):
        if k % 12 < 10: e(f"v_pk_add_f32 v[{PB+k}:{PB+k+1}], v[{PB+k}:{PB+k+1}], v[{PB+24+k}:{PB+25+k}]")
    for dt in range(2):
        for k in range(3):
            e(f"ds_write_b128 v156, v[{PB+dt*12+4*k}:{PB+dt*12+4*k+3}] offset:{dt*3072+16*k}")
    vm.waitall("lgkmcnt(0)")
    e("s_mov_b64 exec, 1"); e("ds_add_u32 v168, v169"); e("s_mov_b64 exec, -1")
    e("K2_ospin:")
    e("ds_read_b32 v170, v168"); e("s_waitcnt lgkmcnt(0)"); e("v_readfirstlane_b32 s42, v170")
    e("s_cmp_ge_u32 s42, 4"); e("s_cbranch_scc0 K2_ospin")
    stamp(e, 1)
    SM = 64
    for tl, av in enumerate((157, 158, 159)):
        for w in range(4):
            T = SM + 12*tl if w == 0 else 100 + 12*(w-1)
            for k in range(3):
                e(f"ds_read_b128 v[{T+4*k}:{T+4*k+3}], v{av} offset:{w*6144+16*k}")
        e("s_waitcnt lgkmcnt(0)")
        for w in range(1, 4):
            for k in range(0, 10, 2):
                e(f"v_pk_add_f32 v[{SM+12*tl+k}:{SM+12*tl+k+1}], v[{SM+12*tl+k}:{SM+12*tl+k+1}], v[{100+12*(w-1)+k}:{100+12*(w-1)+k+1}]")
    for tl, av in enumerate((161, 162)):
        for u in range(8):
            e(f"ds_read_u16 v{100+tl*8+u}, v{av} offset:{u*40}")
    stamp(e, 9)
    AK = 0
    for tl in range(3):
        D = SM + 12*tl
        for k in range(4): e(f"v_cvt_pk_bf16_f32 v{AK+tl*8+k}, v{D+2*k}, v{D+2*k+1}")
        e(f"v_cvt_pk_bf16_f32 v{AK+tl*8+4}, v{D+8}, v{D+9}")
        for k in range(5, 8): e(f"v_mov_b32 v{AK+tl*8+k}, 0")
    AP = 24
    e("s_waitcnt lgkmcnt(0)")
    for tl in range(2):
        for k in range(4):
            e(f"v_lshl_or_b32 v{AP+tl*4+k}, v{100+tl*8+2*k+1}, 16, v{100+tl*8+2*k}")
    e(f"v_mov_b32 v32, {LOG2E!r}")
    def otile(i, R):
        s = []; a = s.append
        B = QB + 4*i
        P = R; EM = R+8; T = R+13; B0 = R+8+10;
        P = R; EM = R+8; T = R+14; B0 = R+20; B1 = R+24; N = R+28
        a(f"v_mfma_f32_16x16x32_bf16 v[{P}:{P+3}], v[{AP}:{AP+3}], v[{B}:{B+3}], 0")
        a(f"v_mfma_f32_16x16x32_bf16 v[{P+4}:{P+7}], v[{AP+4}:{AP+7}], v[{B}:{B+3}], 0")
        a(f"v_max3_f32 v{T}, v{P}, v{P+1}, v{P+2}"); a(f"v_min3_f32 v{T+1}, v{P}, v{P+1}, v{P+2}")
        a(f"v_max3_f32 v{T}, v{T}, v{P+3}, v{P+4}"); a(f"v_min3_f32 v{T+1}, v{T+1}, v{P+3}, v{P+4}")
        for sw in ("v_permlane16_swap_b32", "v_permlane32_swap_b32"):
            a(f"v_mov_b32 v{T+2}, v{T}"); a(f"v_mov_b32 v{T+3}, v{T+1}")
            a(f"{sw} v{T}, v{T+2}"); a(f"{sw} v{T+1}, v{T+3}")
            a(f"v_max_f32 v{T}, v{T}, v{T+2}"); a(f"v_min_f32 v{T+1}, v{T+1}, v{T+3}")
        a(f"v_mul_f32 v{T}, {-LOG2E!r}, v{T}"); a(f"v_mul_f32 v{T+1}, {LOG2E!r}, v{T+1}")
        for k in range(5): a(f"v_fma_f32 v{EM+k}, -v{P+k}, v32, v{T+1}")
        for k in range(5): a(f"v_fma_f32 v{P+k}, v{P+k}, v32, v{T}")
        for k in range(5): a(f"v_exp_f32 v{P+k}, v{P+k}")
        for k in range(5): a(f"v_exp_f32 v{EM+k}, v{EM+k}")
        a(f"v_add_f32 v{T}, v{P}, v{P+1}"); a(f"v_add_f32 v{T+1}, v{EM}, v{EM+1}")
        for k in range(2, 5):
            a(f"v_add_f32 v{T}, v{T}, v{P+k}"); a(f"v_add_f32 v{T+1}, v{T+1}, v{EM+k}")
        for sw in ("v_permlane16_swap_b32", "v_permlane32_swap_b32"):
            a(f"v_mov_b32 v{T+2}, v{T}"); a(f"v_mov_b32 v{T+3}, v{T+1}")
            a(f"{sw} v{T}, v{T+2}"); a(f"{sw} v{T+1}, v{T+3}")
            a(f"v_add_f32 v{T}, v{T}, v{T+2}"); a(f"v_add_f32 v{T+1}, v{T+1}, v{T+3}")
        a(f"v_rcp_f32 v{T}, v{T}"); a(f"v_rcp_f32 v{T+1}, v{T+1}")
        for k in range(5): a(f"v_mul_f32 v{P+k}, v{P+k}, v{T}")
        for k in range(5): a(f"v_mul_f32 v{EM+k}, v{EM+k}, v{T+1}")
        a(f"v_cvt_pk_bf16_f32 v{B0}, v{P}, v{P+1}"); a(f"v_cvt_pk_bf16_f32 v{B0+1}, v{P+2}, v{P+3}"); a(f"v_cvt_pk_bf16_f32 v{B0+2}, v{P+4}, v{EM}"); a(f"v_cvt_pk_bf16_f32 v{B0+3}, v{EM+1}, v{EM+2}")
        a(f"v_cvt_pk_bf16_f32 v{B1}, v{EM+3}, v{EM+4}"); a(f"v_mov_b32 v{B1+1}, 0"); a(f"v_mov_b32 v{B1+2}, 0"); a(f"v_mov_b32 v{B1+3}, 0")
        for tl in range(3):
            d = N + 4*tl
            a(f"v_mfma_f32_16x16x32_bf16 v[{d}:{d+3}], v[{AK+tl*8}:{AK+tl*8+3}], v[{B0}:{B0+3}], 0")
        for tl in range(3):
            d = N + 4*tl
            a(f"v_mfma_f32_16x16x32_bf16 v[{d}:{d+3}], v[{AK+tl*8+4}:{AK+tl*8+7}], v[{B1}:{B1+3}], v[{d}:{d+3}]")
        a(f"v_add_f32 v{N+8}, {1e-6!r}, v{N+8}"); a(f"v_rcp_f32 v{N+8}, v{N+8}")
        for k in range(8): a(f"v_mul_f32 v{N+k}, v{N+k}, v{N+8}")
        a(f"v_cvt_pk_bf16_f32 v{P}, v{N}, v{N+1}"); a(f"v_cvt_pk_bf16_f32 v{P+1}, v{N+2}, v{N+3}"); a(f"v_cvt_pk_bf16_f32 v{P+2}, v{N+4}, v{N+5}"); a(f"v_cvt_pk_bf16_f32 v{P+3}, v{N+6}, v{N+7}")
        def st():
            e(f"s_add_u32 s41, s52, {i*1024}")
            e(f"buffer_store_dwordx2 v[{P}:{P+1}], v163, {WS}, s41 offen sc1")
            e("s_mov_b64 exec, 0xffff")
            e(f"buffer_store_dwordx2 v[{P+2}:{P+3}], v164, {WS}, s41 offen sc1")
            e("s_mov_b64 exec, -1")
        s.append(st)
        return s
    zip_streams(e, [otile(0, 64), otile(1, 104)])
    stamp(e, 7)
    zip_streams(e, [otile(2, 64), otile(3, 104)])
    stamp(e, 8)
    if STAMPS: e("s_waitcnt vmcnt(0)")
    stamp(e, 2)
    stamp_flush_part(e, 2, [1,2,7,8,9], S_WS, 33, 4, 170)
    e("K2_end:")
    e("CODE_END:")
    return kernel("k2_kernel", e.text(), vgpr=176, accum=176, agpr=80, sgpr=102)
```

```python
import sys
from asmgen import *
from gen_common import *
from k1 import gen_k1
from k2 import gen_k2, K2_LDS
if __name__ == "__main__":
    out = sys.argv[1] if len(sys.argv) > 1 else "full.s"
    ks = [("k1_kernel", 256, 256, 163840), ("k2_kernel", 256, 512, K2_LDS)]
    s = header(ks) + gen_k1() + gen_k2()
    open(out, "w").write(s)
```

```python
from asmgen import *
from gen_common import *
import os
OSC = " sc1" if int(os.environ.get("K1_SC1", 1)) else ""

SLOT = 53248
NST = 10
S_X = 8; S_W = 12; S_W2 = 16; S_WS = 20
S_WAVE = 24; S_RB = 25; S_CG = 26; S_T0 = 27; S_COL0 = 28; S_COL1 = 29
S_LX = 34; S_LW = 35; S_LW2 = 36; S_N = 37
S_DSLOT = 40; S_XO = 41; S_WO = 42; S_TMP = 43; S_STG = 44; S_RSLOT = 45; S_T46 = 46; S_DELTA = 47; S_M0X = 48; S_M0W = 49; S_M0W2 = 50
S_ISKV = 51; S_EXTRA = 52; S_DBG = 56
S_KROT = 38; S_KST = 39; S_HOOK = 33
S_PTR = 4
VL = 255
POLL_STAGE = 5; FLAG_STAGE = 1
NFLAG = 78

def zip_ratio(e, main, side):
    n, m = len(main), len(side)
    j = 0
    for i, it in enumerate(main):
        it() if callable(it) else e(it)
        while j < m and (j+1)*n <= (i+1)*m + 0:
            side[j]() if callable(side[j]) else e(side[j]); j += 1
    while j < m:
        side[j]() if callable(side[j]) else e(side[j]); j += 1

def zip2(e, a, b):
    n = max(len(a), len(b))
    for i in range(n):
        for s in (a, b):
            if i < len(s): s[i]() if callable(s[i]) else e(s[i])

def place(sched, items, f0, f1):
    M=len(sched); n=len(items)
    for k,it in enumerate(items):
        pos = int((f0 + (f1-f0)*(k+0.5)/n)*M); pos=min(max(pos,0),M-1)
        sched[pos].append(it)
def place_dma(sched, groups, f0, f1):
    M=len(sched); n=len(groups)
    for k,(m0w, ld) in enumerate(groups):
        pos = int((f0 + (f1-f0)*(k+0.5)/n)*M); pos=min(max(pos,0),M-2)
        sched[pos].append(m0w); sched[pos+1].insert(0, ld)

def adv_dma_list(wstride, two_w):
    l = [f"s_add_u32 s{S_KST}, s{S_KST}, 1", f"s_cmp_ge_u32 s{S_KST}, 10\ns_cselect_b32 s{S_KST}, 0, s{S_KST}",
         f"s_lshl_b32 s{S_XO}, s{S_KST}, 7", f"s_mul_i32 s{S_WO}, s{S_KST}, {64*wstride}", f"s_add_u32 s{S_DSLOT}, s{S_DSLOT}, {SLOT}",
         f"s_cmp_ge_u32 s{S_DSLOT}, {3*SLOT}\ns_cselect_b32 s{S_TMP}, {3*SLOT}, 0", f"s_sub_u32 s{S_DSLOT}, s{S_DSLOT}, s{S_TMP}",
         f"s_add_u32 s{S_M0X}, s{S_DSLOT}, s{S_LX}", f"s_add_u32 s{S_M0W}, s{S_DSLOT}, s{S_LW}"]
    if two_w: l.append(f"s_add_u32 s{S_M0W2}, s{S_DSLOT}, s{S_LW2}")
    return l

def dma_init(e, two_w, wstride):
    e(f"s_mov_b32 s{S_DSLOT}, 0"); e(f"s_mov_b32 s{S_KST}, s{S_KROT}"); e(f"s_lshl_b32 s{S_XO}, s{S_KST}, 7"); e(f"s_mul_i32 s{S_WO}, s{S_KST}, {64*wstride}")
    e(f"s_mov_b32 s{S_M0X}, s{S_LX}"); e(f"s_mov_b32 s{S_M0W}, s{S_LW}")
    if two_w: e(f"s_mov_b32 s{S_M0W2}, s{S_LW2}")
def dma_full(e, dg, wstride, two_w):
    for (a,l) in dg: e(a); e(l)
    for s in adv_dma_list(wstride, two_w): e(s)

def emit_mainloop(e, name, NT, NF, XF, WF, dg, reads, bump, wstride, two_w, late_setup, late_groups, is_ffn, first_extra, VP, RSPAN=0.6):
    NTOT = len(dg); half = NTOT//2; M = NT*NF
    def mfmas(setn):
        out=[]
        for tt in range(NT):
            for j in range(NF):
                a = (tt*NF+j)*4
                out.append(f"v_mfma_f32_16x16x32_bf16 v[{a}:{a+3}], a[{WF+(setn*NF+j)*4}:{WF+(setn*NF+j)*4+3}], a[{XF+(setn*NT+tt)*4}:{XF+(setn*NT+tt)*4+3}], v[{a}:{a+3}]")
        return out
    def emit(mf, sched):
        for i,m in enumerate(mf):
            e(m)
            for s in sched[i]: e(s)
    upd = [f"s_add_u32 s{S_T46}, s{S_RSLOT}, {SLOT}", f"s_cmp_ge_u32 s{S_T46}, {3*SLOT}\ns_cselect_b32 s{S_DELTA}, {3*SLOT}, 0", f"s_sub_u32 s{S_T46}, s{S_T46}, s{S_DELTA}",
           f"s_sub_u32 s{S_DELTA}, s{S_T46}, s{S_RSLOT}", f"s_mov_b32 s{S_RSLOT}, s{S_T46}"]
    def k0(dmas, adv, groups=None, last=None):
        sched=[[] for _ in range(M)]
        place(sched, reads(1,1), 0.0, RSPAN)
        if dmas: place_dma(sched, dmas, 0.05, 0.85)
        if groups: place_groups(sched, groups)
        place(sched, upd, 0.0, 0.3)
        place(sched, [f"v_add_u32 v{r}, s{S_DELTA}, v{r}" for r in bump], RSPAN+0.03, 0.98)
        if adv: place(sched, adv_dma_list(wstride, two_w), 0.87, 1.0)
        if last: sched[M-1].append(last)
        emit(mfmas(0), sched)
    def k1(dmas, groups=None, tail=None, do_reads=True):
        sched=[[] for _ in range(M)]
        if do_reads: place(sched, reads(0,0), 0.0, RSPAN)
        if dmas: place_dma(sched, dmas, 0.05, 0.85)
        if groups: place_groups(sched, groups)
        if tail:
            place(sched, tail[:-1], 0.93, 0.95); sched[M-1].append(tail[-1])
        emit(mfmas(1), sched)
    def place_groups(sched, groups):
        n = len(groups)
        for k,(setup, ld) in enumerate(groups):
            pos = int((0.05 + 0.85*(k+0.5)/n)*M); pos = min(max(pos,1), M-1)
            for t in setup: sched[pos-1].append(t)
            sched[pos].append(ld)
    def wait_extra(tag, base):
        e(f"s_cbranch_scc0 {name}_wx{tag}")
        e(f"s_waitcnt vmcnt({base}) lgkmcnt(0)")
        e(f"{name}_w0{tag}:")
    def wait_extra_ool(tag, base, vals):
        e(f"{name}_wx{tag}:")
        for v in vals:
            lab = e.label(f"{name}_x")
            e(f"s_cmp_eq_u32 s{S_EXTRA}, {v}"); e(f"s_cbranch_scc0 {lab}")
            e(f"s_waitcnt vmcnt({min(63, base+v)}) lgkmcnt(0)"); e(f"s_mov_b32 s{S_EXTRA}, 0"); e(f"s_branch {name}_w0{tag}")
            e(f"{lab}:")
        e(f"s_waitcnt vmcnt({base}) lgkmcnt(0)"); e(f"s_mov_b32 s{S_EXTRA}, 0"); e(f"s_branch {name}_w0{tag}")
    stamp(e, 1)
    if STAMPS == 1:
        e("s_memtime s[100:101]"); e("s_waitcnt lgkmcnt(0)"); e("s_mov_b32 s96, s100")
    e(f"v_lshlrev_b32 v{VP+1}, 7, v{VL}"); e(f"v_mov_b32 v{VP}, 0")
    for s in reads(0,0): e(s)
    first_hook = FLAG_STAGE if is_ffn else POLL_STAGE
    e(f"s_cmp_eq_u32 s{S_WAVE}, 0"); e(f"s_cselect_b32 s{S_HOOK}, {first_hook}, 99")
    e("s_waitcnt lgkmcnt(0)")
    e(f"s_mov_b32 s{S_STG}, 0"); e(f"s_mov_b32 s{S_RSLOT}, 0"); e(f"s_mov_b32 s{S_EXTRA}, {first_extra}")
    e(f"{name}_loop:")
    k0(dg[half:], True, last=f"s_cmp_eq_u32 s{S_EXTRA}, 0")
    wait_extra("a", NTOT)
    e("s_barrier")
    e(f"s_cmp_eq_u32 s{S_STG}, s{S_HOOK}"); e(f"s_cbranch_scc1 {name}_hook")
    e(f"{name}_go:")
    if STAMPS == 3:
        e("s_memrealtime s[100:101]"); e("s_waitcnt lgkmcnt(0)"); e(f"s_mov_b32 m0, s{S_STG}"); e("s_nop 0"); e("s_movreld_b32 s68, s100")
    k1(dg[:half], tail=[f"s_add_u32 s{S_STG}, s{S_STG}, 1", f"s_cmp_lt_u32 s{S_STG}, 7"])
    e("s_waitcnt lgkmcnt(0)")
    e(f"s_cbranch_scc1 {name}_loop")
    ng = len(late_groups); n1 = min(half, ng); n2 = min(NTOT-half, ng-n1); n3 = ng-n1-n2
    g1 = late_groups[:n1]; g2 = late_groups[n1:n1+n2]; g3 = late_groups[n1+n2:]
    k0(dg[half:], False, last=f"s_cmp_eq_u32 s{S_EXTRA}, 0")
    wait_extra("b", 0 + (NTOT - half) + half)
    e(f"s_cmp_eq_u32 s{S_WAVE}, 0"); e(f"s_cbranch_scc1 {name}_chk")
    e(f"{name}_bar7:")
    e("s_barrier")
    if STAMPS == 3:
        e("s_memrealtime s[100:101]"); e("s_waitcnt lgkmcnt(0)"); e("s_mov_b32 s75, s100")
    late_setup()
    k1(None, groups=g1)
    e("s_waitcnt lgkmcnt(0)")
    k0(None, False, groups=g2)
    e(f"s_waitcnt vmcnt({n1+n2}) lgkmcnt(0)")
    e("s_barrier")
    if STAMPS == 3:
        e("s_memrealtime s[100:101]"); e("s_waitcnt lgkmcnt(0)"); e("s_mov_b32 s76, s100")
    k1(None, groups=g3 if g3 else None)
    e("s_waitcnt lgkmcnt(0)")
    k0(None, False)
    e("s_waitcnt lgkmcnt(0)")
    if STAMPS == 3:
        e("s_memrealtime s[100:101]"); e("s_waitcnt lgkmcnt(0)"); e("s_mov_b32 s77, s100")
    k1(None, do_reads=False)
    e(f"s_branch {name}_done")
    wait_extra_ool("a", NTOT, sorted(set([1] + ([first_extra] if first_extra else []))))
    wait_extra_ool("b", NTOT, [1])
    e(f"{name}_chk:")
    e(f"s_mov_b32 s53, 0")
    e(f"{name}_chk2:")
    e("s_mov_b64 exec, 3")
    e(f"v_cmp_ne_u32 vcc, {NFLAG}, v{VP}")
    e("s_mov_b64 exec, -1")
    e("s_nop 1")
    e(f"s_cbranch_vccz {name}_bar7")
    e("s_add_u32 s53, s53, 1"); e("s_cmp_ge_u32 s53, 0x40000"); e(f"s_cbranch_scc1 {name}_bar7")
    e("s_sleep 8")
    e("s_mov_b64 exec, 3")
    e(f"buffer_load_dword v{VP}, v{VP+1}, s[{S_DBG}:{S_DBG+3}], 0 offen sc1")
    e("s_mov_b64 exec, -1")
    e("s_waitcnt vmcnt(0)")
    e(f"s_branch {name}_chk2")
    e(f"{name}_hook:")
    if is_ffn:
        e(f"s_cmp_eq_u32 s{S_STG}, {FLAG_STAGE}"); e(f"s_cbranch_scc0 {name}_poll")
        e(f"s_and_b32 s53, s{S_N}, 1"); e("s_lshl_b32 s53, s53, 7"); e(f"v_mov_b32 v{VP+1}, s53"); e(f"v_mov_b32 v{VP}, 1")
        e("s_mov_b64 exec, 1")
        e(f"buffer_atomic_add v{VP}, v{VP+1}, s[{S_DBG}:{S_DBG+3}], 0 offen")
        e("s_mov_b64 exec, -1")
        e(f"s_mov_b32 s{S_HOOK}, {POLL_STAGE}")
        e(f"s_mov_b32 s{S_EXTRA}, 1"); e(f"s_branch {name}_go")
        e(f"{name}_poll:")
    e(f"v_lshlrev_b32 v{VP+1}, 7, v{VL}")
    e("s_mov_b64 exec, 3")
    e(f"buffer_load_dword v{VP}, v{VP+1}, s[{S_DBG}:{S_DBG+3}], 0 offen sc1")
    e("s_mov_b64 exec, -1")
    e(f"s_mov_b32 s{S_HOOK}, 99")
    e(f"s_mov_b32 s{S_EXTRA}, 1"); e(f"s_branch {name}_go")
    e(f"{name}_done:")
    e("s_nop 7")
    stamp(e, 2)
    if STAMPS == 1:
        e("s_memtime s[100:101]"); e("s_waitcnt lgkmcnt(0)"); e("s_sub_u32 s96, s100, s96")
        stamp_flush_part(e, 1, [6], S_WS, S_WAVE, 0, 250)
    flush3(e)

def x_dma_addr(e, DXA, NXD):
    e(f"v_lshrrev_b32 v200, 3, v{VL}"); e(f"v_lshrrev_b32 v201, 4, v{VL}"); e(f"v_and_b32 v202, 7, v{VL}")
    e(f"s_mul_i32 s30, s{S_WAVE}, {NXD*8}"); e(f"s_add_u32 s30, s30, s{S_T0}")
    e(f"s_mul_i32 s31, s{S_WAVE}, {NXD*4}")
    e("v_add_u32 v204, s30, v200"); e("v_mul_u32_u24 v204, 1280, v204")
    for par in range(2):
        e(f"v_add_u32 v203, {4*par}, v201"); e("v_add_u32 v203, s31, v203"); e("v_and_b32 v203, 7, v203"); e("v_xor_b32 v203, v203, v202"); e("v_lshlrev_b32 v203, 4, v203")
        e(f"v_add_u32 v{205+par}, v203, v204")
    for i in range(NXD):
        e(f"v_add_u32 v{DXA+i}, {8*i*1280}, v{205+(i&1)}")
    e(f"s_mul_i32 s{S_LX}, s{S_WAVE}, {NXD*1024}")

def x_read_addr(e, XRD, tok_off_s):
    e(f"v_and_b32 v200, 15, v{VL}"); e(f"v_lshrrev_b32 v201, 4, v{VL}")
    e("v_lshrrev_b32 v202, 1, v200"); e("v_xor_b32 v202, v202, v201"); e("v_and_b32 v202, 7, v202"); e("v_lshlrev_b32 v202, 4, v202")
    e("v_lshlrev_b32 v203, 7, v200"); e("v_add_u32 v203, v203, v202"); e(f"v_add_u32 v{XRD}, s{tok_off_s}, v203"); e(f"v_xor_b32 v{XRD+1}, 64, v{XRD}")

def x_reads(XF, NT, XRD, ks, setn):
    return [f"ds_read_b128 a[{XF+(setn*NT+tt)*4}:{XF+(setn*NT+tt)*4+3}], v{XRD+ks} offset:{tt*2048}" for tt in range(NT)]

def load_stats(e, NT, dst_v, tok0_s, tmp):
    e(f"v_and_b32 v{tmp}, 15, v{VL}"); e(f"v_add_u32 v{tmp}, s{tok0_s}, v{tmp}"); e(f"v_lshlrev_b32 v{tmp}, 3, v{tmp}")
    for tt in range(NT):
        e(f"buffer_load_dwordx2 v[{dst_v+2*tt}:{dst_v+2*tt+1}], v{tmp}, s[{S_WS}:{S_WS+3}], 0 offen offset:{OFF_STATS + tt*128} sc1")

ROT = int(os.environ.get("K1_ROT", 0))
def krot(e):
    if not ROT:
        e(f"s_mov_b32 s{S_KROT}, 0"); return
    e(f"s_mul_i32 s53, s{S_CG}, 3"); e(f"s_add_u32 s53, s53, s{S_RB}"); e(f"s_add_u32 s53, s53, s{S_RB}"); e(f"s_add_u32 s53, s53, s{S_RB}")
    e(f"s_mul_hi_u32 s54, s53, {(1<<32)//10+1}"); e("s_mul_i32 s54, s54, 10"); e(f"s_sub_u32 s{S_KROT}, s53, s54")

def code_prefetch(e):
    e("s_getpc_b64 s[54:55]")
    l = e.label("PC")
    e(f"{l}:")
    e(f"s_sub_u32 s54, s54, {l}-k1_kernel"); e(f"s_subb_u32 s55, s55, 0")
    e("s_lshr_b32 s53, s2, 3"); e("s_lshl_b32 s53, s53, 11"); e("s_min_u32 s53, s53, CODE_END-k1_kernel-2048")
    e(f"s_lshl_b32 s60, s{S_WAVE}, 9"); e("s_add_u32 s53, s53, s60")
    e(f"v_lshlrev_b32 v200, 4, v{VL}"); e("v_add_u32 v200, s53, v200")
    e("s_mov_b32 exec_hi, 0")
    e("global_load_dwordx4 a[252:255], v200, s[54:55]")
    e("s_mov_b64 exec, -1")

def flush3(e):
    if STAMPS != 3: return
    lab = e.label("F3")
    e(f"s_cmp_eq_u32 s{S_WAVE}, 0"); e(f"s_cbranch_scc0 {lab}")
    e(f"s_lshl_b32 s100, s2, 6"); e(f"s_add_u32 s100, s100, {OFF_TS + 256*64}")
    e("s_mov_b64 exec, 1"); e("v_mov_b32 v251, 0")
    for i in range(10):
        e(f"v_mov_b32 v250, s{68+i}"); e(f"buffer_store_dword v250, v251, s[{S_WS}:{S_WS+3}], s100 offen offset:{24+4*i}")
    e("s_mov_b64 exec, -1"); e(f"{lab}:")

def sentinel(e):
    e("v_mov_b32 v240, -1"); e("v_mov_b32 v241, -1"); e(f"s_lshl_b32 s30, s{S_WAVE}, 6"); e(f"v_add_u32 v242, s30, v{VL}"); e("v_lshlrev_b32 v242, 3, v242")
    e("s_lshr_b32 s30, s2, 3"); e("s_mul_i32 s30, s30, 68"); e("s_add_u32 s30, s30, 48"); e("s_lshl_b32 s30, s30, 12")
    e("s_and_b32 s31, s2, 7"); e("s_mul_i32 s31, s31, 10240"); e("s_add_u32 s30, s30, s31"); e(f"s_add_u32 s30, s30, {OFF_ACT}")
    for k in range(5):
        e(f"buffer_store_dwordx2 v[240:241], v242, s[{S_WS}:{S_WS+3}], s30 offen sc1")
        if k < 4: e("s_add_u32 s30, s30, 2048")

def gen_ffn(e):
    NT, NF = 10, 4
    XF = 0; WF = XF + 2*NT*4
    CS = 112
    XRD = 160; WRD = 162; DXA = 164; DWA = 169
    ST = 174
    VP = 194
    SOFF = 80
    e("FFN:")
    krot(e)
    e(f"s_mul_i32 s{S_T0}, s{S_RB}, 160")
    e(f"s_load_dwordx2 s[4:5], s[0:1], {KA_WG}"); e(f"s_load_dwordx2 s[6:7], s[0:1], {KA_WU}"); e(f"s_load_dwordx2 s[60:61], s[0:1], {KA_WQKV}")
    x_dma_addr(e, DXA, 5)
    e(f"v_lshrrev_b32 v200, 4, v{VL}"); e(f"v_and_b32 v201, 15, v{VL}"); e("v_lshlrev_b32 v202, 1, v200")
    e(f"s_lshl_b32 s31, s{S_CG}, 8")
    e(f"s_lshl_b32 s32, s{S_WAVE}, 4")
    e("v_add_u32 v204, s32, v200"); e("v_mul_u32_u24 v204, 3072, v204"); e("v_add_u32 v204, s31, v204")
    for par in range(2):
        e(f"v_xor_b32 v203, {par<<3}, v202"); e("v_xor_b32 v203, v203, v201"); e("v_lshlrev_b32 v203, 4, v203"); e(f"v_add_u32 v{205+par}, v203, v204")
    for i in range(4): e(f"v_add_u32 v{DWA+i}, {4*i*3072}, v{205+((i>>1)&1)}")
    e(f"s_lshl_b32 s{S_LW}, s{S_WAVE}, 12"); e(f"s_add_u32 s{S_LW2}, s{S_LW}, {20480+16384}"); e(f"s_add_u32 s{S_LW}, s{S_LW}, 20480")
    e("s_waitcnt lgkmcnt(0)")
    srd(e, S_W, 4, 640*3072); srd(e, S_W2, 6, 640*3072)
    dg = []
    for i in range(5): dg.append((f"s_add_u32 m0, s{S_M0X}, {i*1024}", f"buffer_load_dwordx4 v{DXA+i}, s[{S_X}:{S_X+3}], s{S_XO} offen lds"))
    for i in range(4): dg.append((f"s_add_u32 m0, s{S_M0W}, {i*1024}", f"buffer_load_dwordx4 v{DWA+i}, s[{S_W}:{S_W+3}], s{S_WO} offen lds"))
    for i in range(4): dg.append((f"s_add_u32 m0, s{S_M0W2}, {i*1024}", f"buffer_load_dwordx4 v{DWA+i}, s[{S_W2}:{S_W2+3}], s{S_WO} offen lds"))
    dg = [dg[0],dg[5],dg[9],dg[1],dg[6],dg[10], dg[2],dg[7],dg[11],dg[3],dg[8],dg[12],dg[4]]
    dma_init(e, True, 3072)
    dma_full(e, dg, 3072, True)
    e("s_cmp_ge_u32 s78, 20"); e("s_cselect_b32 s30, 20, 0"); e("s_cselect_b32 s32, 1024, 0"); e("s_sub_u32 s30, s78, s30")
    e("s_cmp_ge_u32 s30, 16"); e("s_cselect_b32 s62, 0x40000000, 0")
    e("s_lshl_b32 s31, s79, 4"); e("s_add_u32 s30, s30, s31"); e("s_lshl_b32 s30, s30, 4"); e("s_add_u32 s30, s30, s32")
    e(f"s_lshl_b32 s31, s{S_WAVE}, 2"); e("s_add_u32 s30, s30, s31")
    e(f"v_lshrrev_b32 v200, 5, v{VL}"); e("v_add_u32 v196, s30, v200")
    e(f"v_and_b32 v197, 31, v{VL}")
    e("v_mul_u32_u24 v201, 1280, v196"); e("v_lshlrev_b32 v202, 3, v197"); e("v_add_u32 v201, v201, v202")
    e("s_mov_b32 s31, s62"); e("s_add_u32 s32, s31, 2560")
    for ps in range(2):
        for k in range(5):
            e(f"buffer_load_dwordx2 v[{ps*10+2*k}:{ps*10+2*k+1}], v201, s[{S_X}:{S_X+3}], s{31+ps} offen offset:{k*256}")
    e("s_cmp_ge_u32 s78, 24"); e("s_cbranch_scc1 FFN_uq")
    e("s_lshr_b32 s30, s78, 1"); e("s_and_b32 s63, s78, 1"); e("s_mul_i32 s31, s79, 6"); e("s_add_u32 s31, s31, s30")
    e("s_cmp_ge_u32 s30, 6"); e("s_cselect_b32 s30, 48, 30"); e("s_add_u32 s30, s30, s31")
    e("s_branch FFN_ud")
    e("FFN_uq:")
    e("s_mul_i32 s31, s79, 15"); e("s_add_u32 s31, s31, s78"); e("s_sub_u32 s31, s31, 24"); e("s_and_b32 s63, s31, 1"); e("s_lshr_b32 s31, s31, 1")
    udiv_const(e, 30, 31, 3)
    e("s_mul_i32 s33, s30, 3"); e("s_sub_u32 s33, s31, s33"); e("s_mul_i32 s33, s33, 10"); e("s_add_u32 s30, s30, s33")
    e("FFN_ud:")
    e("s_mov_b32 s77, s30")
    e("s_mov_b32 s64, s60"); e("s_and_b32 s65, s61, 0xffff"); e(f"s_mov_b32 s66, {640*3840}"); e("s_mov_b32 s67, 0x20000"); e("s_mov_b32 s33, 3840"); e("s_mov_b32 s32, s30")
    e("s_cmp_ge_u32 s30, 30"); e("s_cbranch_scc0 FFN_msel")
    e("s_mov_b32 s64, s4"); e("s_and_b32 s65, s5, 0xffff"); e(f"s_mov_b32 s66, {640*3072}"); e("s_mov_b32 s33, 3072"); e("s_sub_u32 s32, s30, 30")
    e("s_cmp_ge_u32 s30, 54"); e("s_cbranch_scc0 FFN_msel")
    e("s_mov_b32 s64, s6"); e("s_and_b32 s65, s7, 0xffff"); e("s_sub_u32 s32, s30, 54")
    e("FFN_msel:")
    e("s_mul_i32 s31, s63, 320"); e(f"s_lshl_b32 s53, s{S_WAVE}, 3"); e("s_add_u32 s31, s31, s53")
    e(f"v_lshrrev_b32 v200, 3, v{VL}"); e("v_add_u32 v200, s31, v200"); e("v_mul_lo_u32 v200, v200, s33")
    e(f"v_and_b32 v201, 7, v{VL}"); e("v_lshlrev_b32 v201, 4, v201"); e("s_lshl_b32 s32, s32, 7"); e("v_add_u32 v201, s32, v201"); e("v_add_u32 v200, v200, v201")
    e("s_lshl_b32 s33, s33, 5"); e("s_mov_b32 s31, 0")
    for k in range(10):
        e(f"buffer_load_dwordx4 v[{20+4*k}:{23+4*k}], v200, s[64:67], s31 offen")
        if k < 9: e("s_add_u32 s31, s31, s33")
    dma_full(e, dg, 3072, True)
    e(f"s_mov_b32 s30, 0")
    x_read_addr(e, XRD, 30)
    e(f"v_and_b32 v200, 15, v{VL}"); e(f"v_lshrrev_b32 v201, 4, v{VL}")
    e("v_lshrrev_b32 v202, 2, v200"); e("v_and_b32 v203, 3, v200")
    e("v_lshlrev_b32 v204, 3, v201"); e("v_add_u32 v204, v204, v202"); e("v_lshlrev_b32 v204, 8, v204")
    e("v_lshlrev_b32 v205, 1, v202"); e("v_and_b32 v206, 1, v201"); e("v_lshlrev_b32 v206, 3, v206"); e("v_or_b32 v205, v205, v206")
    e("v_lshrrev_b32 v206, 1, v203"); e(f"s_lshl_b32 s30, s{S_WAVE}, 2"); e("v_add_u32 v206, s30, v206")
    e("v_and_b32 v207, 1, v203"); e("v_lshlrev_b32 v207, 3, v207")
    for j in range(2):
        e(f"v_add_u32 v199, {2*j}, v206"); e("v_xor_b32 v199, v199, v205"); e("v_lshlrev_b32 v199, 4, v199"); e("v_add_u32 v199, v199, v207")
        e("v_add_u32 v199, v199, v204"); e(f"v_add_u32 v{WRD+j}, 20480, v199")
    e(f"s_lshl_b32 s30, s{S_CG}, 2"); e(f"s_add_u32 s30, s30, s{S_WAVE}"); e(f"s_mul_i32 s31, s{S_RB}, 10")
    for tt in range(NT):
        d = SOFF+tt
        e(f"s_add_u32 s32, s31, {tt}"); e("s_lshr_b32 s33, s32, 2"); e("s_mul_i32 s33, s33, 68"); e("s_add_u32 s33, s33, s30"); e("s_lshl_b32 s33, s33, 2")
        e("s_and_b32 s53, s32, 3"); e("s_add_u32 s33, s33, s53"); e("s_lshl_b32 s33, s33, 10"); e(f"s_add_u32 s33, s33, {OFF_ACT}")
        e("s_cmp_ge_u32 s32, 128"); e(f"s_cselect_b32 s{d}, 0x7ffffff0, s33")
    for i in range(60, 160): e(f"v_mov_b32 v{i}, 0")
    e("s_waitcnt vmcnt(13)")
    st = []
    for ps in range(2):
        a = []
        S0 = 200+2*ps; S1 = S0+1
        a.append(f"v_mov_b32 v{S0}, 0"); a.append(f"v_mov_b32 v{S1}, 0")
        for k in range(10):
            a.append(f"v_dot2c_f32_bf16 v{S0}, 0x3f803f80, v{ps*10+k}"); a.append(f"v_dot2c_f32_bf16 v{S1}, v{ps*10+k}, v{ps*10+k}")
        for sh in (1,2,4,8):
            a.append(f"v_add_f32_dpp v{S0}, v{S0}, v{S0} row_shr:{sh} row_mask:0xf bank_mask:0xf bound_ctrl:0")
            a.append(f"v_add_f32_dpp v{S1}, v{S1}, v{S1} row_shr:{sh} row_mask:0xf bank_mask:0xf bound_ctrl:0")
        a.append(f"v_add_f32_dpp v{S0}, v{S0}, v{S0} row_bcast:15 row_mask:0xa bank_mask:0xf")
        a.append(f"v_add_f32_dpp v{S1}, v{S1}, v{S1} row_bcast:15 row_mask:0xa bank_mask:0xf")
        a.append(f"v_mul_f32 v{S0}, {1.0/640!r}, v{S0}"); a.append(f"v_mul_f32 v{S1}, {1.0/640!r}, v{S1}")
        a.append(f"v_fma_f32 v{S1}, -v{S0}, v{S0}, v{S1}"); a.append(f"v_max_f32 v{S1}, 0, v{S1}"); a.append(f"v_add_f32 v{S1}, {1e-5!r}, v{S1}"); a.append(f"v_rsq_f32 v{S1}, v{S1}")
        st.append(a)
    cs = []
    for i in range(8): cs.append(f"v_mov_b32 v{204+i}, 0")
    for k in range(10):
        for d in range(4):
            r = 20+4*k+d
            cs.append(f"v_lshlrev_b32 v212, 16, v{r}"); cs.append(f"v_and_b32 v213, 0xffff0000, v{r}")
            cs.append(f"v_pk_add_f32 v[{204+2*d}:{205+2*d}], v[{204+2*d}:{205+2*d}], v[212:213]")
    zip2(e, st[0], st[1])
    for it in cs: e(it)
    SCR = 2*SLOT
    e(f"s_lshl_b32 s30, s{S_WAVE}, 11"); e(f"v_lshlrev_b32 v214, 5, v{VL}"); e("v_add_u32 v214, s30, v214"); e(f"v_add_u32 v214, {SCR}, v214")
    e("ds_write_b128 v214, v[204:207]"); e("ds_write_b128 v214, v[208:211] offset:16")
    e("v_lshlrev_b32 v196, 3, v196")
    e(f"s_add_u32 s31, s62, {OFF_STATS}"); e("s_add_u32 s32, s31, 16")
    e("v_cmp_eq_u32 vcc, 31, v197"); e("s_mov_b64 exec, vcc")
    e(f"buffer_store_dwordx2 v[200:201], v196, s[{S_WS}:{S_WS+3}], s31 offen sc1")
    e(f"buffer_store_dwordx2 v[202:203], v196, s[{S_WS}:{S_WS+3}], s32 offen sc1")
    e("s_mov_b64 exec, -1")
    for i in range(60): e(f"v_mov_b32 v{i}, 0")
    e("s_waitcnt lgkmcnt(0)"); e("s_barrier")
    e(f"v_and_b32 v200, 15, v{VL}"); e(f"s_lshl_b32 s30, s{S_WAVE}, 4"); e("v_add_u32 v200, s30, v200")
    e("v_lshrrev_b32 v201, 3, v200"); e("v_lshlrev_b32 v201, 5, v201"); e("v_and_b32 v202, 7, v200"); e("v_lshlrev_b32 v202, 2, v202"); e("v_add_u32 v201, v201, v202")
    e(f"v_lshrrev_b32 v202, 4, v{VL}"); e("v_lshlrev_b32 v202, 11, v202"); e("v_add_u32 v201, v201, v202"); e(f"v_add_u32 v201, {SCR}, v201")
    for i in range(8): e(f"ds_read_b32 v{204+i}, v201 offset:{i*256}")
    e("s_waitcnt lgkmcnt(0)")
    e("v_add_f32 v204, v204, v205"); e("v_add_f32 v206, v206, v207"); e("v_add_f32 v208, v208, v209"); e("v_add_f32 v210, v210, v211")
    e("v_add_f32 v204, v204, v206"); e("v_add_f32 v208, v208, v210"); e("v_add_f32 v204, v204, v208")
    for sw in ("v_permlane16_swap_b32", "v_permlane32_swap_b32"):
        e("v_mov_b32 v205, v204"); e(f"{sw} v204, v205"); e("v_add_f32 v204, v204, v205")
    e("s_mul_i32 s30, s63, 4992"); e("s_lshl_b32 s31, s77, 6"); e("s_add_u32 s30, s30, s31"); e("s_lshl_b32 s30, s30, 2"); e(f"s_add_u32 s30, s30, {OFF_CS}")
    e("v_lshlrev_b32 v200, 2, v200")
    e("s_mov_b64 exec, 0xffff")
    e(f"buffer_store_dword v204, v200, s[{S_WS}:{S_WS+3}], s30 offen sc1")
    e("s_mov_b64 exec, -1")
    code_prefetch(e)
    e("s_barrier")
    for (a,l) in dg[:len(dg)//2]: e(a); e(l)
    def reads(ks, setn):
        w = []
        for t4 in range(4):
            r = WF + (setn*NF + t4)*4
            off = (16384 if t4 >= 2 else 0) + ks*8192
            w.append(f"ds_read_b64_tr_b16 a[{r}:{r+1}], v{WRD+(t4&1)} offset:{off}")
            w.append(f"ds_read_b64_tr_b16 a[{r+2}:{r+3}], v{WRD+(t4&1)} offset:{off+1024}")
        xs = x_reads(XF, NT, XRD, ks, setn)
        return xs[:1] + w + xs[1:]
    def late_setup():
        e(f"v_and_b32 v{VP}, 15, v{VL}"); e(f"v_add_u32 v{VP}, s{S_T0}, v{VP}"); e(f"v_lshlrev_b32 v{VP}, 3, v{VP}")
        e(f"v_lshrrev_b32 v{VP+1}, 4, v{VL}"); e(f"v_lshlrev_b32 v{VP+1}, 4, v{VP+1}")
        e(f"s_lshl_b32 s30, s{S_CG}, 7"); e(f"s_lshl_b32 s31, s{S_WAVE}, 5"); e("s_add_u32 s30, s30, s31"); e("s_lshl_b32 s30, s30, 2")
        e(f"v_add_u32 v{VP+1}, s30, v{VP+1}")
    lg = []
    for tt in range(NT):
        lg.append(([], f"buffer_load_dwordx2 v[{ST+2*tt}:{ST+2*tt+1}], v{VP}, s[{S_WS}:{S_WS+3}], 0 offen offset:{OFF_STATS + tt*128} sc1"))
    for p in range(2):
        for t4 in range(4):
            base = (1920 if t4 < 2 else 3456) + 16*(t4 & 1)
            lg.append(([f"s_mov_b32 s31, {OFF_CS + (p*4992 + base)*4}"], f"buffer_load_dwordx4 a[{CS+p*16+t4*4}:{CS+p*16+t4*4+3}], v{VP+1}, s[{S_WS}:{S_WS+3}], s31 offen sc1"))
    emit_mainloop(e, "FFN", NT, NF, XF, WF, dg, reads, [XRD, XRD+1, WRD, WRD+1], 3072, True, late_setup, lg, True, 4, VP)
    e("s_waitcnt vmcnt(0)")
    sentinel(e)
    e("s_barrier")
    e(f"s_load_dwordx2 s[4:5], s[0:1], {KA_WD}"); e(f"s_load_dwordx2 s[6:7], s[0:1], {KA_WO}")
    e(f"v_lshrrev_b32 v196, 3, v{VL}"); e("v_mul_u32_u24 v196, 1280, v196"); e(f"v_and_b32 v197, 7, v{VL}"); e("v_lshlrev_b32 v197, 4, v197"); e("v_add_u32 v196, v196, v197")
    e("s_waitcnt lgkmcnt(0)")
    for rnd in range(2):
        U = 68+rnd*4
        e(f"s_lshl_b32 s{U}, s{S_N}, 2"); e(f"s_add_u32 s{U}, s{U}, s{S_WAVE}")
        if rnd: e(f"s_add_u32 s{U}, s{U}, 624")
        udiv_const(e, U+1, U, 10)
        e(f"s_mul_i32 s{U+2}, s{U+1}, 10"); e(f"s_sub_u32 s{U+2}, s{U}, s{U+2}")
        e("s_mov_b32 s64, s4"); e("s_and_b32 s65, s5, 0xffff"); e(f"s_mov_b32 s66, {1536*1280}"); e("s_mov_b32 s67, 0x20000"); e(f"s_mov_b32 s30, s{U+1}")
        lab = e.label("FFN_ws")
        e(f"s_cmp_ge_u32 s{U+1}, 48"); e(f"s_cbranch_scc0 {lab}")
        e("s_mov_b32 s64, s6"); e("s_and_b32 s65, s7, 0xffff"); e(f"s_mov_b32 s66, {640*1280}"); e(f"s_sub_u32 s30, s{U+1}, 48")
        e(f"{lab}:")
        e(f"s_cmp_ge_u32 s{U}, 680"); e("s_cselect_b32 s66, 0, s66")
        e(f"s_mul_i32 s30, s30, {32*1280}"); e(f"s_lshl_b32 s31, s{U+2}, 7"); e("s_add_u32 s30, s30, s31")
        e(f"s_lshl_b32 s31, s{S_WAVE}, 13"); e(f"s_add_u32 s31, s31, {rnd*4096}")
        for k in range(4):
            e(f"s_add_u32 m0, s31, {k*1024}")
            e("buffer_load_dwordx4 v196, s[64:67], s30 offen lds")
            if k < 3: e(f"s_add_u32 s30, s30, {8*1280}")
    for i in range(16): e(f"v_accvgpr_read_b32 v{224+i}, a{CS+i}")
    for i in range(16): e(f"v_accvgpr_read_b32 v{196+i}, a{CS+16+i}")
    for i in range(0, 16, 2): e(f"v_pk_add_f32 v[{224+i}:{225+i}], v[{224+i}:{225+i}], v[{196+i}:{197+i}]")
    e(f"v_lshlrev_b32 v240, 4, v{VL}")
    def tile(tt, R):
        s = []; a = s.append
        m = ST+2*tt; r = m+1; A = tt*16
        a(f"v_sub_f32 v{R}, 0, v{m}"); a(f"v_mul_f32 v{R+2}, {-LOG2E!r}, v{r}"); a(f"v_mul_f32 v{R+4}, v{r}, v{r}"); a(f"v_rcp_f32 v{R+4}, v{R+4}")
        for k in range(0, 16, 2): a(f"v_pk_fma_f32 v[{A+k}:{A+k+1}], v[{224+k}:{225+k}], v[{R}:{R+1}], v[{A+k}:{A+k+1}] op_sel_hi:[1,0,1]")
        E = R+6
        for k in range(0, 8, 2): a(f"v_pk_mul_f32 v[{E+k}:{E+k+1}], v[{A+k}:{A+k+1}], v[{R+2}:{R+3}] op_sel_hi:[1,0]")
        for k in range(8): a(f"v_exp_f32 v{E+k}, v{E+k}")
        for k in range(0, 8, 2): a(f"v_pk_mul_f32 v[{A+k}:{A+k+1}], v[{A+k}:{A+k+1}], v[{A+8+k}:{A+9+k}]")
        for k in range(0, 8, 2): a(f"v_pk_fma_f32 v[{E+k}:{E+k+1}], v[{E+k}:{E+k+1}], v[{R+4}:{R+5}], v[{R+4}:{R+5}] op_sel_hi:[1,0,0]")
        for k in range(8): a(f"v_rcp_f32 v{E+k}, v{E+k}")
        for k in range(0, 8, 2): a(f"v_pk_mul_f32 v[{A+k}:{A+k+1}], v[{A+k}:{A+k+1}], v[{E+k}:{E+k+1}]")
        for k in range(4): a(f"v_cvt_pk_bf16_f32 v{A+8+k}, v{A+2*k}, v{A+2*k+1}")
        a(f"buffer_store_dwordx4 v[{A+8}:{A+11}], v240, s[{S_WS}:{S_WS+3}], s{SOFF+tt} offen{OSC}")
        return s
    for tt in range(0, NT, 2): zip2(e, tile(tt, 196), tile(tt+1, 210))
    e("s_waitcnt vmcnt(10)")
    e(f"v_lshrrev_b32 v3, 4, v{VL}"); e(f"v_and_b32 v4, 15, v{VL}"); e("v_lshrrev_b32 v5, 2, v4"); e("v_and_b32 v6, 3, v4")
    e("v_lshlrev_b32 v3, 2, v3"); e("v_add_u32 v3, v3, v5"); e("v_lshlrev_b32 v3, 7, v3"); e("v_lshlrev_b32 v6, 3, v6"); e("v_add_u32 v3, v3, v6")
    e(f"s_lshl_b32 s31, s{S_WAVE}, 13"); e("v_add_u32 v3, s31, v3")
    for rnd in range(2):
        U = 68+rnd*4
        lab = e.label("FFN_wf")
        e(f"s_cmp_ge_u32 s{U}, 680"); e(f"s_cbranch_scc1 {lab}")
        for ft in range(4):
            e(f"ds_read_b64_tr_b16 v[{16+4*ft}:{17+4*ft}], v3 offset:{rnd*4096+ft*32}")
            e(f"ds_read_b64_tr_b16 v[{18+4*ft}:{19+4*ft}], v3 offset:{rnd*4096+ft*32+16*128}")
        e("s_waitcnt lgkmcnt(0)")
        for ft in range(4):
            e(f"s_lshl_b32 s30, s{U+2}, 2"); e(f"s_add_u32 s30, s30, {ft}")
            udiv_const(e, 31, 30, 5)
            e("s_mul_i32 s32, s31, 5"); e("s_sub_u32 s32, s30, s32")
            e("s_mul_i32 s31, s31, 68"); e(f"s_add_u32 s31, s31, s{U+1}"); e("s_mul_i32 s31, s31, 5"); e("s_add_u32 s31, s31, s32"); e("s_lshl_b32 s31, s31, 10"); e(f"s_add_u32 s31, s31, {OFF_WF}")
            e(f"buffer_store_dwordx4 v[{16+4*ft}:{19+4*ft}], v240, s[{S_WS}:{S_WS+3}], s31 offen{OSC}")
        e(f"{lab}:")
    if STAMPS: e("s_waitcnt vmcnt(0)")
    stamp(e, 3); stamp_flush(e, 1, 4, S_WS, S_WAVE)
    e("s_endpgm")

def fperm():
    ft0 = [('p', 5*q+e_) for q in range(4) for e_ in range(4)]
    ft1 = []
    for q in range(4): ft1 += [('p', 5*q+4), ('m', 5*q), ('m', 5*q+1), ('m', 5*q+2)]
    ft2 = [[('m', 5*q+3), ('m', 5*q+4)] for q in range(4)]
    return ft0, ft1, ft2

def gen_att(e):
    NT, NF = 4, 10
    XF = 0; WF = XF + 2*NT*4
    PHI = 112
    CS = 172
    XRD = 160; WRD = 162; DXA = 172; DWA = 180
    VP = 186
    ST = 246
    WPH = 159744
    e("ATT:")
    krot(e)
    e(f"s_lshl_b32 s{S_T0}, s{S_RB}, 8")
    e(f"s_load_dwordx2 s[4:5], s[0:1], {KA_WQKV}"); e(f"s_load_dwordx2 s[6:7], s[0:1], {KA_WPHI}")
    x_dma_addr(e, DXA, 8)
    e(f"s_mul_i32 s30, s{S_WAVE}, 5")
    e(f"s_lshl_b32 s31, s{S_COL0}, 1"); e(f"s_lshl_b32 s32, s{S_COL1}, 1"); e("s_sub_u32 s32, s32, s31"); e("s_sub_u32 s32, s32, 160")
    e("s_mov_b32 s33, 0xCCCD")
    for i in range(5):
        e(f"s_add_u32 s53, s30, {i}"); e("s_lshl_b32 s53, s53, 6")
        e(f"v_add_u32 v200, s53, v{VL}")
        e("v_mul_lo_u32 v201, v200, s33"); e("v_lshrrev_b32 v201, 20, v201")
        e("v_mul_u32_u24 v202, 20, v201"); e("v_sub_u32 v202, v200, v202")
        e("v_lshrrev_b32 v203, 2, v201"); e("v_and_b32 v203, 2, v203"); e("v_xor_b32 v202, v202, v203")
        e("v_cmp_le_u32 vcc, 10, v202"); e("v_mov_b32 v204, s32"); e("v_cndmask_b32 v204, 0, v204, vcc")
        e("v_lshlrev_b32 v202, 4, v202"); e("v_add_u32 v202, v202, v204")
        e("v_mul_u32_u24 v201, 3840, v201"); e("v_add_u32 v201, v201, v202"); e(f"v_add_u32 v{DWA+i}, s31, v201")
    e(f"s_lshl_b32 s{S_LW}, s30, 10"); e(f"s_add_u32 s{S_LW}, s{S_LW}, 32768")
    e("s_waitcnt lgkmcnt(0)")
    srd(e, S_W, 4, 640*3840); srd(e, S_W2, 6, 32*800)
    dg = []
    for i in range(8): dg.append((f"s_add_u32 m0, s{S_M0X}, {i*1024}", f"buffer_load_dwordx4 v{DXA+i}, s[{S_X}:{S_X+3}], s{S_XO} offen lds"))
    for i in range(5): dg.append((f"s_add_u32 m0, s{S_M0W}, {i*1024}", f"buffer_load_dwordx4 v{DWA+i}, s[{S_W}:{S_W+3}], s{S_WO} offen lds"))
    dg = [dg[0],dg[8],dg[1],dg[9],dg[2],dg[3],  dg[10],dg[4],dg[5],dg[11],dg[6],dg[12],dg[7]]
    dma_init(e, False, 3840)
    stamp(e, 4)
    dma_full(e, dg, 3840, False)
    e(f"v_lshlrev_b32 v201, 4, v{VL}")
    e(f"s_mul_i32 s31, s{S_CG}, 3200"); e(f"s_lshl_b32 s32, s{S_WAVE}, 10"); e("s_add_u32 s31, s31, s32")
    e(f"s_add_u32 m0, s32, {WPH}")
    e(f"s_cmp_eq_u32 s{S_WAVE}, 3"); e("s_cselect_b64 s[54:55], 0xff, -1"); e("s_mov_b64 exec, s[54:55]")
    e(f"buffer_load_dwordx4 v201, s[{S_W2}:{S_W2+3}], s31 offen lds")
    e("s_mov_b64 exec, -1")
    e(f"v_mov_b32 v204, 0"); e("v_mov_b32 v205, 0"); e("v_mov_b32 v206, 0"); e("v_mov_b32 v207, 0")
    e(f"v_lshlrev_b32 v203, 4, v{VL}"); e(f"v_add_u32 v203, {WPH+3200}, v203")
    e("s_mov_b32 exec_hi, 0x00ffffff")
    e("ds_write_b128 v203, v[204:207]")
    e("s_mov_b64 exec, -1")
    e(f"s_lshl_b32 s30, s{S_WAVE}, 13")
    x_read_addr(e, XRD, 30)
    e(f"v_and_b32 v200, 15, v{VL}"); e(f"v_lshrrev_b32 v201, 4, v{VL}")
    e("v_lshrrev_b32 v202, 2, v200"); e("v_and_b32 v203, 3, v200")
    e("v_lshlrev_b32 v204, 3, v201"); e("v_add_u32 v204, v204, v202"); e("v_mul_u32_u24 v204, 320, v204")
    e("v_mul_u32_u24 v205, 5, v203")
    e("v_and_b32 v206, 1, v201"); e("v_lshlrev_b32 v206, 2, v206")
    for t in range(10):
        e(f"v_add_u32 v207, {(t%5) + 20*(t//5)}, v205"); e("v_xor_b32 v207, v207, v206"); e("v_lshlrev_b32 v207, 3, v207"); e("v_add_u32 v207, v207, v204"); e(f"v_add_u32 v{WRD+t}, 32768, v207")
    e("v_mul_u32_u24 v208, 800, v201"); e("v_mul_u32_u24 v209, 40, v202"); e("v_add_u32 v208, v208, v209"); e(f"v_add_u32 v245, {WPH}, v208")
    e(f"v_mov_b32 v209, {WPH+3200}")
    e("v_cmp_eq_u32 vcc, v203, v201"); e("v_cndmask_b32 v245, v209, v245, vcc")
    for i in range(160): e(f"v_mov_b32 v{i}, 0")
    dma_full(e, dg, 3840, False)
    code_prefetch(e)
    stamp(e, 5)
    e(f"s_waitcnt vmcnt({13+1}) lgkmcnt(0)")
    e("s_barrier")
    for (a,l) in dg[:len(dg)//2]: e(a); e(l)
    def reads(ks, setn):
        w = []
        for t in range(10):
            r = WF + (setn*NF + t)*4
            w.append(f"ds_read_b64_tr_b16 a[{r}:{r+1}], v{WRD+t} offset:{ks*10240}")
            w.append(f"ds_read_b64_tr_b16 a[{r+2}:{r+3}], v{WRD+t} offset:{ks*10240+1280}")
        xs = x_reads(XF, NT, XRD, ks, setn)
        return xs[:1] + w + xs[1:]
    def late_setup():
        e(f"s_lshl_b32 s30, s{S_WAVE}, 6"); e(f"s_add_u32 s30, s30, s{S_T0}")
        e(f"v_and_b32 v{VP}, 15, v{VL}"); e(f"v_add_u32 v{VP}, s30, v{VP}"); e(f"v_lshlrev_b32 v{VP}, 3, v{VP}")
        e(f"v_lshrrev_b32 v{VP+1}, 4, v{VL}"); e(f"v_mul_u32_u24 v{VP+1}, 80, v{VP+1}")
        e(f"s_lshl_b32 s60, s{S_COL0}, 2"); e(f"s_add_u32 s60, s60, {OFF_CS}"); e(f"s_lshl_b32 s61, s{S_COL1}, 2"); e(f"s_add_u32 s61, s61, {OFF_CS}")
        e(f"s_add_u32 s62, s60, {4992*4}"); e(f"s_add_u32 s63, s61, {4992*4}")
    lg = []
    for tt in range(NT):
        lg.append(([], f"buffer_load_dwordx2 v[{ST+2*tt}:{ST+2*tt+1}], v{VP}, s[{S_WS}:{S_WS+3}], 0 offen offset:{OFF_STATS + tt*128} sc1"))
    for p in range(2):
        for half in range(2):
            for j in range(5):
                d = CS + p*40 + (half*5+j)*4
                lg.append(([], f"buffer_load_dwordx4 a[{d}:{d+3}], v{VP+1}, s[{S_WS}:{S_WS+3}], s{60+2*p+half} offen offset:{j*16} sc1"))
    emit_mainloop(e, "ATT", NT, NF, XF, WF, dg, reads, [XRD, XRD+1] + [WRD+t for t in range(10)], 3840, False, late_setup, lg, False, 1, VP)
    e("s_waitcnt vmcnt(0)")
    sentinel(e)
    e(f"s_cmp_eq_u32 s{S_ISKV}, 1"); e("s_cbranch_scc1 KV_EPI")
    for i in range(40): e(f"v_accvgpr_read_b32 v{160+i}, a{CS+i}")
    for i in range(40): e(f"v_accvgpr_read_b32 v{200+i}, a{CS+40+i}")
    for i in range(0, 40, 2): e(f"v_pk_add_f32 v[{160+i}:{161+i}], v[{160+i}:{161+i}], v[{200+i}:{201+i}]")
    e(f"v_lshrrev_b32 v200, 4, v{VL}"); e(f"v_and_b32 v201, 15, v{VL}")
    e(f"v_mul_u32_u24 v202, {128*768}, v200")
    e("v_lshlrev_b32 v203, 4, v201"); e("v_add_u32 v204, v202, v203")
    e(f"s_lshl_b32 s30, s{S_RB}, 4"); e(f"s_lshl_b32 s31, s{S_WAVE}, 2"); e("s_add_u32 s30, s30, s31")
    e(f"s_lshl_b32 s31, s{S_CG}, 3")
    for tt in range(NT):
        m = ST+2*tt; r = m+1
        e(f"v_sub_f32 v208, 0, v{m}"); e(f"v_mov_b32 v210, v{r}")
        strs = []
        for half in range(2):
            s = []; a = s.append
            A = (tt*10 + half*5)*4; C = 160 + half*20
            for k in range(0, 20, 2): a(f"v_pk_fma_f32 v[{A+k}:{A+k+1}], v[{C+k}:{C+k+1}], v[208:209], v[{A+k}:{A+k+1}] op_sel_hi:[1,0,1]")
            for k in range(0, 20, 2): a(f"v_pk_mul_f32 v[{A+k}:{A+k+1}], v[{A+k}:{A+k+1}], v[210:211] op_sel_hi:[1,0]")
            for k in range(10): a(f"v_cvt_pk_bf16_f32 v{A+k}, v{A+2*k}, v{A+2*k+1}")
            a(f"v_mov_b32 v{A+10}, 0"); a(f"v_mov_b32 v{A+11}, 0")
            sx = 60+half
            a(f"s_add_u32 s{sx}, s31, {4*half}"); a(f"s_lshl_b32 s{sx}, s{sx}, 7"); a(f"s_add_u32 s{sx}, s{sx}, s30"); a(f"s_add_u32 s{sx}, s{sx}, {tt}")
            a(f"s_mul_i32 s{sx}, s{sx}, 768"); a(f"s_add_u32 s{sx}, s{sx}, {OFF_QF}")
            a(f"buffer_store_dwordx4 v[{A}:{A+3}], v204, s[{S_WS}:{S_WS+3}], s{sx} offen{OSC}")
            a(f"buffer_store_dwordx4 v[{A+4}:{A+7}], v204, s[{S_WS}:{S_WS+3}], s{sx} offen offset:256{OSC}")
            a(f"buffer_store_dwordx4 v[{A+8}:{A+11}], v204, s[{S_WS}:{S_WS+3}], s{sx} offen offset:512{OSC}")
            strs.append(s)
        zip2(e, strs[0], strs[1])
    if STAMPS: e("s_waitcnt vmcnt(0)")
    stamp(e, 3); stamp_flush(e, 1, 6, S_WS, S_WAVE)
    e("s_endpgm")
    e("KV_EPI:")
    e("s_barrier")
    for jp in range(5):
        for s in range(3):
            r = PHI + (jp*3+s)*4
            e(f"ds_read_b64_tr_b16 a[{r}:{r+1}], v245 offset:{s*320 + jp*8}")
            e(f"ds_read_b64_tr_b16 a[{r+2}:{r+3}], v245 offset:{s*320 + 160 + jp*8}")
    e(f"v_lshrrev_b32 v200, 4, v{VL}"); e(f"v_and_b32 v201, 15, v{VL}")
    e("v_lshlrev_b32 v202, 15, v200"); e("v_lshlrev_b32 v203, 5, v201"); e("v_add_u32 v202, v202, v203")
    e(f"s_lshl_b32 s30, s{S_WAVE}, 11"); e("v_add_u32 v244, s30, v202")
    for i in range(40): e(f"v_accvgpr_read_b32 v{160+i}, a{CS+i}")
    for i in range(40): e(f"v_accvgpr_read_b32 v{200+i}, a{CS+40+i}")
    for i in range(0, 40, 2): e(f"v_pk_add_f32 v[{160+i}:{161+i}], v[{160+i}:{161+i}], v[{200+i}:{201+i}]")
    def vtile(tt, R):
        s = []; a = s.append
        m = ST+2*tt; r = m+1; A = (tt*10+5)*4
        a(f"v_sub_f32 v{R}, 0, v{m}"); a(f"v_mov_b32 v{R+2}, v{r}")
        for k in range(0, 20, 2): a(f"v_pk_fma_f32 v[{A+k}:{A+k+1}], v[{180+k}:{181+k}], v[{R}:{R+1}], v[{A+k}:{A+k+1}] op_sel_hi:[1,0,1]")
        for k in range(0, 20, 2): a(f"v_pk_mul_f32 v[{A+k}:{A+k+1}], v[{A+k}:{A+k+1}], v[{R+2}:{R+3}] op_sel_hi:[1,0]")
        for k in range(10): a(f"v_cvt_pk_bf16_f32 v{A+k}, v{A+2*k}, v{A+2*k+1}")
        a(f"ds_write_b128 v244, v[{A}:{A+3}] offset:{3*8192 + tt*512}")
        a(f"ds_write_b128 v244, v[{A+4}:{A+7}] offset:{3*8192 + tt*512 + 16}")
        return s
    zip2(e, vtile(0, 200), vtile(1, 204)); zip2(e, vtile(2, 200), vtile(3, 204))
    ft0, ft1, ft2 = fperm()
    Pb = [180, 200]; EM = 220
    def stageA(tt):
        s = []; a = s.append
        m = ST+2*tt; A = tt*40; P = Pb[tt & 1]
        a(f"v_sub_f32 v240, 0, v{m}")
        for k in range(0, 20, 2): a(f"v_pk_fma_f32 v[{A+k}:{A+k+1}], v[{160+k}:{161+k}], v[240:241], v[{A+k}:{A+k+1}] op_sel_hi:[1,0,1]")
        for k in range(10): a(f"v_cvt_pk_bf16_f32 v{A+k}, v{A+2*k}, v{A+2*k+1}")
        a(f"v_mov_b32 v{A+10}, 0"); a(f"v_mov_b32 v{A+11}, 0")
        for sidx in range(3):
            for jp in range(5):
                c = "0" if sidx == 0 else f"v[{P+jp*4}:{P+jp*4+3}]"
                a(f"v_mfma_f32_16x16x32_bf16 v[{P+jp*4}:{P+jp*4+3}], a[{PHI+(jp*3+sidx)*4}:{PHI+(jp*3+sidx)*4+3}], v[{A+sidx*4}:{A+sidx*4+3}], {c}")
        return s
    def stageB(tt):
        s = []; a = s.append
        r = ST+2*tt+1; A = tt*40; AV = A+20; P = Pb[tt & 1]
        C, NC, MXC, MNC, MX, MN, SP, SM_ = AV, AV+2, AV+4, AV+6, AV+10, AV+11, AV+12, AV+14
        a(f"v_mul_f32 v{C}, {LOG2E!r}, v{r}"); a(f"v_sub_f32 v{NC}, 0, v{C}")
        a(f"v_max3_f32 v{MX}, v{P}, v{P+1}, v{P+2}"); a(f"v_min3_f32 v{MN}, v{P}, v{P+1}, v{P+2}")
        for k in range(3, 19, 2):
            a(f"v_max3_f32 v{MX}, v{MX}, v{P+k}, v{P+k+1}"); a(f"v_min3_f32 v{MN}, v{MN}, v{P+k}, v{P+k+1}")
        a(f"v_max_f32 v{MX}, v{MX}, v{P+19}"); a(f"v_min_f32 v{MN}, v{MN}, v{P+19}")
        a(f"v_mul_f32 v{MXC}, v{MX}, v{NC}"); a(f"v_mul_f32 v{MNC}, v{MN}, v{C}")
        for k in range(0, 20, 2): a(f"v_pk_fma_f32 v[{EM+k}:{EM+k+1}], v[{P+k}:{P+k+1}], v[{NC}:{NC+1}], v[{MNC}:{MNC+1}] op_sel_hi:[1,0,0]")
        for k in range(0, 20, 2): a(f"v_pk_fma_f32 v[{P+k}:{P+k+1}], v[{P+k}:{P+k+1}], v[{C}:{C+1}], v[{MXC}:{MXC+1}] op_sel_hi:[1,0,0]")
        for k in range(20): a(f"v_exp_f32 v{EM+k}, v{EM+k}")
        for k in range(20): a(f"v_exp_f32 v{P+k}, v{P+k}")
        a(f"v_pk_add_f32 v[{SM_}:{SM_+1}], v[{EM}:{EM+1}], v[{EM+2}:{EM+3}]"); a(f"v_pk_add_f32 v[{SP}:{SP+1}], v[{P}:{P+1}], v[{P+2}:{P+3}]")
        for k in range(4, 20, 2):
            a(f"v_pk_add_f32 v[{SM_}:{SM_+1}], v[{SM_}:{SM_+1}], v[{EM+k}:{EM+k+1}]"); a(f"v_pk_add_f32 v[{SP}:{SP+1}], v[{SP}:{SP+1}], v[{P+k}:{P+k+1}]")
        a(f"v_add_f32 v{SM_}, v{SM_}, v{SM_+1}"); a(f"v_add_f32 v{SP}, v{SP}, v{SP+1}")
        a(f"v_rcp_f32 v{SM_}, v{SM_}"); a(f"v_rcp_f32 v{SP}, v{SP}")
        for k in range(0, 20, 2):
            a(f"v_pk_mul_f32 v[{EM+k}:{EM+k+1}], v[{EM+k}:{EM+k+1}], v[{SM_}:{SM_+1}] op_sel_hi:[1,0]")
            a(f"v_pk_mul_f32 v[{P+k}:{P+k+1}], v[{P+k}:{P+k+1}], v[{SP}:{SP+1}] op_sel_hi:[1,0]")
        def reg(x): return (P if x[0] == 'p' else EM) + x[1]
        I = AV+12
        for k in range(8): a(f"v_cvt_pk_bf16_f32 v{A+k}, v{reg(ft0[2*k])}, v{reg(ft0[2*k+1])}")
        a(f"ds_write_b128 v244, v[{A}:{A+3}] offset:{tt*512}"); a(f"ds_write_b128 v244, v[{A+4}:{A+7}] offset:{tt*512+16}")
        for k in range(8): a(f"v_cvt_pk_bf16_f32 v{A+8+k}, v{reg(ft1[2*k])}, v{reg(ft1[2*k+1])}")
        a(f"ds_write_b128 v244, v[{A+8}:{A+11}] offset:{8192+tt*512}"); a(f"ds_write_b128 v244, v[{A+12}:{A+15}] offset:{8192+tt*512+16}")
        for q in range(4): a(f"v_cvt_pk_bf16_f32 v{I+2*q}, v{reg(ft2[q][0])}, v{reg(ft2[q][1])}")
        a(f"v_mov_b32 v{I+1}, v{AV+8}"); a(f"v_mov_b32 v{I+3}, v{AV+9}"); a(f"v_mov_b32 v{I+5}, 0x3f80"); a(f"v_mov_b32 v{I+7}, 0")
        a(f"ds_write_b128 v244, v[{I}:{I+3}] offset:{2*8192+tt*512}"); a(f"ds_write_b128 v244, v[{I+4}:{I+7}] offset:{2*8192+tt*512+16}")
        return s
    e("s_waitcnt lgkmcnt(0)")
    for it in stageA(0): e(it)
    for tt in range(NT):
        if tt+1 < NT: zip_ratio(e, stageB(tt), stageA(tt+1))
        else:
            for it in stageB(tt): e(it)
    e("s_waitcnt lgkmcnt(0)")
    stamp(e, 4)
    e("s_barrier")
    stamp(e, 5)
    e(f"v_lshrrev_b32 v200, 4, v{VL}"); e(f"v_and_b32 v201, 15, v{VL}"); e("v_lshrrev_b32 v202, 2, v201"); e("v_and_b32 v203, 3, v201")
    e("v_lshlrev_b32 v200, 2, v200"); e("v_add_u32 v200, v200, v202"); e("v_lshlrev_b32 v200, 5, v200"); e("v_lshlrev_b32 v203, 3, v203"); e("v_add_u32 v200, v200, v203")
    e(f"s_lshl_b32 s30, s{S_WAVE}, 15"); e("v_add_u32 v200, s30, v200")
    KA = 0; FR = 32
    def kvreads(ks, st_):
        for sub in range(4):
            rr = FR + (st_*4+sub)*4
            e(f"ds_read_b64_tr_b16 v[{rr}:{rr+1}], v200 offset:{sub*8192 + ks*1024}")
            e(f"ds_read_b64_tr_b16 v[{rr+2}:{rr+3}], v200 offset:{sub*8192 + ks*1024 + 512}")
    NSET = 3
    def kvreads(ks):
        st_ = ks % NSET
        for sub in range(4):
            rr = FR + (st_*4+sub)*4
            e(f"ds_read_b64_tr_b16 v[{rr}:{rr+1}], v200 offset:{sub*8192 + ks*1024}")
            e(f"ds_read_b64_tr_b16 v[{rr+2}:{rr+3}], v200 offset:{sub*8192 + ks*1024 + 512}")
    kvreads(0)
    for i in range(24): e(f"v_mov_b32 v{KA+i}, 0")
    for ks in range(8):
        st_ = ks % NSET
        if ks < 7:
            kvreads(ks+1); e("s_waitcnt lgkmcnt(8)")
        else:
            e("s_waitcnt lgkmcnt(0)")
        for ft in range(3):
            for dt in range(2):
                a = KA + (ft*2+dt)*4
                Af = FR + (st_*4+ft)*4
                Bf = FR + (st_*4 + (3 if dt == 0 else 2))*4
                e(f"v_mfma_f32_16x16x32_bf16 v[{a}:{a+3}], v[{Af}:{Af+3}], v[{Bf}:{Bf+3}], v[{a}:{a+3}]")
    e(f"s_lshl_b32 s30, s{S_RB}, 5"); e(f"s_lshl_b32 s31, s{S_CG}, 2"); e("s_add_u32 s30, s30, s31"); e(f"s_add_u32 s30, s30, s{S_WAVE}")
    e("s_mul_i32 s30, s30, 5120"); e(f"s_add_u32 s30, s30, {OFF_KVP}")
    e(f"v_lshlrev_b32 v201, 5, v{VL}"); e(f"v_lshlrev_b32 v202, 3, v{VL}")
    for dt in range(2):
        a0 = KA + (0*2+dt)*4; a1 = KA + (1*2+dt)*4; a2 = KA + (2*2+dt)*4
        if dt == 1: e("s_add_u32 s30, s30, 2560")
        e(f"buffer_store_dwordx4 v[{a0}:{a0+3}], v201, s[{S_WS}:{S_WS+3}], s30 offen{OSC}")
        e(f"buffer_store_dwordx4 v[{a1}:{a1+3}], v201, s[{S_WS}:{S_WS+3}], s30 offen offset:16{OSC}")
        e(f"buffer_store_dwordx2 v[{a2}:{a2+1}], v202, s[{S_WS}:{S_WS+3}], s30 offen offset:2048{OSC}")
    if STAMPS: e("s_waitcnt vmcnt(0)")
    stamp(e, 3); stamp_flush(e, 1, 6, S_WS, S_WAVE)
    e("s_endpgm")

def gen_k1():
    e = Em()
    STAMP_BASE[0] = 90
    e("s_cmp_ge_u32 s2, 256"); e("s_cbranch_scc1 K1_end")
    e(f"s_load_dwordx2 s[4:5], s[0:1], {KA_X}"); e(f"s_load_dwordx2 s[6:7], s[0:1], {KA_WS}"); e(f"s_load_dwordx2 s[62:63], s[0:1], {KA_DBG}")
    e("v_lshrrev_b32 v1, 6, v0"); e(f"v_and_b32 v{VL}, 63, v0"); e(f"v_readfirstlane_b32 s{S_WAVE}, v1")
    stamp(e, 0)
    e("s_and_b32 s30, s2, 7"); e("s_lshr_b32 s31, s2, 3")
    e("s_lshr_b32 s32, s30, 2"); e("s_and_b32 s33, s30, 3")
    e("s_waitcnt lgkmcnt(0)")
    srd(e, S_X, 4, 2048*1280); srd(e, S_WS, 6, WS_BYTES); srd(e, S_DBG, 62, 256)
    e("s_cmp_lt_u32 s31, 8"); e("s_cbranch_scc1 K1_kv")
    e("s_cmp_lt_u32 s31, 12"); e("s_cbranch_scc1 K1_q")
    e("s_sub_u32 s34, s31, 12"); e("s_mul_i32 s35, s32, 20"); e("s_add_u32 s34, s34, s35")
    e("s_cmp_ge_u32 s34, 39"); e("s_cbranch_scc1 K1_idle")
    udiv_const(e, S_RB, 34, 3)
    e(f"s_mul_i32 s35, s{S_RB}, 3"); e("s_sub_u32 s35, s34, s35"); e("s_mul_i32 s36, s33, 3"); e(f"s_add_u32 s{S_CG}, s35, s36")
    e(f"s_mul_i32 s{S_N}, s33, 39"); e(f"s_add_u32 s{S_N}, s{S_N}, s34")
    e("s_mov_b32 s78, s34"); e("s_mov_b32 s79, s33")
    e("s_branch FFN")
    e("K1_kv:")
    e("s_lshl_b32 s34, s33, 1"); e("s_and_b32 s35, s31, 1"); e(f"s_add_u32 s{S_CG}, s34, s35")
    e("s_lshl_b32 s34, s32, 2"); e("s_lshr_b32 s35, s31, 1"); e(f"s_add_u32 s{S_RB}, s34, s35")
    e(f"s_mul_i32 s34, s{S_CG}, 80"); e(f"s_add_u32 s{S_COL0}, s34, 640"); e(f"s_add_u32 s{S_COL1}, s34, 1280"); e(f"s_mov_b32 s{S_ISKV}, 1")
    e("s_branch ATT")
    e("K1_q:")
    e(f"s_mov_b32 s{S_CG}, s33"); e("s_lshl_b32 s34, s32, 2"); e("s_sub_u32 s35, s31, 8"); e(f"s_add_u32 s{S_RB}, s34, s35")
    e(f"s_mul_i32 s{S_COL0}, s33, 160"); e(f"s_add_u32 s{S_COL1}, s{S_COL0}, 80"); e(f"s_mov_b32 s{S_ISKV}, 0")
    e("s_branch ATT")
    e("K1_idle:")
    sentinel(e)
    e("s_endpgm")
    gen_ffn(e)
    gen_att(e)
    e("K1_end:")
    return kernel("k1_kernel", e.text(), vgpr=256, accum=256, agpr=256, sgpr=102)
```

```python
OFF_STATS = 0
OFF_CS = 0x4000
OFF_WF = 0x20000
OFF_ACT = 0x300000
OFF_QF = 0xC00000
OFF_KVP = 0xF80000
OFF_FLAG = 0x1100000
WS_BYTES = 268435456
KA_X, KA_WQKV, KA_WPHI, KA_WO, KA_BX, KA_WG, KA_WU, KA_WD, KA_OUT, KA_DBG, KA_WS = [8*i for i in range(11)]
LOG2E = 1.4426950408889634

def srd(e, sreg, ptr_lo, nbytes):
    e(f"s_mov_b32 s{sreg}, s{ptr_lo} ; srd")
    e(f"s_and_b32 s{sreg+1}, s{ptr_lo+1}, 0xffff ; srd")
    e(f"s_mov_b32 s{sreg+2}, {nbytes} ; srd")
    e(f"s_mov_b32 s{sreg+3}, 0x20000 ; srd")

def audit_srd(text, regs):
    import re
    for l in text.split("\n"):
        if "; srd" in l: continue
        m = re.match(r"\s*(s_\w+|v_readfirstlane_b32|v_readlane_b32|v_cmp\w*)\s+s\[?(\d+)(?::(\d+))?", l)
        if m and not m.group(1).startswith(("s_cmp","s_cbranch","s_waitcnt","s_nop","s_barrier","s_branch","s_sleep","s_setprio","s_bitcmp")):
            a = int(m.group(2)); b = int(m.group(3)) if m.group(3) else a
            for r in range(a, b+1):
                assert r not in regs, "SRD register overwritten: " + l

def udiv_const(e, dst, src, d):
    magic = (1 << 32) // d + 1
    e(f"s_mul_hi_u32 s{dst}, s{src}, {magic}")

import os
STAMPS = int(os.environ.get("STAMPS", "0"))
OFF_TS = 0x2000000
STAMP_BASE = [64]
STAMP_V = [None]
def stamp(e, idx, force=False):
    if not STAMPS: return
    if STAMPS == 2 and not force: return
    e("s_memrealtime s[100:101]")
    e("s_waitcnt lgkmcnt(0)")
    if STAMP_V[0] is not None:
        e(f"v_writelane_b32 v{STAMP_V[0]}, s100, {idx}")
    else:
        e(f"s_mov_b32 s{STAMP_BASE[0]+idx}, s100")
def stamp_val(e, idx, sreg):
    if not STAMPS: return
    e(f"v_writelane_b32 v{STAMP_V[0]}, s{sreg}, {idx}")
def stamp_flush_v(e, ws_srd, wave_s, vtmp):
    if not STAMPS: return
    lab = e.label("TSF")
    e(f"s_cmp_eq_u32 s{wave_s}, 0"); e(f"s_cbranch_scc0 {lab}")
    e(f"s_lshl_b32 s100, s2, 6"); e(f"s_add_u32 s100, s100, {OFF_TS}")
    e(f"v_lshlrev_b32 v{vtmp}, 2, v255")
    e("s_mov_b64 exec, 0xffff")
    e(f"buffer_store_dword v{STAMP_V[0]}, v{vtmp}, s[{ws_srd}:{ws_srd+3}], s100 offen")
    e("s_mov_b64 exec, -1")
    e(f"{lab}:")
def stamp_flush_part(e, kern, idxs, ws_srd, wave_s, wave, vtmp):
    if not STAMPS or STAMP_V[0] is not None: return
    lab = e.label("TSF")
    e(f"s_cmp_eq_u32 s{wave_s}, {wave}"); e(f"s_cbranch_scc0 {lab}")
    e(f"s_lshl_b32 s100, s2, 6"); e(f"s_add_u32 s100, s100, {OFF_TS + kern*256*64}")
    e("s_mov_b64 exec, 1")
    e(f"v_mov_b32 v{vtmp+1}, 0")
    for i in idxs:
        e(f"v_mov_b32 v{vtmp}, s{STAMP_BASE[0]+i}")
        e(f"buffer_store_dword v{vtmp}, v{vtmp+1}, s[{ws_srd}:{ws_srd+3}], s100 offen offset:{4*i}")
    e("s_mov_b64 exec, -1")
    e(f"{lab}:")
def stamp_flush(e, kern, n, ws_srd, wave_s, vtmp=250):
    stamp_flush_part(e, kern, list(range(n)), ws_srd, wave_s, 0, vtmp)
```

```python
from asmgen import *
from gen_common import *
import os
OSC = " sc1" if int(os.environ.get("K1_SC1", 1)) else ""

DRY = int(os.environ.get('K1_DRY', 0))
SLOT = 53248
NST = 10
S_X = 8; S_W = 12; S_W2 = 16; S_WS = 20
S_WAVE = 24; S_RB = 25; S_CG = 26; S_T0 = 27; S_COL0 = 28; S_COL1 = 29
S_LX = 34; S_LW = 35; S_LW2 = 36; S_N = 37
S_DSLOT = 40; S_XO = 41; S_WO = 42; S_TMP = 43; S_STG = 44; S_RSLOT = 45; S_T46 = 46; S_DELTA = 47; S_M0X = 48; S_M0W = 49; S_M0W2 = 50
S_ISKV = 51; S_EXTRA = 52; S_DBG = 56
S_KROT = 38; S_KST = 39; S_HOOK = 33
S_PTR = 4
VL = 255
POLL_STAGE = 5; FLAG_STAGE = 1
NFLAG = 78

def zip_ratio(e, main, side):
    n, m = len(main), len(side)
    j = 0
    for i, it in enumerate(main):
        it() if callable(it) else e(it)
        while j < m and (j+1)*n <= (i+1)*m + 0:
            side[j]() if callable(side[j]) else e(side[j]); j += 1
    while j < m:
        side[j]() if callable(side[j]) else e(side[j]); j += 1

def zip2(e, a, b):
    n = max(len(a), len(b))
    for i in range(n):
        for s in (a, b):
            if i < len(s): s[i]() if callable(s[i]) else e(s[i])

def place(sched, items, f0, f1):
    M=len(sched); n=len(items)
    for k,it in enumerate(items):
        pos = int((f0 + (f1-f0)*(k+0.5)/n)*M); pos=min(max(pos,0),M-1)
        sched[pos].append(it)
def place_dma(sched, groups, f0, f1):
    M=len(sched); n=len(groups)
    for k,(m0w, ld) in enumerate(groups):
        pos = int((f0 + (f1-f0)*(k+0.5)/n)*M); pos=min(max(pos,0),M-2)
        sched[pos].append(m0w); sched[pos+1].insert(0, ld)

def adv_dma_list(wstride, two_w):
    l = [f"s_add_u32 s{S_KST}, s{S_KST}, 1", f"s_cmp_ge_u32 s{S_KST}, 10\ns_cselect_b32 s{S_KST}, 0, s{S_KST}",
         f"s_lshl_b32 s{S_XO}, s{S_KST}, 7", f"s_mul_i32 s{S_WO}, s{S_KST}, {64*wstride}", f"s_add_u32 s{S_DSLOT}, s{S_DSLOT}, {SLOT}",
         f"s_cmp_ge_u32 s{S_DSLOT}, {3*SLOT}\ns_cselect_b32 s{S_TMP}, {3*SLOT}, 0", f"s_sub_u32 s{S_DSLOT}, s{S_DSLOT}, s{S_TMP}",
         f"s_add_u32 s{S_M0X}, s{S_DSLOT}, s{S_LX}", f"s_add_u32 s{S_M0W}, s{S_DSLOT}, s{S_LW}"]
    if two_w: l.append(f"s_add_u32 s{S_M0W2}, s{S_DSLOT}, s{S_LW2}")
    return l

def dma_init(e, two_w, wstride):
    e(f"s_mov_b32 s{S_DSLOT}, 0"); e(f"s_mov_b32 s{S_KST}, s{S_KROT}"); e(f"s_lshl_b32 s{S_XO}, s{S_KST}, 7"); e(f"s_mul_i32 s{S_WO}, s{S_KST}, {64*wstride}")
    e(f"s_mov_b32 s{S_M0X}, s{S_LX}"); e(f"s_mov_b32 s{S_M0W}, s{S_LW}")
    if two_w: e(f"s_mov_b32 s{S_M0W2}, s{S_LW2}")
def dma_full(e, dg, wstride, two_w):
    for (a,l) in dg: e(a); e(l)
    for s in adv_dma_list(wstride, two_w): e(s)

def emit_mainloop(e, name, NT, NF, XF, WF, dg, reads, bump, wstride, two_w, late_setup, late_groups, is_ffn, first_extra, VP, RSPAN=0.6):
    NTOT = len(dg); half = NTOT//2; M = NT*NF
    def mfmas(setn):
        out=[]
        for tt in range(NT):
            for j in range(NF):
                a = (tt*NF+j)*4
                out.append(f"v_mfma_f32_16x16x32_bf16 v[{a}:{a+3}], a[{WF+(setn*NF+j)*4}:{WF+(setn*NF+j)*4+3}], a[{XF+(setn*NT+tt)*4}:{XF+(setn*NT+tt)*4+3}], v[{a}:{a+3}]")
        return out
    def emit(mf, sched):
        for i,m in enumerate(mf):
            e(m)
            for s in sched[i]: e(s)
    upd = [f"s_add_u32 s{S_T46}, s{S_RSLOT}, {SLOT}", f"s_cmp_ge_u32 s{S_T46}, {3*SLOT}\ns_cselect_b32 s{S_DELTA}, {3*SLOT}, 0", f"s_sub_u32 s{S_T46}, s{S_T46}, s{S_DELTA}",
           f"s_sub_u32 s{S_DELTA}, s{S_T46}, s{S_RSLOT}", f"s_mov_b32 s{S_RSLOT}, s{S_T46}"]
    def k0(dmas, adv, groups=None, last=None):
        sched=[[] for _ in range(M)]
        place(sched, reads(1,1), 0.0, RSPAN)
        if dmas: place_dma(sched, dmas, 0.05, 0.85)
        if groups: place_groups(sched, groups)
        place(sched, upd, 0.0, 0.3)
        place(sched, [f"v_add_u32 v{r}, s{S_DELTA}, v{r}" for r in bump], RSPAN+0.03, 0.98)
        if adv: place(sched, adv_dma_list(wstride, two_w), 0.87, 1.0)
        if last: sched[M-1].append(last)
        emit(mfmas(0), sched)
    def k1(dmas, groups=None, tail=None, do_reads=True):
        sched=[[] for _ in range(M)]
        if do_reads: place(sched, reads(0,0), 0.0, RSPAN)
        if dmas: place_dma(sched, dmas, 0.05, 0.85)
        if groups: place_groups(sched, groups)
        if tail:
            place(sched, tail[:-1], 0.93, 0.95); sched[M-1].append(tail[-1])
        emit(mfmas(1), sched)
    def place_groups(sched, groups):
        n = len(groups)
        for k,(setup, ld) in enumerate(groups):
            pos = int((0.05 + 0.85*(k+0.5)/n)*M); pos = min(max(pos,1), M-1)
            for t in setup: sched[pos-1].append(t)
            sched[pos].append(ld)
    def wait_extra(tag, base):
        e(f"s_cbranch_scc0 {name}_wx{tag}")
        e(f"s_waitcnt vmcnt({base}) lgkmcnt(0)")
        e(f"{name}_w0{tag}:")
    def wait_extra_ool(tag, base, vals):
        e(f"{name}_wx{tag}:")
        for v in vals:
            lab = e.label(f"{name}_x")
            e(f"s_cmp_eq_u32 s{S_EXTRA}, {v}"); e(f"s_cbranch_scc0 {lab}")
            e(f"s_waitcnt vmcnt({min(63, base+v)}) lgkmcnt(0)"); e(f"s_mov_b32 s{S_EXTRA}, 0"); e(f"s_branch {name}_w0{tag}")
            e(f"{lab}:")
        e(f"s_waitcnt vmcnt({base}) lgkmcnt(0)"); e(f"s_mov_b32 s{S_EXTRA}, 0"); e(f"s_branch {name}_w0{tag}")
    stamp(e, 1)
    if STAMPS == 1:
        e("s_memtime s[100:101]"); e("s_waitcnt lgkmcnt(0)"); e("s_mov_b32 s96, s100")
    e(f"v_lshlrev_b32 v{VP+1}, 7, v{VL}"); e(f"v_mov_b32 v{VP}, 0")
    for s in reads(0,0): e(s)
    first_hook = FLAG_STAGE if is_ffn else POLL_STAGE
    e(f"s_cmp_eq_u32 s{S_WAVE}, 0"); e(f"s_cselect_b32 s{S_HOOK}, {first_hook}, 99")
    e("s_waitcnt lgkmcnt(0)")
    e(f"s_mov_b32 s{S_STG}, 0"); e(f"s_mov_b32 s{S_RSLOT}, 0"); e(f"s_mov_b32 s{S_EXTRA}, {first_extra}")
    e(f"{name}_loop:")
    k0(dg[half:], True, last=f"s_cmp_eq_u32 s{S_EXTRA}, 0")
    wait_extra("a", NTOT)
    e("s_barrier")
    e(f"s_cmp_eq_u32 s{S_STG}, s{S_HOOK}"); e(f"s_cbranch_scc1 {name}_hook")
    e(f"{name}_go:")
    if STAMPS == 3:
        e("s_memrealtime s[100:101]"); e("s_waitcnt lgkmcnt(0)"); e(f"s_mov_b32 m0, s{S_STG}"); e("s_nop 0"); e("s_movreld_b32 s68, s100")
    k1(dg[:half], tail=[f"s_add_u32 s{S_STG}, s{S_STG}, 1", f"s_cmp_lt_u32 s{S_STG}, 7"])
    e("s_waitcnt lgkmcnt(0)")
    e(f"s_cbranch_scc1 {name}_loop")
    ng = len(late_groups); n1 = min(half, ng); n2 = min(NTOT-half, ng-n1); n3 = ng-n1-n2
    g1 = late_groups[:n1]; g2 = late_groups[n1:n1+n2]; g3 = late_groups[n1+n2:]
    k0(dg[half:], False, last=f"s_cmp_eq_u32 s{S_EXTRA}, 0")
    wait_extra("b", 0 + (NTOT - half) + half)
    e(f"s_cmp_eq_u32 s{S_WAVE}, 0"); e(f"s_cbranch_scc1 {name}_chk")
    e(f"{name}_bar7:")
    e("s_barrier")
    if STAMPS == 3:
        e("s_memrealtime s[100:101]"); e("s_waitcnt lgkmcnt(0)"); e("s_mov_b32 s75, s100")
    late_setup()
    k1(None, groups=g1)
    e("s_waitcnt lgkmcnt(0)")
    k0(None, False, groups=g2)
    e(f"s_waitcnt vmcnt({n1+n2}) lgkmcnt(0)")
    e("s_barrier")
    if STAMPS == 3:
        e("s_memrealtime s[100:101]"); e("s_waitcnt lgkmcnt(0)"); e("s_mov_b32 s76, s100")
    k1(None, groups=g3 if g3 else None)
    e("s_waitcnt lgkmcnt(0)")
    k0(None, False)
    e("s_waitcnt lgkmcnt(0)")
    if STAMPS == 3:
        e("s_memrealtime s[100:101]"); e("s_waitcnt lgkmcnt(0)"); e("s_mov_b32 s77, s100")
    k1(None, do_reads=False)
    e(f"s_branch {name}_done")
    wait_extra_ool("a", NTOT, sorted(set([1] + ([first_extra] if first_extra else []))))
    wait_extra_ool("b", NTOT, [1])
    e(f"{name}_chk:")
    e(f"s_mov_b32 s53, 0")
    e(f"{name}_chk2:")
    e("s_mov_b64 exec, 3")
    e(f"v_cmp_ne_u32 vcc, {NFLAG}, v{VP}")
    e("s_mov_b64 exec, -1")
    e("s_nop 1")
    e(f"s_cbranch_vccz {name}_bar7")
    e("s_add_u32 s53, s53, 1"); e("s_cmp_ge_u32 s53, 0x40000"); e(f"s_cbranch_scc1 {name}_bar7")
    e("s_sleep 8")
    e("s_mov_b64 exec, 3")
    e(f"buffer_load_dword v{VP}, v{VP+1}, s[{S_DBG}:{S_DBG+3}], 0 offen sc1")
    e("s_mov_b64 exec, -1")
    e("s_waitcnt vmcnt(0)")
    e(f"s_branch {name}_chk2")
    e(f"{name}_hook:")
    if is_ffn:
        e(f"s_cmp_eq_u32 s{S_STG}, {FLAG_STAGE}"); e(f"s_cbranch_scc0 {name}_poll")
        e(f"s_and_b32 s53, s{S_N}, 1"); e("s_lshl_b32 s53, s53, 7"); e(f"v_mov_b32 v{VP+1}, s53"); e(f"v_mov_b32 v{VP}, 1")
        e("s_mov_b64 exec, 1")
        e(f"buffer_atomic_add v{VP}, v{VP+1}, s[{S_DBG}:{S_DBG+3}], 0 offen")
        e("s_mov_b64 exec, -1")
        e(f"s_mov_b32 s{S_HOOK}, {POLL_STAGE}")
        e(f"s_mov_b32 s{S_EXTRA}, 1"); e(f"s_branch {name}_go")
        e(f"{name}_poll:")
    e(f"v_lshlrev_b32 v{VP+1}, 7, v{VL}")
    e("s_mov_b64 exec, 3")
    e(f"buffer_load_dword v{VP}, v{VP+1}, s[{S_DBG}:{S_DBG+3}], 0 offen sc1")
    e("s_mov_b64 exec, -1")
    e(f"s_mov_b32 s{S_HOOK}, 99")
    e(f"s_mov_b32 s{S_EXTRA}, 1"); e(f"s_branch {name}_go")
    e(f"{name}_done:")
    e("s_nop 7")
    stamp(e, 2)
    if STAMPS == 1:
        e("s_memtime s[100:101]"); e("s_waitcnt lgkmcnt(0)"); e("s_sub_u32 s96, s100, s96")
        stamp_flush_part(e, 1, [6], S_WS, S_WAVE, 0, 250)
    flush3(e)

def x_dma_addr(e, DXA, NXD):
    e(f"v_lshrrev_b32 v200, 3, v{VL}"); e(f"v_lshrrev_b32 v201, 4, v{VL}"); e(f"v_and_b32 v202, 7, v{VL}")
    e(f"s_mul_i32 s30, s{S_WAVE}, {NXD*8}"); e(f"s_add_u32 s30, s30, s{S_T0}")
    e(f"s_mul_i32 s31, s{S_WAVE}, {NXD*4}")
    e("v_add_u32 v204, s30, v200"); e("v_mul_u32_u24 v204, 1280, v204")
    for par in range(2):
        e(f"v_add_u32 v203, {4*par}, v201"); e("v_add_u32 v203, s31, v203"); e("v_and_b32 v203, 7, v203"); e("v_xor_b32 v203, v203, v202"); e("v_lshlrev_b32 v203, 4, v203")
        e(f"v_add_u32 v{205+par}, v203, v204")
    for i in range(NXD):
        e(f"v_add_u32 v{DXA+i}, {8*i*1280}, v{205+(i&1)}")
    e(f"s_mul_i32 s{S_LX}, s{S_WAVE}, {NXD*1024}")

def x_read_addr(e, XRD, tok_off_s):
    e(f"v_and_b32 v200, 15, v{VL}"); e(f"v_lshrrev_b32 v201, 4, v{VL}")
    e("v_lshrrev_b32 v202, 1, v200"); e("v_xor_b32 v202, v202, v201"); e("v_and_b32 v202, 7, v202"); e("v_lshlrev_b32 v202, 4, v202")
    e("v_lshlrev_b32 v203, 7, v200"); e("v_add_u32 v203, v203, v202"); e(f"v_add_u32 v{XRD}, s{tok_off_s}, v203"); e(f"v_xor_b32 v{XRD+1}, 64, v{XRD}")

def x_reads(XF, NT, XRD, ks, setn):
    return [f"ds_read_b128 a[{XF+(setn*NT+tt)*4}:{XF+(setn*NT+tt)*4+3}], v{XRD+ks} offset:{tt*2048}" for tt in range(NT)]

def load_stats(e, NT, dst_v, tok0_s, tmp):
    e(f"v_and_b32 v{tmp}, 15, v{VL}"); e(f"v_add_u32 v{tmp}, s{tok0_s}, v{tmp}"); e(f"v_lshlrev_b32 v{tmp}, 3, v{tmp}")
    for tt in range(NT):
        e(f"buffer_load_dwordx2 v[{dst_v+2*tt}:{dst_v+2*tt+1}], v{tmp}, s[{S_WS}:{S_WS+3}], 0 offen offset:{OFF_STATS + tt*128} sc1")

ROT = int(os.environ.get("K1_ROT", 0))
def krot(e):
    if not ROT:
        e(f"s_mov_b32 s{S_KROT}, 0"); return
    e(f"s_mul_i32 s53, s{S_CG}, 3"); e(f"s_add_u32 s53, s53, s{S_RB}"); e(f"s_add_u32 s53, s53, s{S_RB}"); e(f"s_add_u32 s53, s53, s{S_RB}")
    e(f"s_mul_hi_u32 s54, s53, {(1<<32)//10+1}"); e("s_mul_i32 s54, s54, 10"); e(f"s_sub_u32 s{S_KROT}, s53, s54")

def code_prefetch(e):
    e("s_getpc_b64 s[54:55]")
    l = e.label("PC")
    e(f"{l}:")
    e(f"s_sub_u32 s54, s54, {l}-k1_kernel"); e(f"s_subb_u32 s55, s55, 0")
    e("s_lshr_b32 s53, s2, 3"); e("s_lshl_b32 s53, s53, 11"); e("s_min_u32 s53, s53, CODE_END-k1_kernel-2048")
    e(f"s_lshl_b32 s60, s{S_WAVE}, 9"); e("s_add_u32 s53, s53, s60")
    e(f"v_lshlrev_b32 v200, 4, v{VL}"); e("v_add_u32 v200, s53, v200")
    e("s_mov_b32 exec_hi, 0")
    e("global_load_dwordx4 a[252:255], v200, s[54:55]")
    e("s_mov_b64 exec, -1")

def flush3(e):
    if STAMPS != 3: return
    lab = e.label("F3")
    e(f"s_cmp_eq_u32 s{S_WAVE}, 0"); e(f"s_cbranch_scc0 {lab}")
    e(f"s_lshl_b32 s100, s2, 6"); e(f"s_add_u32 s100, s100, {OFF_TS + 256*64}")
    e("s_mov_b64 exec, 1"); e("v_mov_b32 v251, 0")
    for i in range(10):
        e(f"v_mov_b32 v250, s{68+i}"); e(f"buffer_store_dword v250, v251, s[{S_WS}:{S_WS+3}], s100 offen offset:{24+4*i}")
    e("s_mov_b64 exec, -1"); e(f"{lab}:")

TLBW = int(os.environ.get("K1_TLB", 0))
def tlb_warm(e):
    if not TLBW: return
    n = (18 << 20) // TLBW
    e(f"s_lshl_b32 s53, s2, 2"); e(f"s_add_u32 s53, s53, s{S_WAVE}")
    e(f"v_lshlrev_b32 v200, 10, v{VL}"); e("v_add_u32 v200, s53, v200")
    e(f"v_cmp_gt_u32 vcc, {n}, v200"); e(f"s_mov_b32 s54, {TLBW}"); e("v_mul_lo_u32 v200, v200, s54")
    e("s_mov_b64 exec, vcc")
    l = e.label("TW"); e(f"s_cbranch_execz {l}")
    e(f"buffer_load_dword a252, v200, s[{S_WS}:{S_WS+3}], 0 offen")
    e(f"{l}:")
    e("s_mov_b64 exec, -1")

def sentinel(e):
    e("v_mov_b32 v240, -1"); e("v_mov_b32 v241, -1"); e(f"s_lshl_b32 s30, s{S_WAVE}, 6"); e(f"v_add_u32 v242, s30, v{VL}"); e("v_lshlrev_b32 v242, 3, v242")
    e("s_lshr_b32 s30, s2, 3"); e("s_mul_i32 s30, s30, 68"); e("s_add_u32 s30, s30, 48"); e("s_lshl_b32 s30, s30, 12")
    e("s_and_b32 s31, s2, 7"); e("s_mul_i32 s31, s31, 10240"); e("s_add_u32 s30, s30, s31"); e(f"s_add_u32 s30, s30, {OFF_ACT}")
    for k in range(5):
        e(f"buffer_store_dwordx2 v[240:241], v242, s[{S_WS}:{S_WS+3}], s30 offen sc1")
        if k < 4: e("s_add_u32 s30, s30, 2048")

def gen_ffn(e):
    NT, NF = 10, 4
    XF = 0; WF = XF + 2*NT*4
    CS = 112
    XRD = 160; WRD = 162; DXA = 164; DWA = 169
    ST = 174
    VP = 194
    SOFF = 80
    e("FFN:")
    krot(e)
    e(f"s_mul_i32 s{S_T0}, s{S_RB}, 160")
    e(f"s_load_dwordx2 s[4:5], s[0:1], {KA_WG}"); e(f"s_load_dwordx2 s[6:7], s[0:1], {KA_WU}"); e(f"s_load_dwordx2 s[60:61], s[0:1], {KA_WQKV}")
    x_dma_addr(e, DXA, 5)
    e(f"v_lshrrev_b32 v200, 4, v{VL}"); e(f"v_and_b32 v201, 15, v{VL}"); e("v_lshlrev_b32 v202, 1, v200")
    e(f"s_lshl_b32 s31, s{S_CG}, 8")
    e(f"s_lshl_b32 s32, s{S_WAVE}, 4")
    e("v_add_u32 v204, s32, v200"); e("v_mul_u32_u24 v204, 3072, v204"); e("v_add_u32 v204, s31, v204")
    for par in range(2):
        e(f"v_xor_b32 v203, {par<<3}, v202"); e("v_xor_b32 v203, v203, v201"); e("v_lshlrev_b32 v203, 4, v203"); e(f"v_add_u32 v{205+par}, v203, v204")
    for i in range(4): e(f"v_add_u32 v{DWA+i}, {4*i*3072}, v{205+((i>>1)&1)}")
    e(f"s_lshl_b32 s{S_LW}, s{S_WAVE}, 12"); e(f"s_add_u32 s{S_LW2}, s{S_LW}, {20480+16384}"); e(f"s_add_u32 s{S_LW}, s{S_LW}, 20480")
    e("s_waitcnt lgkmcnt(0)")
    srd(e, S_W, 4, 640*3072); srd(e, S_W2, 6, 640*3072)
    dg = []
    for i in range(5): dg.append((f"s_add_u32 m0, s{S_M0X}, {i*1024}", f"buffer_load_dwordx4 v{DXA+i}, s[{S_X}:{S_X+3}], s{S_XO} offen lds"))
    for i in range(4): dg.append((f"s_add_u32 m0, s{S_M0W}, {i*1024}", f"buffer_load_dwordx4 v{DWA+i}, s[{S_W}:{S_W+3}], s{S_WO} offen lds"))
    for i in range(4): dg.append((f"s_add_u32 m0, s{S_M0W2}, {i*1024}", f"buffer_load_dwordx4 v{DWA+i}, s[{S_W2}:{S_W2+3}], s{S_WO} offen lds"))
    dg = [dg[0],dg[5],dg[9],dg[1],dg[6],dg[10], dg[2],dg[7],dg[11],dg[3],dg[8],dg[12],dg[4]]
    dma_init(e, True, 3072)
    dma_full(e, dg, 3072, True)
    e("s_cmp_ge_u32 s78, 20"); e("s_cselect_b32 s30, 20, 0"); e("s_cselect_b32 s32, 1024, 0"); e("s_sub_u32 s30, s78, s30")
    e("s_cmp_ge_u32 s30, 16"); e("s_cselect_b32 s62, 0x40000000, 0")
    e("s_lshl_b32 s31, s79, 4"); e("s_add_u32 s30, s30, s31"); e("s_lshl_b32 s30, s30, 4"); e("s_add_u32 s30, s30, s32")
    e(f"s_lshl_b32 s31, s{S_WAVE}, 2"); e("s_add_u32 s30, s30, s31")
    e(f"v_lshrrev_b32 v200, 5, v{VL}"); e("v_add_u32 v196, s30, v200")
    e(f"v_and_b32 v197, 31, v{VL}")
    e("v_mul_u32_u24 v201, 1280, v196"); e("v_lshlrev_b32 v202, 3, v197"); e("v_add_u32 v201, v201, v202")
    e("s_mov_b32 s31, s62"); e("s_add_u32 s32, s31, 2560")
    for ps in range(2):
        for k in range(5):
            e(f"buffer_load_dwordx2 v[{ps*10+2*k}:{ps*10+2*k+1}], v201, s[{S_X}:{S_X+3}], s{31+ps} offen offset:{k*256}")
    e("s_cmp_ge_u32 s78, 24"); e("s_cbranch_scc1 FFN_uq")
    e("s_lshr_b32 s30, s78, 1"); e("s_and_b32 s63, s78, 1"); e("s_mul_i32 s31, s79, 6"); e("s_add_u32 s31, s31, s30")
    e("s_cmp_ge_u32 s30, 6"); e("s_cselect_b32 s30, 48, 30"); e("s_add_u32 s30, s30, s31")
    e("s_branch FFN_ud")
    e("FFN_uq:")
    e("s_mul_i32 s31, s79, 15"); e("s_add_u32 s31, s31, s78"); e("s_sub_u32 s31, s31, 24"); e("s_and_b32 s63, s31, 1"); e("s_lshr_b32 s31, s31, 1")
    udiv_const(e, 30, 31, 3)
    e("s_mul_i32 s33, s30, 3"); e("s_sub_u32 s33, s31, s33"); e("s_mul_i32 s33, s33, 10"); e("s_add_u32 s30, s30, s33")
    e("FFN_ud:")
    e("s_mov_b32 s77, s30")
    e("s_mov_b32 s64, s60"); e("s_and_b32 s65, s61, 0xffff"); e(f"s_mov_b32 s66, {640*3840}"); e("s_mov_b32 s67, 0x20000"); e("s_mov_b32 s33, 3840"); e("s_mov_b32 s32, s30")
    e("s_cmp_ge_u32 s30, 30"); e("s_cbranch_scc0 FFN_msel")
    e("s_mov_b32 s64, s4"); e("s_and_b32 s65, s5, 0xffff"); e(f"s_mov_b32 s66, {640*3072}"); e("s_mov_b32 s33, 3072"); e("s_sub_u32 s32, s30, 30")
    e("s_cmp_ge_u32 s30, 54"); e("s_cbranch_scc0 FFN_msel")
    e("s_mov_b32 s64, s6"); e("s_and_b32 s65, s7, 0xffff"); e("s_sub_u32 s32, s30, 54")
    e("FFN_msel:")
    e("s_mul_i32 s31, s63, 320"); e(f"s_lshl_b32 s53, s{S_WAVE}, 3"); e("s_add_u32 s31, s31, s53")
    e(f"v_lshrrev_b32 v200, 3, v{VL}"); e("v_add_u32 v200, s31, v200"); e("v_mul_lo_u32 v200, v200, s33")
    e(f"v_and_b32 v201, 7, v{VL}"); e("v_lshlrev_b32 v201, 4, v201"); e("s_lshl_b32 s32, s32, 7"); e("v_add_u32 v201, s32, v201"); e("v_add_u32 v200, v200, v201")
    e("s_lshl_b32 s33, s33, 5"); e("s_mov_b32 s31, 0")
    for k in range(10):
        e(f"buffer_load_dwordx4 v[{20+4*k}:{23+4*k}], v200, s[64:67], s31 offen")
        if k < 9: e("s_add_u32 s31, s31, s33")
    dma_full(e, dg, 3072, True)
    e(f"s_mov_b32 s30, 0")
    x_read_addr(e, XRD, 30)
    e(f"v_and_b32 v200, 15, v{VL}"); e(f"v_lshrrev_b32 v201, 4, v{VL}")
    e("v_lshrrev_b32 v202, 2, v200"); e("v_and_b32 v203, 3, v200")
    e("v_lshlrev_b32 v204, 3, v201"); e("v_add_u32 v204, v204, v202"); e("v_lshlrev_b32 v204, 8, v204")
    e("v_lshlrev_b32 v205, 1, v202"); e("v_and_b32 v206, 1, v201"); e("v_lshlrev_b32 v206, 3, v206"); e("v_or_b32 v205, v205, v206")
    e("v_lshrrev_b32 v206, 1, v203"); e(f"s_lshl_b32 s30, s{S_WAVE}, 2"); e("v_add_u32 v206, s30, v206")
    e("v_and_b32 v207, 1, v203"); e("v_lshlrev_b32 v207, 3, v207")
    for j in range(2):
        e(f"v_add_u32 v199, {2*j}, v206"); e("v_xor_b32 v199, v199, v205"); e("v_lshlrev_b32 v199, 4, v199"); e("v_add_u32 v199, v199, v207")
        e("v_add_u32 v199, v199, v204"); e(f"v_add_u32 v{WRD+j}, 20480, v199")
    e(f"s_lshl_b32 s30, s{S_CG}, 2"); e(f"s_add_u32 s30, s30, s{S_WAVE}"); e(f"s_mul_i32 s31, s{S_RB}, 10")
    for tt in range(NT):
        d = SOFF+tt
        e(f"s_add_u32 s32, s31, {tt}"); e("s_lshr_b32 s33, s32, 2"); e("s_mul_i32 s33, s33, 68"); e("s_add_u32 s33, s33, s30"); e("s_lshl_b32 s33, s33, 2")
        e("s_and_b32 s53, s32, 3"); e("s_add_u32 s33, s33, s53"); e("s_lshl_b32 s33, s33, 10"); e(f"s_add_u32 s33, s33, {OFF_ACT}")
        e("s_cmp_ge_u32 s32, 128"); e(f"s_cselect_b32 s{d}, 0x7ffffff0, s33")
    for i in range(60, 160): e(f"v_mov_b32 v{i}, 0")
    e("s_waitcnt vmcnt(13)")
    st = []
    for ps in range(2):
        a = []
        S0 = 200+2*ps; S1 = S0+1
        a.append(f"v_mov_b32 v{S0}, 0"); a.append(f"v_mov_b32 v{S1}, 0")
        for k in range(10):
            a.append(f"v_dot2c_f32_bf16 v{S0}, 0x3f803f80, v{ps*10+k}"); a.append(f"v_dot2c_f32_bf16 v{S1}, v{ps*10+k}, v{ps*10+k}")
        for sh in (1,2,4,8):
            a.append(f"v_add_f32_dpp v{S0}, v{S0}, v{S0} row_shr:{sh} row_mask:0xf bank_mask:0xf bound_ctrl:0")
            a.append(f"v_add_f32_dpp v{S1}, v{S1}, v{S1} row_shr:{sh} row_mask:0xf bank_mask:0xf bound_ctrl:0")
        a.append(f"v_add_f32_dpp v{S0}, v{S0}, v{S0} row_bcast:15 row_mask:0xa bank_mask:0xf")
        a.append(f"v_add_f32_dpp v{S1}, v{S1}, v{S1} row_bcast:15 row_mask:0xa bank_mask:0xf")
        a.append(f"v_mul_f32 v{S0}, {1.0/640!r}, v{S0}"); a.append(f"v_mul_f32 v{S1}, {1.0/640!r}, v{S1}")
        a.append(f"v_fma_f32 v{S1}, -v{S0}, v{S0}, v{S1}"); a.append(f"v_max_f32 v{S1}, 0, v{S1}"); a.append(f"v_add_f32 v{S1}, {1e-5!r}, v{S1}"); a.append(f"v_rsq_f32 v{S1}, v{S1}")
        st.append(a)
    cs = []
    for i in range(8): cs.append(f"v_mov_b32 v{204+i}, 0")
    for k in range(10):
        for d in range(4):
            r = 20+4*k+d
            cs.append(f"v_lshlrev_b32 v212, 16, v{r}"); cs.append(f"v_and_b32 v213, 0xffff0000, v{r}")
            cs.append(f"v_pk_add_f32 v[{204+2*d}:{205+2*d}], v[{204+2*d}:{205+2*d}], v[212:213]")
    zip2(e, st[0], st[1])
    for it in cs: e(it)
    SCR = 2*SLOT
    e(f"s_lshl_b32 s30, s{S_WAVE}, 11"); e(f"v_lshlrev_b32 v214, 5, v{VL}"); e("v_add_u32 v214, s30, v214"); e(f"v_add_u32 v214, {SCR}, v214")
    e("ds_write_b128 v214, v[204:207]"); e("ds_write_b128 v214, v[208:211] offset:16")
    e("v_lshlrev_b32 v196, 3, v196")
    e(f"s_add_u32 s31, s62, {OFF_STATS}"); e("s_add_u32 s32, s31, 16")
    e("v_cmp_eq_u32 vcc, 31, v197"); e("s_mov_b64 exec, vcc")
    e(f"buffer_store_dwordx2 v[200:201], v196, s[{S_WS}:{S_WS+3}], s31 offen sc1")
    e(f"buffer_store_dwordx2 v[202:203], v196, s[{S_WS}:{S_WS+3}], s32 offen sc1")
    e("s_mov_b64 exec, -1")
    for i in range(60): e(f"v_mov_b32 v{i}, 0")
    e("s_waitcnt lgkmcnt(0)"); e("s_barrier")
    e(f"v_and_b32 v200, 15, v{VL}"); e(f"s_lshl_b32 s30, s{S_WAVE}, 4"); e("v_add_u32 v200, s30, v200")
    e("v_lshrrev_b32 v201, 3, v200"); e("v_lshlrev_b32 v201, 5, v201"); e("v_and_b32 v202, 7, v200"); e("v_lshlrev_b32 v202, 2, v202"); e("v_add_u32 v201, v201, v202")
    e(f"v_lshrrev_b32 v202, 4, v{VL}"); e("v_lshlrev_b32 v202, 11, v202"); e("v_add_u32 v201, v201, v202"); e(f"v_add_u32 v201, {SCR}, v201")
    for i in range(8): e(f"ds_read_b32 v{204+i}, v201 offset:{i*256}")
    e("s_waitcnt lgkmcnt(0)")
    e("v_add_f32 v204, v204, v205"); e("v_add_f32 v206, v206, v207"); e("v_add_f32 v208, v208, v209"); e("v_add_f32 v210, v210, v211")
    e("v_add_f32 v204, v204, v206"); e("v_add_f32 v208, v208, v210"); e("v_add_f32 v204, v204, v208")
    for sw in ("v_permlane16_swap_b32", "v_permlane32_swap_b32"):
        e("v_mov_b32 v205, v204"); e(f"{sw} v204, v205"); e("v_add_f32 v204, v204, v205")
    e("s_mul_i32 s30, s63, 4992"); e("s_lshl_b32 s31, s77, 6"); e("s_add_u32 s30, s30, s31"); e("s_lshl_b32 s30, s30, 2"); e(f"s_add_u32 s30, s30, {OFF_CS}")
    e("v_lshlrev_b32 v200, 2, v200")
    e("s_mov_b64 exec, 0xffff")
    e(f"buffer_store_dword v204, v200, s[{S_WS}:{S_WS+3}], s30 offen sc1")
    e("s_mov_b64 exec, -1")
    code_prefetch(e); tlb_warm(e)
    e("s_barrier")
    for (a,l) in dg[:len(dg)//2]: e(a); e(l)
    def reads(ks, setn):
        w = []
        for t4 in range(4):
            r = WF + (setn*NF + t4)*4
            off = (16384 if t4 >= 2 else 0) + ks*8192
            w.append(f"ds_read_b64_tr_b16 a[{r}:{r+1}], v{WRD+(t4&1)} offset:{off}")
            w.append(f"ds_read_b64_tr_b16 a[{r+2}:{r+3}], v{WRD+(t4&1)} offset:{off+1024}")
        xs = x_reads(XF, NT, XRD, ks, setn)
        return xs[:1] + w + xs[1:]
    def late_setup():
        e(f"v_and_b32 v{VP}, 15, v{VL}"); e(f"v_add_u32 v{VP}, s{S_T0}, v{VP}"); e(f"v_lshlrev_b32 v{VP}, 3, v{VP}")
        e(f"v_lshrrev_b32 v{VP+1}, 4, v{VL}"); e(f"v_lshlrev_b32 v{VP+1}, 4, v{VP+1}")
        e(f"s_lshl_b32 s30, s{S_CG}, 7"); e(f"s_lshl_b32 s31, s{S_WAVE}, 5"); e("s_add_u32 s30, s30, s31"); e("s_lshl_b32 s30, s30, 2")
        e(f"v_add_u32 v{VP+1}, s30, v{VP+1}")
    lg = []
    for tt in range(NT):
        lg.append(([], f"buffer_load_dwordx2 v[{ST+2*tt}:{ST+2*tt+1}], v{VP}, s[{S_WS}:{S_WS+3}], 0 offen offset:{OFF_STATS + tt*128} sc1"))
    for p in range(2):
        for t4 in range(4):
            base = (1920 if t4 < 2 else 3456) + 16*(t4 & 1)
            lg.append(([f"s_mov_b32 s31, {OFF_CS + (p*4992 + base)*4}"], f"buffer_load_dwordx4 a[{CS+p*16+t4*4}:{CS+p*16+t4*4+3}], v{VP+1}, s[{S_WS}:{S_WS+3}], s31 offen sc1"))
    emit_mainloop(e, "FFN", NT, NF, XF, WF, dg, reads, [XRD, XRD+1, WRD, WRD+1], 3072, True, late_setup, lg, True, 4, VP)
    e("s_waitcnt vmcnt(0)")
    sentinel(e)
    e("s_barrier")
    e(f"s_load_dwordx2 s[4:5], s[0:1], {KA_WD}"); e(f"s_load_dwordx2 s[6:7], s[0:1], {KA_WO}")
    e(f"v_lshrrev_b32 v196, 3, v{VL}"); e("v_mul_u32_u24 v196, 1280, v196"); e(f"v_and_b32 v197, 7, v{VL}"); e("v_lshlrev_b32 v197, 4, v197"); e("v_add_u32 v196, v196, v197")
    e("s_waitcnt lgkmcnt(0)")
    for rnd in range(2):
        U = 68+rnd*4
        e(f"s_lshl_b32 s{U}, s{S_N}, 2"); e(f"s_add_u32 s{U}, s{U}, s{S_WAVE}")
        if rnd: e(f"s_add_u32 s{U}, s{U}, 624")
        udiv_const(e, U+1, U, 10)
        e(f"s_mul_i32 s{U+2}, s{U+1}, 10"); e(f"s_sub_u32 s{U+2}, s{U}, s{U+2}")
        e("s_mov_b32 s64, s4"); e("s_and_b32 s65, s5, 0xffff"); e(f"s_mov_b32 s66, {1536*1280}"); e("s_mov_b32 s67, 0x20000"); e(f"s_mov_b32 s30, s{U+1}")
        lab = e.label("FFN_ws")
        e(f"s_cmp_ge_u32 s{U+1}, 48"); e(f"s_cbranch_scc0 {lab}")
        e("s_mov_b32 s64, s6"); e("s_and_b32 s65, s7, 0xffff"); e(f"s_mov_b32 s66, {640*1280}"); e(f"s_sub_u32 s30, s{U+1}, 48")
        e(f"{lab}:")
        e(f"s_cmp_ge_u32 s{U}, 680"); e("s_cselect_b32 s66, 0, s66")
        e(f"s_mul_i32 s30, s30, {32*1280}"); e(f"s_lshl_b32 s31, s{U+2}, 7"); e("s_add_u32 s30, s30, s31")
        e(f"s_lshl_b32 s31, s{S_WAVE}, 13"); e(f"s_add_u32 s31, s31, {rnd*4096}")
        for k in range(4):
            e(f"s_add_u32 m0, s31, {k*1024}")
            e("buffer_load_dwordx4 v196, s[64:67], s30 offen lds")
            if k < 3: e(f"s_add_u32 s30, s30, {8*1280}")
    for i in range(16): e(f"v_accvgpr_read_b32 v{224+i}, a{CS+i}")
    for i in range(16): e(f"v_accvgpr_read_b32 v{196+i}, a{CS+16+i}")
    for i in range(0, 16, 2): e(f"v_pk_add_f32 v[{224+i}:{225+i}], v[{224+i}:{225+i}], v[{196+i}:{197+i}]")
    e(f"v_lshlrev_b32 v240, 4, v{VL}")
    def tile(tt, R):
        s = []; a = s.append
        m = ST+2*tt; r = m+1; A = tt*16
        a(f"v_sub_f32 v{R}, 0, v{m}"); a(f"v_mul_f32 v{R+2}, {-LOG2E!r}, v{r}"); a(f"v_mul_f32 v{R+4}, v{r}, v{r}"); a(f"v_rcp_f32 v{R+4}, v{R+4}")
        for k in range(0, 16, 2): a(f"v_pk_fma_f32 v[{A+k}:{A+k+1}], v[{224+k}:{225+k}], v[{R}:{R+1}], v[{A+k}:{A+k+1}] op_sel_hi:[1,0,1]")
        E = R+6
        for k in range(0, 8, 2): a(f"v_pk_mul_f32 v[{E+k}:{E+k+1}], v[{A+k}:{A+k+1}], v[{R+2}:{R+3}] op_sel_hi:[1,0]")
        for k in range(8): a(f"v_exp_f32 v{E+k}, v{E+k}")
        for k in range(0, 8, 2): a(f"v_pk_mul_f32 v[{A+k}:{A+k+1}], v[{A+k}:{A+k+1}], v[{A+8+k}:{A+9+k}]")
        for k in range(0, 8, 2): a(f"v_pk_fma_f32 v[{E+k}:{E+k+1}], v[{E+k}:{E+k+1}], v[{R+4}:{R+5}], v[{R+4}:{R+5}] op_sel_hi:[1,0,0]")
        for k in range(8): a(f"v_rcp_f32 v{E+k}, v{E+k}")
        for k in range(0, 8, 2): a(f"v_pk_mul_f32 v[{A+k}:{A+k+1}], v[{A+k}:{A+k+1}], v[{E+k}:{E+k+1}]")
        for k in range(4): a(f"v_cvt_pk_bf16_f32 v{A+8+k}, v{A+2*k}, v{A+2*k+1}")
        a(f"buffer_store_dwordx4 v[{A+8}:{A+11}], v240, s[{S_WS}:{S_WS+3}], s{SOFF+tt} offen{OSC}")
        return s
    for tt in range(0, NT, 2): zip2(e, tile(tt, 196), tile(tt+1, 210))
    e("s_waitcnt vmcnt(10)")
    e(f"v_lshrrev_b32 v3, 4, v{VL}"); e(f"v_and_b32 v4, 15, v{VL}"); e("v_lshrrev_b32 v5, 2, v4"); e("v_and_b32 v6, 3, v4")
    e("v_lshlrev_b32 v3, 2, v3"); e("v_add_u32 v3, v3, v5"); e("v_lshlrev_b32 v3, 7, v3"); e("v_lshlrev_b32 v6, 3, v6"); e("v_add_u32 v3, v3, v6")
    e(f"s_lshl_b32 s31, s{S_WAVE}, 13"); e("v_add_u32 v3, s31, v3")
    for rnd in range(2):
        U = 68+rnd*4
        lab = e.label("FFN_wf")
        e(f"s_cmp_ge_u32 s{U}, 680"); e(f"s_cbranch_scc1 {lab}")
        for ft in range(4):
            e(f"ds_read_b64_tr_b16 v[{16+4*ft}:{17+4*ft}], v3 offset:{rnd*4096+ft*32}")
            e(f"ds_read_b64_tr_b16 v[{18+4*ft}:{19+4*ft}], v3 offset:{rnd*4096+ft*32+16*128}")
        e("s_waitcnt lgkmcnt(0)")
        for ft in range(4):
            e(f"s_lshl_b32 s30, s{U+2}, 2"); e(f"s_add_u32 s30, s30, {ft}")
            udiv_const(e, 31, 30, 5)
            e("s_mul_i32 s32, s31, 5"); e("s_sub_u32 s32, s30, s32")
            e("s_mul_i32 s31, s31, 68"); e(f"s_add_u32 s31, s31, s{U+1}"); e("s_mul_i32 s31, s31, 5"); e("s_add_u32 s31, s31, s32"); e("s_lshl_b32 s31, s31, 10"); e(f"s_add_u32 s31, s31, {OFF_WF}")
            e(f"buffer_store_dwordx4 v[{16+4*ft}:{19+4*ft}], v240, s[{S_WS}:{S_WS+3}], s31 offen{OSC}")
        e(f"{lab}:")
    if STAMPS: e("s_waitcnt vmcnt(0)")
    stamp(e, 3); stamp_flush(e, 1, 4, S_WS, S_WAVE)
    e("s_endpgm")

def fperm():
    ft0 = [('p', 5*q+e_) for q in range(4) for e_ in range(4)]
    ft1 = []
    for q in range(4): ft1 += [('p', 5*q+4), ('m', 5*q), ('m', 5*q+1), ('m', 5*q+2)]
    ft2 = [[('m', 5*q+3), ('m', 5*q+4)] for q in range(4)]
    return ft0, ft1, ft2

def gen_att(e):
    NT, NF = 4, 10
    XF = 0; WF = XF + 2*NT*4
    PHI = 112
    CS = 172
    XRD = 160; WRD = 162; DXA = 172; DWA = 180
    VP = 186
    ST = 246
    WPH = 159744
    e("ATT:")
    krot(e)
    e(f"s_lshl_b32 s{S_T0}, s{S_RB}, 8")
    e(f"s_load_dwordx2 s[4:5], s[0:1], {KA_WQKV}"); e(f"s_load_dwordx2 s[6:7], s[0:1], {KA_WPHI}")
    x_dma_addr(e, DXA, 8)
    e(f"s_mul_i32 s30, s{S_WAVE}, 5")
    e(f"s_lshl_b32 s31, s{S_COL0}, 1"); e(f"s_lshl_b32 s32, s{S_COL1}, 1"); e("s_sub_u32 s32, s32, s31"); e("s_sub_u32 s32, s32, 160")
    e("s_mov_b32 s33, 0xCCCD")
    for i in range(5):
        e(f"s_add_u32 s53, s30, {i}"); e("s_lshl_b32 s53, s53, 6")
        e(f"v_add_u32 v200, s53, v{VL}")
        e("v_mul_lo_u32 v201, v200, s33"); e("v_lshrrev_b32 v201, 20, v201")
        e("v_mul_u32_u24 v202, 20, v201"); e("v_sub_u32 v202, v200, v202")
        e("v_lshrrev_b32 v203, 2, v201"); e("v_and_b32 v203, 2, v203"); e("v_xor_b32 v202, v202, v203")
        e("v_cmp_le_u32 vcc, 10, v202"); e("v_mov_b32 v204, s32"); e("v_cndmask_b32 v204, 0, v204, vcc")
        e("v_lshlrev_b32 v202, 4, v202"); e("v_add_u32 v202, v202, v204")
        e("v_mul_u32_u24 v201, 3840, v201"); e("v_add_u32 v201, v201, v202"); e(f"v_add_u32 v{DWA+i}, s31, v201")
    e(f"s_lshl_b32 s{S_LW}, s30, 10"); e(f"s_add_u32 s{S_LW}, s{S_LW}, 32768")
    e("s_waitcnt lgkmcnt(0)")
    srd(e, S_W, 4, 640*3840); srd(e, S_W2, 6, 32*800)
    dg = []
    for i in range(8): dg.append((f"s_add_u32 m0, s{S_M0X}, {i*1024}", f"buffer_load_dwordx4 v{DXA+i}, s[{S_X}:{S_X+3}], s{S_XO} offen lds"))
    for i in range(5): dg.append((f"s_add_u32 m0, s{S_M0W}, {i*1024}", f"buffer_load_dwordx4 v{DWA+i}, s[{S_W}:{S_W+3}], s{S_WO} offen lds"))
    dg = [dg[0],dg[8],dg[1],dg[9],dg[2],dg[3],  dg[10],dg[4],dg[5],dg[11],dg[6],dg[12],dg[7]]
    dma_init(e, False, 3840)
    stamp(e, 4)
    dma_full(e, dg, 3840, False)
    e(f"v_lshlrev_b32 v201, 4, v{VL}")
    e(f"s_mul_i32 s31, s{S_CG}, 3200"); e(f"s_lshl_b32 s32, s{S_WAVE}, 10"); e("s_add_u32 s31, s31, s32")
    e(f"s_add_u32 m0, s32, {WPH}")
    e(f"s_cmp_eq_u32 s{S_WAVE}, 3"); e("s_cselect_b64 s[54:55], 0xff, -1"); e("s_mov_b64 exec, s[54:55]")
    e(f"buffer_load_dwordx4 v201, s[{S_W2}:{S_W2+3}], s31 offen lds")
    e("s_mov_b64 exec, -1")
    e(f"v_mov_b32 v204, 0"); e("v_mov_b32 v205, 0"); e("v_mov_b32 v206, 0"); e("v_mov_b32 v207, 0")
    e(f"v_lshlrev_b32 v203, 4, v{VL}"); e(f"v_add_u32 v203, {WPH+3200}, v203")
    e("s_mov_b32 exec_hi, 0x00ffffff")
    e("ds_write_b128 v203, v[204:207]")
    e("s_mov_b64 exec, -1")
    e(f"s_lshl_b32 s30, s{S_WAVE}, 13")
    x_read_addr(e, XRD, 30)
    e(f"v_and_b32 v200, 15, v{VL}"); e(f"v_lshrrev_b32 v201, 4, v{VL}")
    e("v_lshrrev_b32 v202, 2, v200"); e("v_and_b32 v203, 3, v200")
    e("v_lshlrev_b32 v204, 3, v201"); e("v_add_u32 v204, v204, v202"); e("v_mul_u32_u24 v204, 320, v204")
    e("v_mul_u32_u24 v205, 5, v203")
    e("v_and_b32 v206, 1, v201"); e("v_lshlrev_b32 v206, 2, v206")
    for t in range(10):
        e(f"v_add_u32 v207, {(t%5) + 20*(t//5)}, v205"); e("v_xor_b32 v207, v207, v206"); e("v_lshlrev_b32 v207, 3, v207"); e("v_add_u32 v207, v207, v204"); e(f"v_add_u32 v{WRD+t}, 32768, v207")
    e("v_mul_u32_u24 v208, 800, v201"); e("v_mul_u32_u24 v209, 40, v202"); e("v_add_u32 v208, v208, v209"); e(f"v_add_u32 v245, {WPH}, v208")
    e(f"v_mov_b32 v209, {WPH+3200}")
    e("v_cmp_eq_u32 vcc, v203, v201"); e("v_cndmask_b32 v245, v209, v245, vcc")
    if DRY:
        e(f"s_cmp_eq_u32 s{S_ISKV}, 1"); e("s_cbranch_scc0 KVD_DONE")
        e("s_mov_b32 s53, 0")
        e("s_mov_b64 exec, 0")
        e(f"s_cmp_eq_u32 s{S_WAVE}, 0"); e("s_cbranch_scc1 KVD0")
        e(f"s_cmp_eq_u32 s{S_WAVE}, 1"); e("s_cbranch_scc1 KVD1")
        e(f"s_cmp_eq_u32 s{S_WAVE}, 2"); e("s_cbranch_scc1 KVD2x")
        e("s_branch KVD3x")
        e("KVD_RET:")
        e("s_cmp_eq_u32 s53, 0"); e("s_mov_b32 s53, 1"); e("s_cbranch_scc0 KVD_END")
        e(f"s_cmp_eq_u32 s{S_WAVE}, 0"); e("s_cbranch_scc1 KVD6")
        e(f"s_cmp_eq_u32 s{S_WAVE}, 2"); e("s_cbranch_scc1 KVD4x")
        e("KVD_END:")
        e("s_mov_b64 exec, -1")
        e("s_waitcnt lgkmcnt(0)")
        e("KVD_DONE:")
    for i in range(160): e(f"v_mov_b32 v{i}, 0")
    dma_full(e, dg, 3840, False)
    code_prefetch(e); tlb_warm(e)
    stamp(e, 5)
    e(f"s_waitcnt vmcnt({13+1}) lgkmcnt(0)")
    e("s_barrier")
    for (a,l) in dg[:len(dg)//2]: e(a); e(l)
    def reads(ks, setn):
        w = []
        for t in range(10):
            r = WF + (setn*NF + t)*4
            w.append(f"ds_read_b64_tr_b16 a[{r}:{r+1}], v{WRD+t} offset:{ks*10240}")
            w.append(f"ds_read_b64_tr_b16 a[{r+2}:{r+3}], v{WRD+t} offset:{ks*10240+1280}")
        xs = x_reads(XF, NT, XRD, ks, setn)
        return xs[:1] + w + xs[1:]
    def late_setup():
        e(f"s_lshl_b32 s30, s{S_WAVE}, 6"); e(f"s_add_u32 s30, s30, s{S_T0}")
        e(f"v_and_b32 v{VP}, 15, v{VL}"); e(f"v_add_u32 v{VP}, s30, v{VP}"); e(f"v_lshlrev_b32 v{VP}, 3, v{VP}")
        e(f"v_lshrrev_b32 v{VP+1}, 4, v{VL}"); e(f"v_mul_u32_u24 v{VP+1}, 80, v{VP+1}")
        e(f"s_lshl_b32 s60, s{S_COL0}, 2"); e(f"s_add_u32 s60, s60, {OFF_CS}"); e(f"s_lshl_b32 s61, s{S_COL1}, 2"); e(f"s_add_u32 s61, s61, {OFF_CS}")
        e(f"s_add_u32 s62, s60, {4992*4}"); e(f"s_add_u32 s63, s61, {4992*4}")
    lg = []
    for tt in range(NT):
        lg.append(([], f"buffer_load_dwordx2 v[{ST+2*tt}:{ST+2*tt+1}], v{VP}, s[{S_WS}:{S_WS+3}], 0 offen offset:{OFF_STATS + tt*128} sc1"))
    for p in range(2):
        for half in range(2):
            for j in range(5):
                d = CS + p*40 + (half*5+j)*4
                lg.append(([], f"buffer_load_dwordx4 a[{d}:{d+3}], v{VP+1}, s[{S_WS}:{S_WS+3}], s{60+2*p+half} offen offset:{j*16} sc1"))
    emit_mainloop(e, "ATT", NT, NF, XF, WF, dg, reads, [XRD, XRD+1] + [WRD+t for t in range(10)], 3840, False, late_setup, lg, False, 1, VP)
    e("s_waitcnt vmcnt(0)")
    sentinel(e)
    e(f"s_cmp_eq_u32 s{S_ISKV}, 1"); e("s_cbranch_scc1 KV_EPI")
    for i in range(40): e(f"v_accvgpr_read_b32 v{160+i}, a{CS+i}")
    for i in range(40): e(f"v_accvgpr_read_b32 v{200+i}, a{CS+40+i}")
    for i in range(0, 40, 2): e(f"v_pk_add_f32 v[{160+i}:{161+i}], v[{160+i}:{161+i}], v[{200+i}:{201+i}]")
    e(f"v_lshrrev_b32 v200, 4, v{VL}"); e(f"v_and_b32 v201, 15, v{VL}")
    e(f"v_mul_u32_u24 v202, {128*768}, v200")
    e("v_lshlrev_b32 v203, 4, v201"); e("v_add_u32 v204, v202, v203")
    e(f"s_lshl_b32 s30, s{S_RB}, 4"); e(f"s_lshl_b32 s31, s{S_WAVE}, 2"); e("s_add_u32 s30, s30, s31")
    e(f"s_lshl_b32 s31, s{S_CG}, 3")
    for tt in range(NT):
        m = ST+2*tt; r = m+1
        e(f"v_sub_f32 v208, 0, v{m}"); e(f"v_mov_b32 v210, v{r}")
        strs = []
        for half in range(2):
            s = []; a = s.append
            A = (tt*10 + half*5)*4; C = 160 + half*20
            for k in range(0, 20, 2): a(f"v_pk_fma_f32 v[{A+k}:{A+k+1}], v[{C+k}:{C+k+1}], v[208:209], v[{A+k}:{A+k+1}] op_sel_hi:[1,0,1]")
            for k in range(0, 20, 2): a(f"v_pk_mul_f32 v[{A+k}:{A+k+1}], v[{A+k}:{A+k+1}], v[210:211] op_sel_hi:[1,0]")
            for k in range(10): a(f"v_cvt_pk_bf16_f32 v{A+k}, v{A+2*k}, v{A+2*k+1}")
            a(f"v_mov_b32 v{A+10}, 0"); a(f"v_mov_b32 v{A+11}, 0")
            sx = 60+half
            a(f"s_add_u32 s{sx}, s31, {4*half}"); a(f"s_lshl_b32 s{sx}, s{sx}, 7"); a(f"s_add_u32 s{sx}, s{sx}, s30"); a(f"s_add_u32 s{sx}, s{sx}, {tt}")
            a(f"s_mul_i32 s{sx}, s{sx}, 768"); a(f"s_add_u32 s{sx}, s{sx}, {OFF_QF}")
            a(f"buffer_store_dwordx4 v[{A}:{A+3}], v204, s[{S_WS}:{S_WS+3}], s{sx} offen{OSC}")
            a(f"buffer_store_dwordx4 v[{A+4}:{A+7}], v204, s[{S_WS}:{S_WS+3}], s{sx} offen offset:256{OSC}")
            a(f"buffer_store_dwordx4 v[{A+8}:{A+11}], v204, s[{S_WS}:{S_WS+3}], s{sx} offen offset:512{OSC}")
            strs.append(s)
        zip2(e, strs[0], strs[1])
    if STAMPS: e("s_waitcnt vmcnt(0)")
    stamp(e, 3); stamp_flush(e, 1, 6, S_WS, S_WAVE)
    e("s_endpgm")
    e("KV_EPI:")
    e("s_barrier")
    e("KVD0:")
    for jp in range(5):
        for s in range(3):
            r = PHI + (jp*3+s)*4
            e(f"ds_read_b64_tr_b16 a[{r}:{r+1}], v245 offset:{s*320 + jp*8}")
            e(f"ds_read_b64_tr_b16 a[{r+2}:{r+3}], v245 offset:{s*320 + 160 + jp*8}")
    e(f"v_lshrrev_b32 v200, 4, v{VL}"); e(f"v_and_b32 v201, 15, v{VL}")
    e("v_lshlrev_b32 v202, 15, v200"); e("v_lshlrev_b32 v203, 5, v201"); e("v_add_u32 v202, v202, v203")
    e(f"s_lshl_b32 s30, s{S_WAVE}, 11"); e("v_add_u32 v244, s30, v202")
    for i in range(40): e(f"v_accvgpr_read_b32 v{160+i}, a{CS+i}")
    for i in range(40): e(f"v_accvgpr_read_b32 v{200+i}, a{CS+40+i}")
    for i in range(0, 40, 2): e(f"v_pk_add_f32 v[{160+i}:{161+i}], v[{160+i}:{161+i}], v[{200+i}:{201+i}]")
    def vtile(tt, R):
        s = []; a = s.append
        m = ST+2*tt; r = m+1; A = (tt*10+5)*4
        a(f"v_sub_f32 v{R}, 0, v{m}"); a(f"v_mov_b32 v{R+2}, v{r}")
        for k in range(0, 20, 2): a(f"v_pk_fma_f32 v[{A+k}:{A+k+1}], v[{180+k}:{181+k}], v[{R}:{R+1}], v[{A+k}:{A+k+1}] op_sel_hi:[1,0,1]")
        for k in range(0, 20, 2): a(f"v_pk_mul_f32 v[{A+k}:{A+k+1}], v[{A+k}:{A+k+1}], v[{R+2}:{R+3}] op_sel_hi:[1,0]")
        for k in range(10): a(f"v_cvt_pk_bf16_f32 v{A+k}, v{A+2*k}, v{A+2*k+1}")
        a(f"ds_write_b128 v244, v[{A}:{A+3}] offset:{3*8192 + tt*512}")
        a(f"ds_write_b128 v244, v[{A+4}:{A+7}] offset:{3*8192 + tt*512 + 16}")
        return s
    zip2(e, vtile(0, 200), vtile(1, 204)); zip2(e, vtile(2, 200), vtile(3, 204))
    ft0, ft1, ft2 = fperm()
    Pb = [200, 220]; EM = 180
    def stageA(tt):
        s = []; a = s.append
        m = ST+2*tt; A = tt*40; P = Pb[tt & 1]
        a(f"v_sub_f32 v240, 0, v{m}")
        for k in range(0, 20, 2): a(f"v_pk_fma_f32 v[{A+k}:{A+k+1}], v[{160+k}:{161+k}], v[240:241], v[{A+k}:{A+k+1}] op_sel_hi:[1,0,1]")
        for k in range(10): a(f"v_cvt_pk_bf16_f32 v{A+k}, v{A+2*k}, v{A+2*k+1}")
        a(f"v_mov_b32 v{A+10}, 0"); a(f"v_mov_b32 v{A+11}, 0")
        for sidx in range(3):
            for jp in range(5):
                c = "0" if sidx == 0 else f"v[{P+jp*4}:{P+jp*4+3}]"
                a(f"v_mfma_f32_16x16x32_bf16 v[{P+jp*4}:{P+jp*4+3}], a[{PHI+(jp*3+sidx)*4}:{PHI+(jp*3+sidx)*4+3}], v[{A+sidx*4}:{A+sidx*4+3}], {c}")
        return s
    def stageB(tt):
        s = []; a = s.append
        r = ST+2*tt+1; A = tt*40; AV = A+20; P = Pb[tt & 1]
        C, NC, MXC, MNC, MX, MN, SP, SM_ = AV, AV+2, AV+4, AV+6, AV+10, AV+11, AV+12, AV+14
        a(f"v_mul_f32 v{C}, {LOG2E!r}, v{r}"); a(f"v_sub_f32 v{NC}, 0, v{C}")
        a(f"v_max3_f32 v{MX}, v{P}, v{P+1}, v{P+2}"); a(f"v_min3_f32 v{MN}, v{P}, v{P+1}, v{P+2}")
        for k in range(3, 19, 2):
            a(f"v_max3_f32 v{MX}, v{MX}, v{P+k}, v{P+k+1}"); a(f"v_min3_f32 v{MN}, v{MN}, v{P+k}, v{P+k+1}")
        a(f"v_max_f32 v{MX}, v{MX}, v{P+19}"); a(f"v_min_f32 v{MN}, v{MN}, v{P+19}")
        a(f"v_mul_f32 v{MXC}, v{MX}, v{NC}"); a(f"v_mul_f32 v{MNC}, v{MN}, v{C}")
        for k in range(0, 20, 2): a(f"v_pk_fma_f32 v[{EM+k}:{EM+k+1}], v[{P+k}:{P+k+1}], v[{NC}:{NC+1}], v[{MNC}:{MNC+1}] op_sel_hi:[1,0,0]")
        for k in range(0, 20, 2): a(f"v_pk_fma_f32 v[{P+k}:{P+k+1}], v[{P+k}:{P+k+1}], v[{C}:{C+1}], v[{MXC}:{MXC+1}] op_sel_hi:[1,0,0]")
        for k in range(20): a(f"v_exp_f32 v{EM+k}, v{EM+k}")
        for k in range(20): a(f"v_exp_f32 v{P+k}, v{P+k}")
        a(f"v_pk_add_f32 v[{SM_}:{SM_+1}], v[{EM}:{EM+1}], v[{EM+2}:{EM+3}]"); a(f"v_pk_add_f32 v[{SP}:{SP+1}], v[{P}:{P+1}], v[{P+2}:{P+3}]")
        for k in range(4, 20, 2):
            a(f"v_pk_add_f32 v[{SM_}:{SM_+1}], v[{SM_}:{SM_+1}], v[{EM+k}:{EM+k+1}]"); a(f"v_pk_add_f32 v[{SP}:{SP+1}], v[{SP}:{SP+1}], v[{P+k}:{P+k+1}]")
        a(f"v_add_f32 v{SM_}, v{SM_}, v{SM_+1}"); a(f"v_add_f32 v{SP}, v{SP}, v{SP+1}")
        a(f"v_rcp_f32 v{SM_}, v{SM_}"); a(f"v_rcp_f32 v{SP}, v{SP}")
        for k in range(0, 20, 2):
            a(f"v_pk_mul_f32 v[{EM+k}:{EM+k+1}], v[{EM+k}:{EM+k+1}], v[{SM_}:{SM_+1}] op_sel_hi:[1,0]")
            a(f"v_pk_mul_f32 v[{P+k}:{P+k+1}], v[{P+k}:{P+k+1}], v[{SP}:{SP+1}] op_sel_hi:[1,0]")
        def reg(x): return (P if x[0] == 'p' else EM) + x[1]
        I = AV+12
        for k in range(8): a(f"v_cvt_pk_bf16_f32 v{A+k}, v{reg(ft0[2*k])}, v{reg(ft0[2*k+1])}")
        a(f"ds_write_b128 v244, v[{A}:{A+3}] offset:{tt*512}"); a(f"ds_write_b128 v244, v[{A+4}:{A+7}] offset:{tt*512+16}")
        for k in range(8): a(f"v_cvt_pk_bf16_f32 v{A+8+k}, v{reg(ft1[2*k])}, v{reg(ft1[2*k+1])}")
        a(f"ds_write_b128 v244, v[{A+8}:{A+11}] offset:{8192+tt*512}"); a(f"ds_write_b128 v244, v[{A+12}:{A+15}] offset:{8192+tt*512+16}")
        for q in range(4): a(f"v_cvt_pk_bf16_f32 v{I+2*q}, v{reg(ft2[q][0])}, v{reg(ft2[q][1])}")
        a(f"v_mov_b32 v{I+1}, v{AV+8}"); a(f"v_mov_b32 v{I+3}, v{AV+9}"); a(f"v_mov_b32 v{I+5}, 0x3f80"); a(f"v_mov_b32 v{I+7}, 0")
        a(f"ds_write_b128 v244, v[{I}:{I+3}] offset:{2*8192+tt*512}"); a(f"ds_write_b128 v244, v[{I+4}:{I+7}] offset:{2*8192+tt*512+16}")
        return s
    e("s_waitcnt lgkmcnt(0)")
    e("s_cbranch_execz KVD_RET") if DRY else None; e("KVD1:")
    for it in stageA(0): e(it)
    for tt in range(NT):
        if tt+1 < NT: zip_ratio(e, stageB(tt), stageA(tt+1))
        else:
            for it in stageB(tt): e(it)
        e("s_cbranch_execz KVD_RET") if DRY else None
        e(f"KVD{tt+2}x:")
    e("s_waitcnt lgkmcnt(0)")
    stamp(e, 4)
    e("s_barrier")
    stamp(e, 5)
    e("KVD6:")
    e(f"v_lshrrev_b32 v200, 4, v{VL}"); e(f"v_and_b32 v201, 15, v{VL}"); e("v_lshrrev_b32 v202, 2, v201"); e("v_and_b32 v203, 3, v201")
    e("v_lshlrev_b32 v200, 2, v200"); e("v_add_u32 v200, v200, v202"); e("v_lshlrev_b32 v200, 5, v200"); e("v_lshlrev_b32 v203, 3, v203"); e("v_add_u32 v200, v200, v203")
    e(f"s_lshl_b32 s30, s{S_WAVE}, 15"); e("v_add_u32 v200, s30, v200")
    KA = 0; FR = 32
    def kvreads(ks, st_):
        for sub in range(4):
            rr = FR + (st_*4+sub)*4
            e(f"ds_read_b64_tr_b16 v[{rr}:{rr+1}], v200 offset:{sub*8192 + ks*1024}")
            e(f"ds_read_b64_tr_b16 v[{rr+2}:{rr+3}], v200 offset:{sub*8192 + ks*1024 + 512}")
    NSET = 3
    def kvreads(ks):
        st_ = ks % NSET
        for sub in range(4):
            rr = FR + (st_*4+sub)*4
            e(f"ds_read_b64_tr_b16 v[{rr}:{rr+1}], v200 offset:{sub*8192 + ks*1024}")
            e(f"ds_read_b64_tr_b16 v[{rr+2}:{rr+3}], v200 offset:{sub*8192 + ks*1024 + 512}")
    kvreads(0)
    for i in range(24): e(f"v_mov_b32 v{KA+i}, 0")
    for ks in range(8):
        st_ = ks % NSET
        if ks < 7:
            kvreads(ks+1); e("s_waitcnt lgkmcnt(8)")
        else:
            e("s_waitcnt lgkmcnt(0)")
        for ft in range(3):
            for dt in range(2):
                a = KA + (ft*2+dt)*4
                Af = FR + (st_*4+ft)*4
                Bf = FR + (st_*4 + (3 if dt == 0 else 2))*4
                e(f"v_mfma_f32_16x16x32_bf16 v[{a}:{a+3}], v[{Af}:{Af+3}], v[{Bf}:{Bf+3}], v[{a}:{a+3}]")
    e("s_cbranch_execz KVD_RET") if DRY else None
    e(f"s_lshl_b32 s30, s{S_RB}, 5"); e(f"s_lshl_b32 s31, s{S_CG}, 2"); e("s_add_u32 s30, s30, s31"); e(f"s_add_u32 s30, s30, s{S_WAVE}")
    e("s_mul_i32 s30, s30, 5120"); e(f"s_add_u32 s30, s30, {OFF_KVP}")
    e(f"v_lshlrev_b32 v201, 5, v{VL}"); e(f"v_lshlrev_b32 v202, 3, v{VL}")
    for dt in range(2):
        a0 = KA + (0*2+dt)*4; a1 = KA + (1*2+dt)*4; a2 = KA + (2*2+dt)*4
        if dt == 1: e("s_add_u32 s30, s30, 2560")
        e(f"buffer_store_dwordx4 v[{a0}:{a0+3}], v201, s[{S_WS}:{S_WS+3}], s30 offen{OSC}")
        e(f"buffer_store_dwordx4 v[{a1}:{a1+3}], v201, s[{S_WS}:{S_WS+3}], s30 offen offset:16{OSC}")
        e(f"buffer_store_dwordx2 v[{a2}:{a2+1}], v202, s[{S_WS}:{S_WS+3}], s30 offen offset:2048{OSC}")
    if STAMPS: e("s_waitcnt vmcnt(0)")
    stamp(e, 3); stamp_flush(e, 1, 6, S_WS, S_WAVE)
    e("s_endpgm")

def gen_k1():
    e = Em()
    STAMP_BASE[0] = 90
    e("s_cmp_ge_u32 s2, 256"); e("s_cbranch_scc1 K1_end")
    e(f"s_load_dwordx2 s[4:5], s[0:1], {KA_X}"); e(f"s_load_dwordx2 s[6:7], s[0:1], {KA_WS}"); e(f"s_load_dwordx2 s[62:63], s[0:1], {KA_DBG}")
    e("v_lshrrev_b32 v1, 6, v0"); e(f"v_and_b32 v{VL}, 63, v0"); e(f"v_readfirstlane_b32 s{S_WAVE}, v1")
    stamp(e, 0)
    e("s_and_b32 s30, s2, 7"); e("s_lshr_b32 s31, s2, 3")
    e("s_lshr_b32 s32, s30, 2"); e("s_and_b32 s33, s30, 3")
    e("s_waitcnt lgkmcnt(0)")
    srd(e, S_X, 4, 2048*1280); srd(e, S_WS, 6, WS_BYTES); srd(e, S_DBG, 62, 256)
    e("s_cmp_lt_u32 s31, 8"); e("s_cbranch_scc1 K1_kv")
    e("s_cmp_lt_u32 s31, 12"); e("s_cbranch_scc1 K1_q")
    e("s_sub_u32 s34, s31, 12"); e("s_mul_i32 s35, s32, 20"); e("s_add_u32 s34, s34, s35")
    e("s_cmp_ge_u32 s34, 39"); e("s_cbranch_scc1 K1_idle")
    udiv_const(e, S_RB, 34, 3)
    e(f"s_mul_i32 s35, s{S_RB}, 3"); e("s_sub_u32 s35, s34, s35"); e("s_mul_i32 s36, s33, 3"); e(f"s_add_u32 s{S_CG}, s35, s36")
    e(f"s_mul_i32 s{S_N}, s33, 39"); e(f"s_add_u32 s{S_N}, s{S_N}, s34")
    e("s_mov_b32 s78, s34"); e("s_mov_b32 s79, s33")
    e("s_branch FFN")
    e("K1_kv:")
    e("s_lshl_b32 s34, s33, 1"); e("s_and_b32 s35, s31, 1"); e(f"s_add_u32 s{S_CG}, s34, s35")
    e("s_lshl_b32 s34, s32, 2"); e("s_lshr_b32 s35, s31, 1"); e(f"s_add_u32 s{S_RB}, s34, s35")
    e(f"s_mul_i32 s34, s{S_CG}, 80"); e(f"s_add_u32 s{S_COL0}, s34, 640"); e(f"s_add_u32 s{S_COL1}, s34, 1280"); e(f"s_mov_b32 s{S_ISKV}, 1")
    e("s_branch ATT")
    e("K1_q:")
    e(f"s_mov_b32 s{S_CG}, s33"); e("s_lshl_b32 s34, s32, 2"); e("s_sub_u32 s35, s31, 8"); e(f"s_add_u32 s{S_RB}, s34, s35")
    e(f"s_mul_i32 s{S_COL0}, s33, 160"); e(f"s_add_u32 s{S_COL1}, s{S_COL0}, 80"); e(f"s_mov_b32 s{S_ISKV}, 0")
    e("s_branch ATT")
    e("K1_idle:")
    sentinel(e)
    e("s_endpgm")
    gen_ffn(e)
    gen_att(e)
    e("K1_end:")
    return kernel("k1_kernel", e.text(), vgpr=256, accum=256, agpr=256, sgpr=102)
```

```python
from asmgen import *
from gen_common import *

S_X = 8; S_OUT = 12; S_DBG = 16; S_WS = 20; S_WPHI = 28
S_WAVE = 24; S_RB64 = 25; S_CG = 26; S_HEAD = 27; S_RB256 = 32
LDS_PHI = 86016
LDS_KVX = 88064
LDS_CNT = 112640
K2_LDS = 112704
import os
NBUF = 4; LOOK = int(os.environ.get('K2_LOOK', 3))
NOMFMA = int(os.environ.get('K2_NOMFMA', 0)); PRIO = int(os.environ.get('K2_PRIO', 3)); NOO = int(os.environ.get('K2_NOO', 0))
VL = 175

def zip_streams(e, streams):
    n = max(len(s) for s in streams)
    for i in range(n):
        for s in streams:
            if i < len(s):
                it = s[i]
                if callable(it): it()
                else: e(it)

def gen_k2():
    e = Em()
    STAMP_BASE[0] = 64
    e("s_cmp_ge_u32 s2, 256"); e("s_cbranch_scc1 K2_end")
    e(f"s_load_dwordx2 s[4:5], s[0:1], {KA_X}"); e(f"s_load_dwordx2 s[6:7], s[0:1], {KA_WS}")
    e(f"s_load_dwordx2 s[34:35], s[0:1], {KA_OUT}"); e(f"s_load_dwordx2 s[36:37], s[0:1], {KA_DBG}"); e(f"s_load_dwordx2 s[38:39], s[0:1], {KA_WPHI}")
    e("v_lshrrev_b32 v1, 6, v0"); e(f"v_and_b32 v{VL}, 63, v0"); e(f"v_readfirstlane_b32 s33, v1")
    stamp(e, 0)
    e("s_and_b32 s40, s2, 7"); e("s_lshr_b32 s41, s2, 3")
    e("s_lshr_b32 s42, s40, 1"); e("s_lshl_b32 s42, s42, 3"); e("s_lshr_b32 s43, s41, 2"); e(f"s_add_u32 s{S_RB64}, s42, s43")
    e("s_and_b32 s42, s40, 1"); e("s_lshl_b32 s42, s42, 2"); e("s_and_b32 s43, s41, 3"); e(f"s_add_u32 s{S_CG}, s42, s43")
    e("s_lshl_b32 s42, s40, 2"); e("s_and_b32 s43, s41, 3"); e(f"s_add_u32 s{S_HEAD}, s42, s43"); e(f"s_lshr_b32 s{S_RB256}, s2, 5")
    e(f"s_and_b32 s{S_WAVE}, s33, 3")
    e("s_waitcnt lgkmcnt(0)")
    srd(e, S_WS, 6, WS_BYTES); srd(e, S_DBG, 36, 256)
    WS = f"s[{S_WS}:{S_WS+3}]"
    e("s_cmp_ge_u32 s33, 4"); e("s_cbranch_scc1 K2_OW")
    vm = Vm(e)
    e(f"v_lshlrev_b32 v144, 4, v{VL}"); e("v_add_u32 v145, 4096, v144"); e(f"v_lshlrev_b32 v171, 3, v{VL}")
    e(f"s_mul_i32 s44, s{S_RB64}, 68"); e("s_lshl_b32 s44, s44, 12"); e(f"s_add_u32 s44, s44, {OFF_ACT}")
    e(f"s_mul_i32 s45, s{S_CG}, {68*5*1024}"); e(f"s_add_u32 s45, s45, {OFF_WF}")
    e(f"s_mul_i32 s46, s{S_WAVE}, {12*4096}"); e("s_add_u32 s46, s46, s44")
    e(f"s_mul_i32 s47, s{S_WAVE}, {12*5120}"); e("s_add_u32 s47, s47, s45")
    e(f"s_mul_i32 s48, s{S_WAVE}, {5*4096}"); e("s_add_u32 s48, s48, s44"); e(f"s_add_u32 s48, s48, {48*4096}")
    e(f"s_mul_i32 s49, s{S_WAVE}, {5*5120}"); e("s_add_u32 s49, s49, s45"); e(f"s_add_u32 s49, s49, {48*5120}")
    ROT2 = int(os.environ.get("K2_ROT", 1))
    e(f"s_and_b32 s40, s{S_CG}, 3"); e(f"s_and_b32 s41, s{S_RB64}, 7"); e("s_mov_b32 s43, s40"); e("s_mul_i32 s40, s40, 3")
    if ROT2 == 2:
        e("s_add_u32 s40, s40, s41"); e("s_cmp_ge_u32 s40, 12"); e("s_cselect_b32 s41, 12, 0"); e("s_sub_u32 s40, s40, s41")
    if ROT2 == 0: e("s_mov_b32 s40, 0"); e("s_mov_b32 s43, 0")
    e(f"s_add_u32 s80, s46, {12*4096}"); e(f"s_add_u32 s81, s47, {12*5120}"); e(f"s_add_u32 s82, s48, {5*4096}"); e(f"s_add_u32 s83, s49, {5*5120}")
    e(f"s_mul_i32 s41, s40, {4096}"); e("s_add_u32 s46, s46, s41"); e(f"s_mul_i32 s41, s40, {5120}"); e("s_add_u32 s47, s47, s41")
    e(f"s_mul_i32 s41, s43, 4096"); e("s_add_u32 s48, s48, s41"); e(f"s_mul_i32 s41, s43, 5120"); e("s_add_u32 s49, s49, s41")
    def act_loads(k):
        st = (k % NBUF)*36; sa = 46 if k < 12 else 48
        if k < 12:
            l = [(f"buffer_load_dwordx4 v[{st+4*ti}:{st+4*ti+3}], v144, {WS}, s{sa} offen offset:{ti*1024}", f"a{k}") for ti in range(4)]
        else:
            l = []
            for ti in range(4):
                l.append((f"buffer_load_dwordx2 v[{st+4*ti}:{st+4*ti+1}], v171, {WS}, s{sa} offen offset:{ti*1024} sc1", f"a{k}"))
                l.append((f"buffer_load_dwordx2 v[{st+4*ti+2}:{st+4*ti+3}], v171, {WS}, s{sa} offen offset:{ti*1024+512} sc1", f"a{k}"))
        if k >= 12: l.insert(0, (f"s_mov_b32 s{84+(k-12)}, s48", None))
        lim, span = (80, 12*4096) if k < 12 else (82, 5*4096)
        l.append((f"s_add_u32 s{sa}, s{sa}, 4096\ns_cmp_ge_u32 s{sa}, s{lim}\ns_cselect_b32 s79, {span}, 0\ns_sub_u32 s{sa}, s{sa}, s79", None))
        return l
    def w_loads(k):
        st = (k % NBUF)*36; sw_ = 47 if k < 12 else 49
        l = [(f"buffer_load_dwordx4 v[{st+16+4*ft}:{st+16+4*ft+3}], v144, {WS}, s{sw_} offen offset:{ft*1024}", f"w{k}") for ft in range(4)]
        l.append((f"buffer_load_dwordx4 v[{st+32}:{st+35}], v145, {WS}, s{sw_} offen", f"w{k}"))
        lim, span = (81, 12*5120) if k < 12 else (83, 5*5120)
        l.append((f"s_add_u32 s{sw_}, s{sw_}, 5120\ns_cmp_ge_u32 s{sw_}, s{lim}\ns_cselect_b32 s79, {span}, 0\ns_sub_u32 s{sw_}, s{sw_}, s79", None))
        return l
    def put(items):
        for t, tag in items:
            if tag: vm.issue(t, tag)
            else: e(t)
    e("s_barrier")
    for k in range(LOOK):
        put(act_loads(k)); put(w_loads(k))
    for i in range(80): e(f"v_accvgpr_write_b32 a{i}, 0")
    srd(e, S_X, 4, 2048*1280); srd(e, S_OUT, 34, 2048*1280)
    TOP = int(os.environ.get("K2_TOP", 0))
    def kstep(k, items):
        if TOP:
            put(items); items = []
        vm.wait([f"a{k}", f"w{k}"])
        st = (k % NBUF)*36
        if k >= 12 and not NOO:
            lt = e.label("K2_v"); lo = e.label("K2_vo")
            e(f"s_mov_b32 s50, 0")
            e(f"{lt}:")
            e(f"v_max3_u32 v172, v{st}, v{st+1}, v{st+2}")
            for r in range(3, 15, 2): e(f"v_max3_u32 v172, v172, v{st+r}, v{st+r+1}")
            e(f"v_max_u32 v172, v172, v{st+15}")
            e("v_cmp_eq_u32 vcc, -1, v172")
            e(f"s_cbranch_vccz {lo}")
            e("s_add_u32 s50, s50, 1"); e("s_cmp_ge_u32 s50, 0x20000"); e(f"s_cbranch_scc1 {lo}")
            e(f"s_mov_b32 s51, s{84+(k-12)}")
            for ti in range(4):
                e(f"buffer_load_dwordx2 v[{st+4*ti}:{st+4*ti+1}], v171, {WS}, s51 offen offset:{ti*1024} sc1")
                e(f"buffer_load_dwordx2 v[{st+4*ti+2}:{st+4*ti+3}], v171, {WS}, s51 offen offset:{ti*1024+512} sc1")
            e("s_waitcnt vmcnt(0)")
            e(f"s_branch {lt}")
            e(f"{lo}:")
        mf = []
        for ti in range(4):
            for ft in range(5):
                a = (ti*5+ft)*4
                mf.append(f"v_mfma_f32_16x16x32_bf16 a[{a}:{a+3}], v[{st+16+4*ft}:{st+16+4*ft+3}], v[{st+4*ti}:{st+4*ti+3}], a[{a}:{a+3}]")
        n = len(items); pos = [int((j+0.5)*20/max(n,1)) for j in range(n)]
        for i, m in enumerate(mf):
            if not NOMFMA: e(m)
            for j in range(n):
                if pos[j] == i:
                    t, tag = items[j]
                    if tag: vm.issue(t, tag)
                    else: e(t)
    e("s_mov_b32 s53, s48")
    for k in range(17):
        nk = k + LOOK
        items = (act_loads(nk) + w_loads(nk)) if nk < 17 else []
        if k == 12:
            stamp(e, 3)
            e("s_mov_b32 s43, 0xCCCD")
            e(f"s_lshl_b32 s41, s{S_RB64}, 6"); e(f"s_lshl_b32 s42, s{S_WAVE}, 4"); e("s_add_u32 s41, s41, s42")
            e(f"s_mul_i32 s44, s{S_CG}, 160")
            for it in range(5):
                e(f"v_add_u32 v166, {it*64}, v{VL}"); e("v_mul_lo_u32 v167, v166, s43"); e("v_lshrrev_b32 v167, 20, v167")
                e("v_mul_u32_u24 v168, 20, v167"); e("v_sub_u32 v168, v166, v168")
                e("v_add_u32 v169, s41, v167"); e("v_mul_u32_u24 v169, 1280, v169"); e("v_lshlrev_b32 v170, 3, v168"); e("v_add_u32 v169, v169, v170"); e(f"v_add_u32 v{156+it}, s44, v169")
                e("v_add_u32 v169, s42, v167"); e("v_mul_u32_u24 v169, 336, v169"); e("v_lshlrev_b32 v170, 4, v168"); e(f"v_add_u32 v{161+it}, v169, v170")
                vm.issue(f"buffer_load_dwordx2 v[{146+2*it}:{147+2*it}], v{156+it}, s[{S_X}:{S_X+3}], 0 offen", "x")
        kstep(k, items)
        if k == 12: stamp(e, 4)
    stamp(e, 5)
    e(f"v_and_b32 v166, 15, v{VL}"); e(f"v_lshrrev_b32 v167, 4, v{VL}")
    e(f"v_mul_u32_u24 v166, 336, v166"); e("v_lshlrev_b32 v167, 4, v167"); e("v_add_u32 v166, v166, v167")
    e(f"s_mul_i32 s41, s{S_WAVE}, 21504"); e("v_add_u32 v166, s41, v166")
    e("s_nop 7")
    for ti in range(4):
        for ft in range(5):
            a = (ti*5+ft)*4
            e(f"ds_write_b128 v166, a[{a}:{a+3}] offset:{ti*16*336 + ft*64}")
    vm.wait("x", "lgkmcnt(0)"); e("s_barrier")
    for it in range(5):
        for w in range(4):
            e(f"ds_read_b128 v[{16*it+4*w}:{16*it+4*w+3}], v{161+it} offset:{w*21504}")
    for it in range(5):
        e(f"s_waitcnt lgkmcnt({min(15,4*(4-it))})")
        b = 16*it
        for w in range(1, 4):
            e(f"v_pk_add_f32 v[{b}:{b+1}], v[{b}:{b+1}], v[{b+4*w}:{b+4*w+1}]"); e(f"v_pk_add_f32 v[{b+2}:{b+3}], v[{b+2}:{b+3}], v[{b+4*w+2}:{b+4*w+3}]")
        x0 = 146+2*it
        e(f"v_lshlrev_b32 v100, 16, v{x0}"); e(f"v_and_b32 v101, 0xffff0000, v{x0}"); e(f"v_lshlrev_b32 v102, 16, v{x0+1}"); e(f"v_and_b32 v103, 0xffff0000, v{x0+1}")
        e(f"v_pk_add_f32 v[{b}:{b+1}], v[{b}:{b+1}], v[100:101]"); e(f"v_pk_add_f32 v[{b+2}:{b+3}], v[{b+2}:{b+3}], v[102:103]")
        e(f"v_cvt_pk_bf16_f32 v{b+4}, v{b}, v{b+1}"); e(f"v_cvt_pk_bf16_f32 v{b+5}, v{b+2}, v{b+3}")
        e(f"buffer_store_dwordx2 v[{b+4}:{b+5}], v{156+it}, s[{S_OUT}:{S_OUT+3}], 0 offen")
    if STAMPS: e("s_waitcnt vmcnt(0)")
    stamp(e, 6)
    stamp_flush_part(e, 2, [0,3,4,5,6], S_WS, 33, 0, 170)
    e("s_endpgm")
    e("K2_OW:")
    e(f"s_setprio {PRIO}")
    if NOO:
        e("s_barrier"); e("s_endpgm")
    vm = Vm(e)
    e(f"v_and_b32 v144, 15, v{VL}"); e(f"v_lshrrev_b32 v145, 4, v{VL}")
    e(f"v_lshlrev_b32 v146, 5, v{VL}"); e(f"v_lshlrev_b32 v147, 3, v{VL}"); e(f"v_lshlrev_b32 v148, 4, v{VL}")
    PB = 0
    e(f"s_lshl_b32 s40, s{S_WAVE}, 1")
    for pp in range(2):
        e(f"s_add_u32 s41, s40, {pp}"); e("s_lshl_b32 s41, s41, 5"); e(f"s_add_u32 s41, s41, s{S_HEAD}"); e("s_mul_i32 s41, s41, 5120"); e(f"s_add_u32 s41, s41, {OFF_KVP}")
        for dt in range(2):
            b = PB + pp*24 + dt*12
            if dt == 1: e("s_add_u32 s41, s41, 2560")
            vm.issue(f"buffer_load_dwordx4 v[{b}:{b+3}], v146, {WS}, s41 offen", "po")
            vm.issue(f"buffer_load_dwordx4 v[{b+4}:{b+7}], v146, {WS}, s41 offen offset:16", "po")
            vm.issue(f"buffer_load_dwordx2 v[{b+8}:{b+9}], v147, {WS}, s41 offen offset:2048", "po")
    QB = 48
    e("v_lshlrev_b32 v149, 4, v144"); e("v_min_u32 v150, 2, v145"); e("v_lshlrev_b32 v150, 8, v150"); e("v_add_u32 v150, v150, v149")
    e(f"s_lshl_b32 s41, s{S_HEAD}, 7"); e(f"s_lshl_b32 s42, s{S_RB256}, 4"); e("s_add_u32 s41, s41, s42"); e(f"s_lshl_b32 s42, s{S_WAVE}, 2"); e("s_add_u32 s41, s41, s42")
    e("s_mul_i32 s41, s41, 768"); e(f"s_add_u32 s41, s41, {OFF_QF}")
    for i in range(4):
        vm.issue(f"buffer_load_dwordx4 v[{QB+4*i}:{QB+4*i+3}], v150, {WS}, s41 offen offset:{i*768}", "q")
    srd(e, S_WPHI, 38, 32*800)
    e(f"s_cmp_eq_u32 s{S_WAVE}, 0"); e("s_cbranch_scc0 K2_nophi")
    e(f"s_mul_i32 s41, s{S_HEAD}, 800"); e(f"s_mov_b32 m0, {LDS_PHI}")
    e("s_mov_b32 exec_hi, 0x3ffff")
    vm.issue(f"buffer_load_dwordx4 v148, s[{S_WPHI}:{S_WPHI+3}], s41 offen lds", "phi", cond=True)
    e("s_mov_b64 exec, -1")
    e("v_mov_b32 v152, 0"); e("v_mov_b32 v153, 0"); e("v_mov_b32 v154, 0"); e("v_mov_b32 v155, 0")
    e(f"v_add_u32 v151, {LDS_PHI+800}, v148")
    e("s_mov_b32 exec_hi, 0x3")
    e("ds_write_b128 v151, v[152:155]")
    e("s_mov_b64 exec, 1")
    e(f"v_mov_b32 v151, {LDS_CNT}")
    e("ds_write_b128 v151, v[152:155]")
    e("s_mov_b64 exec, -1")
    e("s_waitcnt lgkmcnt(0)")
    e("K2_nophi:")
    e("s_barrier")
    e(f"v_mul_u32_u24 v156, 48, v{VL}"); e(f"s_mul_i32 s41, s{S_WAVE}, 6144"); e(f"s_add_u32 s41, s41, {LDS_KVX}"); e("v_add_u32 v156, s41, v156")
    e(f"v_mul_u32_u24 v157, 48, v{VL}"); e(f"v_add_u32 v157, {LDS_KVX}, v157")
    e("v_and_b32 v158, 1, v144"); e("v_and_b32 v159, 2, v144"); e("v_lshlrev_b32 v159, 1, v159"); e("v_add_u32 v158, v158, v159"); e("v_add_u32 v158, 2, v158")
    e("v_lshlrev_b32 v159, 4, v145"); e("v_add_u32 v158, v158, v159"); e("v_mul_u32_u24 v158, 48, v158"); e(f"v_add_u32 v158, {LDS_KVX+3072}, v158")
    e("v_add_u32 v159, 10, v159"); e("v_mul_u32_u24 v159, 48, v159"); e(f"v_add_u32 v159, {LDS_KVX+3072}, v159")
    e("v_lshrrev_b32 v160, 2, v144"); e("v_mul_u32_u24 v160, 5, v160"); e("v_and_b32 v161, 3, v144"); e("v_add_u32 v161, v161, v160"); e("v_add_u32 v162, 4, v160")
    e("v_mul_u32_u24 v160, 320, v145")
    e("v_lshlrev_b32 v161, 1, v161"); e("v_add_u32 v161, v161, v160"); e(f"v_add_u32 v161, {LDS_PHI}, v161")
    e("v_lshlrev_b32 v162, 1, v162"); e("v_add_u32 v162, v162, v160"); e(f"v_add_u32 v162, {LDS_PHI}, v162")
    e(f"s_mul_i32 s41, s{S_HEAD}, 5")
    for dst, gsrc in ((163, "v145"), (164, None)):
        if gsrc: e(f"v_add_u32 v165, s41, {gsrc}")
        else: e("s_add_u32 s42, s41, 4"); e("v_mov_b32 v165, s42")
        e("v_lshrrev_b32 v166, 3, v165"); e("v_lshlrev_b32 v166, 12, v166")
        e("v_and_b32 v167, 7, v165"); e("v_lshlrev_b32 v167, 7, v167"); e("v_add_u32 v166, v166, v167")
        e("v_lshlrev_b32 v167, 3, v144"); e(f"v_add_u32 v{dst}, v166, v167")
    e(f"s_lshl_b32 s52, s{S_RB256}, 2"); e(f"s_add_u32 s52, s52, s{S_WAVE}"); e("s_mul_i32 s52, s52, 68"); e("s_add_u32 s52, s52, 48"); e("s_lshl_b32 s52, s52, 12"); e(f"s_add_u32 s52, s52, {OFF_ACT}")
    e(f"v_mov_b32 v168, {LDS_CNT}"); e("v_mov_b32 v169, 1")
    vm.wait("po")
    for k in range(0, 24, 2):
        if k % 12 < 10: e(f"v_pk_add_f32 v[{PB+k}:{PB+k+1}], v[{PB+k}:{PB+k+1}], v[{PB+24+k}:{PB+25+k}]")
    for dt in range(2):
        for k in range(3):
            e(f"ds_write_b128 v156, v[{PB+dt*12+4*k}:{PB+dt*12+4*k+3}] offset:{dt*3072+16*k}")
    vm.waitall("lgkmcnt(0)")
    e("s_mov_b64 exec, 1"); e("ds_add_u32 v168, v169"); e("s_mov_b64 exec, -1")
    e("K2_ospin:")
    e("ds_read_b32 v170, v168"); e("s_waitcnt lgkmcnt(0)"); e("v_readfirstlane_b32 s42, v170")
    e("s_cmp_ge_u32 s42, 4"); e("s_cbranch_scc0 K2_ospin")
    stamp(e, 1)
    SM = 64
    for tl, av in enumerate((157, 158, 159)):
        for w in range(4):
            T = SM + 12*tl if w == 0 else 100 + 12*(w-1)
            for k in range(3):
                e(f"ds_read_b128 v[{T+4*k}:{T+4*k+3}], v{av} offset:{w*6144+16*k}")
        e("s_waitcnt lgkmcnt(0)")
        for w in range(1, 4):
            for k in range(0, 10, 2):
                e(f"v_pk_add_f32 v[{SM+12*tl+k}:{SM+12*tl+k+1}], v[{SM+12*tl+k}:{SM+12*tl+k+1}], v[{100+12*(w-1)+k}:{100+12*(w-1)+k+1}]")
    for tl, av in enumerate((161, 162)):
        for u in range(8):
            e(f"ds_read_u16 v{100+tl*8+u}, v{av} offset:{u*40}")
    stamp(e, 9)
    AK = 0
    for tl in range(3):
        D = SM + 12*tl
        for k in range(4): e(f"v_cvt_pk_bf16_f32 v{AK+tl*8+k}, v{D+2*k}, v{D+2*k+1}")
        e(f"v_cvt_pk_bf16_f32 v{AK+tl*8+4}, v{D+8}, v{D+9}")
        for k in range(5, 8): e(f"v_mov_b32 v{AK+tl*8+k}, 0")
    AP = 24
    e("s_waitcnt lgkmcnt(0)")
    for tl in range(2):
        for k in range(4):
            e(f"v_lshl_or_b32 v{AP+tl*4+k}, v{100+tl*8+2*k+1}, 16, v{100+tl*8+2*k}")
    e(f"v_mov_b32 v32, {LOG2E!r}")
    def otile(i, R):
        s = []; a = s.append
        B = QB + 4*i
        P = R; EM = R+8; T = R+13; B0 = R+8+10;
        P = R; EM = R+8; T = R+14; B0 = R+20; B1 = R+24; N = R+28
        a(f"v_mfma_f32_16x16x32_bf16 v[{P}:{P+3}], v[{AP}:{AP+3}], v[{B}:{B+3}], 0")
        a(f"v_mfma_f32_16x16x32_bf16 v[{P+4}:{P+7}], v[{AP+4}:{AP+7}], v[{B}:{B+3}], 0")
        a(f"v_max3_f32 v{T}, v{P}, v{P+1}, v{P+2}"); a(f"v_min3_f32 v{T+1}, v{P}, v{P+1}, v{P+2}")
        a(f"v_max3_f32 v{T}, v{T}, v{P+3}, v{P+4}"); a(f"v_min3_f32 v{T+1}, v{T+1}, v{P+3}, v{P+4}")
        for sw in ("v_permlane16_swap_b32", "v_permlane32_swap_b32"):
            a(f"v_mov_b32 v{T+2}, v{T}"); a(f"v_mov_b32 v{T+3}, v{T+1}")
            a(f"{sw} v{T}, v{T+2}"); a(f"{sw} v{T+1}, v{T+3}")
            a(f"v_max_f32 v{T}, v{T}, v{T+2}"); a(f"v_min_f32 v{T+1}, v{T+1}, v{T+3}")
        a(f"v_mul_f32 v{T}, {-LOG2E!r}, v{T}"); a(f"v_mul_f32 v{T+1}, {LOG2E!r}, v{T+1}")
        for k in range(5): a(f"v_fma_f32 v{EM+k}, -v{P+k}, v32, v{T+1}")
        for k in range(5): a(f"v_fma_f32 v{P+k}, v{P+k}, v32, v{T}")
        for k in range(5): a(f"v_exp_f32 v{P+k}, v{P+k}")
        for k in range(5): a(f"v_exp_f32 v{EM+k}, v{EM+k}")
        a(f"v_add_f32 v{T}, v{P}, v{P+1}"); a(f"v_add_f32 v{T+1}, v{EM}, v{EM+1}")
        for k in range(2, 5):
            a(f"v_add_f32 v{T}, v{T}, v{P+k}"); a(f"v_add_f32 v{T+1}, v{T+1}, v{EM+k}")
        for sw in ("v_permlane16_swap_b32", "v_permlane32_swap_b32"):
            a(f"v_mov_b32 v{T+2}, v{T}"); a(f"v_mov_b32 v{T+3}, v{T+1}")
            a(f"{sw} v{T}, v{T+2}"); a(f"{sw} v{T+1}, v{T+3}")
            a(f"v_add_f32 v{T}, v{T}, v{T+2}"); a(f"v_add_f32 v{T+1}, v{T+1}, v{T+3}")
        a(f"v_rcp_f32 v{T}, v{T}"); a(f"v_rcp_f32 v{T+1}, v{T+1}")
        for k in range(5): a(f"v_mul_f32 v{P+k}, v{P+k}, v{T}")
        for k in range(5): a(f"v_mul_f32 v{EM+k}, v{EM+k}, v{T+1}")
        a(f"v_cvt_pk_bf16_f32 v{B0}, v{P}, v{P+1}"); a(f"v_cvt_pk_bf16_f32 v{B0+1}, v{P+2}, v{P+3}"); a(f"v_cvt_pk_bf16_f32 v{B0+2}, v{P+4}, v{EM}"); a(f"v_cvt_pk_bf16_f32 v{B0+3}, v{EM+1}, v{EM+2}")
        a(f"v_cvt_pk_bf16_f32 v{B1}, v{EM+3}, v{EM+4}"); a(f"v_mov_b32 v{B1+1}, 0"); a(f"v_mov_b32 v{B1+2}, 0"); a(f"v_mov_b32 v{B1+3}, 0")
        for tl in range(3):
            d = N + 4*tl
            a(f"v_mfma_f32_16x16x32_bf16 v[{d}:{d+3}], v[{AK+tl*8}:{AK+tl*8+3}], v[{B0}:{B0+3}], 0")
        for tl in range(3):
            d = N + 4*tl
            a(f"v_mfma_f32_16x16x32_bf16 v[{d}:{d+3}], v[{AK+tl*8+4}:{AK+tl*8+7}], v[{B1}:{B1+3}], v[{d}:{d+3}]")
        a(f"v_add_f32 v{N+8}, {1e-6!r}, v{N+8}"); a(f"v_rcp_f32 v{N+8}, v{N+8}")
        for k in range(8): a(f"v_mul_f32 v{N+k}, v{N+k}, v{N+8}")
        a(f"v_cvt_pk_bf16_f32 v{P}, v{N}, v{N+1}"); a(f"v_cvt_pk_bf16_f32 v{P+1}, v{N+2}, v{N+3}"); a(f"v_cvt_pk_bf16_f32 v{P+2}, v{N+4}, v{N+5}"); a(f"v_cvt_pk_bf16_f32 v{P+3}, v{N+6}, v{N+7}")
        def st():
            e(f"s_add_u32 s41, s52, {i*1024}")
            e(f"buffer_store_dwordx2 v[{P}:{P+1}], v163, {WS}, s41 offen sc1")
            e("s_mov_b64 exec, 0xffff")
            e(f"buffer_store_dwordx2 v[{P+2}:{P+3}], v164, {WS}, s41 offen sc1")
            e("s_mov_b64 exec, -1")
        s.append(st)
        return s
    zip_streams(e, [otile(0, 64), otile(1, 104)])
    stamp(e, 7)
    zip_streams(e, [otile(2, 64), otile(3, 104)])
    stamp(e, 8)
    if STAMPS: e("s_waitcnt vmcnt(0)")
    stamp(e, 2)
    stamp_flush_part(e, 2, [1,2,7,8,9], S_WS, 33, 4, 170)
    e("K2_end:")
    e("CODE_END:")
    return kernel("k2_kernel", e.text(), vgpr=176, accum=176, agpr=80, sgpr=102)
```

```python
from asmgen import *
from gen_common import *
import os
OSC = " sc1" if int(os.environ.get("K1_SC1", 1)) else ""

DRY = int(os.environ.get('K1_DRY', 0))
SLOT = 53248
NST = 10
S_X = 8; S_W = 12; S_W2 = 16; S_WS = 20
S_WAVE = 24; S_RB = 25; S_CG = 26; S_T0 = 27; S_COL0 = 28; S_COL1 = 29
S_LX = 34; S_LW = 35; S_LW2 = 36; S_N = 37
S_DSLOT = 40; S_XO = 41; S_WO = 42; S_TMP = 43; S_STG = 44; S_RSLOT = 45; S_T46 = 46; S_DELTA = 47; S_M0X = 48; S_M0W = 49; S_M0W2 = 50
S_ISKV = 51; S_EXTRA = 52; S_DBG = 56
S_KROT = 38; S_KST = 39; S_HOOK = 33
S_PTR = 4
VL = 255
POLL_STAGE = 5; FLAG_STAGE = 1
NFLAG = 78

def zip_ratio(e, main, side):
    n, m = len(main), len(side)
    j = 0
    for i, it in enumerate(main):
        it() if callable(it) else e(it)
        while j < m and (j+1)*n <= (i+1)*m + 0:
            side[j]() if callable(side[j]) else e(side[j]); j += 1
    while j < m:
        side[j]() if callable(side[j]) else e(side[j]); j += 1

def zip2(e, a, b):
    n = max(len(a), len(b))
    for i in range(n):
        for s in (a, b):
            if i < len(s): s[i]() if callable(s[i]) else e(s[i])

def place(sched, items, f0, f1):
    M=len(sched); n=len(items)
    for k,it in enumerate(items):
        pos = int((f0 + (f1-f0)*(k+0.5)/n)*M); pos=min(max(pos,0),M-1)
        sched[pos].append(it)
def place_dma(sched, groups, f0, f1):
    M=len(sched); n=len(groups)
    for k,(m0w, ld) in enumerate(groups):
        pos = int((f0 + (f1-f0)*(k+0.5)/n)*M); pos=min(max(pos,0),M-2)
        sched[pos].append(m0w); sched[pos+1].insert(0, ld)

def adv_dma_list(wstride, two_w):
    l = [f"s_add_u32 s{S_KST}, s{S_KST}, 1", f"s_cmp_ge_u32 s{S_KST}, 10\ns_cselect_b32 s{S_KST}, 0, s{S_KST}",
         f"s_lshl_b32 s{S_XO}, s{S_KST}, 7", f"s_mul_i32 s{S_WO}, s{S_KST}, {64*wstride}", f"s_add_u32 s{S_DSLOT}, s{S_DSLOT}, {SLOT}",
         f"s_cmp_ge_u32 s{S_DSLOT}, {3*SLOT}\ns_cselect_b32 s{S_TMP}, {3*SLOT}, 0", f"s_sub_u32 s{S_DSLOT}, s{S_DSLOT}, s{S_TMP}",
         f"s_add_u32 s{S_M0X}, s{S_DSLOT}, s{S_LX}", f"s_add_u32 s{S_M0W}, s{S_DSLOT}, s{S_LW}"]
    if two_w: l.append(f"s_add_u32 s{S_M0W2}, s{S_DSLOT}, s{S_LW2}")
    return l

def dma_init(e, two_w, wstride):
    e(f"s_mov_b32 s{S_DSLOT}, 0"); e(f"s_mov_b32 s{S_KST}, s{S_KROT}"); e(f"s_lshl_b32 s{S_XO}, s{S_KST}, 7"); e(f"s_mul_i32 s{S_WO}, s{S_KST}, {64*wstride}")
    e(f"s_mov_b32 s{S_M0X}, s{S_LX}"); e(f"s_mov_b32 s{S_M0W}, s{S_LW}")
    if two_w: e(f"s_mov_b32 s{S_M0W2}, s{S_LW2}")
def dma_init_x(e, wstride):
    e(f"s_mov_b32 s{S_DSLOT}, 0"); e(f"s_mov_b32 s{S_KST}, s{S_KROT}"); e(f"s_lshl_b32 s{S_XO}, s{S_KST}, 7"); e(f"s_mul_i32 s{S_WO}, s{S_KST}, {64*wstride}")
    e(f"s_mov_b32 s{S_M0X}, s{S_LX}")
def dma_full(e, dg, wstride, two_w):
    for (a,l) in dg: e(a); e(l)
    for s in adv_dma_list(wstride, two_w): e(s)

def emit_mainloop(e, name, NT, NF, XF, WF, dg, reads, bump, wstride, two_w, late_setup, late_groups, is_ffn, first_extra, VP, RSPAN=0.6):
    NTOT = len(dg); half = NTOT//2; M = NT*NF
    def mfmas(setn):
        out=[]
        for tt in range(NT):
            for j in range(NF):
                a = (tt*NF+j)*4
                out.append(f"v_mfma_f32_16x16x32_bf16 v[{a}:{a+3}], a[{WF+(setn*NF+j)*4}:{WF+(setn*NF+j)*4+3}], a[{XF+(setn*NT+tt)*4}:{XF+(setn*NT+tt)*4+3}], v[{a}:{a+3}]")
        return out
    def emit(mf, sched):
        for i,m in enumerate(mf):
            e(m)
            for s in sched[i]: e(s)
    upd = [f"s_add_u32 s{S_T46}, s{S_RSLOT}, {SLOT}", f"s_cmp_ge_u32 s{S_T46}, {3*SLOT}\ns_cselect_b32 s{S_DELTA}, {3*SLOT}, 0", f"s_sub_u32 s{S_T46}, s{S_T46}, s{S_DELTA}",
           f"s_sub_u32 s{S_DELTA}, s{S_T46}, s{S_RSLOT}", f"s_mov_b32 s{S_RSLOT}, s{S_T46}"]
    def k0(dmas, adv, groups=None, last=None):
        sched=[[] for _ in range(M)]
        place(sched, reads(1,1), 0.0, RSPAN)
        if dmas: place_dma(sched, dmas, 0.05, 0.85)
        if groups: place_groups(sched, groups)
        place(sched, upd, 0.0, 0.3)
        place(sched, [f"v_add_u32 v{r}, s{S_DELTA}, v{r}" for r in bump], RSPAN+0.03, 0.98)
        if adv: place(sched, adv_dma_list(wstride, two_w), 0.87, 1.0)
        if last: sched[M-1].append(last)
        emit(mfmas(0), sched)
    def k1(dmas, groups=None, tail=None, do_reads=True):
        sched=[[] for _ in range(M)]
        if do_reads: place(sched, reads(0,0), 0.0, RSPAN)
        if dmas: place_dma(sched, dmas, 0.05, 0.85)
        if groups: place_groups(sched, groups)
        if tail:
            place(sched, tail[:-1], 0.93, 0.95); sched[M-1].append(tail[-1])
        emit(mfmas(1), sched)
    def place_groups(sched, groups):
        n = len(groups)
        for k,(setup, ld) in enumerate(groups):
            pos = int((0.05 + 0.85*(k+0.5)/n)*M); pos = min(max(pos,1), M-1)
            for t in setup: sched[pos-1].append(t)
            sched[pos].append(ld)
    def wait_extra(tag, base):
        e(f"s_cbranch_scc0 {name}_wx{tag}")
        e(f"s_waitcnt vmcnt({base}) lgkmcnt(0)")
        e(f"{name}_w0{tag}:")
    def wait_extra_ool(tag, base, vals):
        e(f"{name}_wx{tag}:")
        for v in vals:
            lab = e.label(f"{name}_x")
            e(f"s_cmp_eq_u32 s{S_EXTRA}, {v}"); e(f"s_cbranch_scc0 {lab}")
            e(f"s_waitcnt vmcnt({min(63, base+v)}) lgkmcnt(0)"); e(f"s_mov_b32 s{S_EXTRA}, 0"); e(f"s_branch {name}_w0{tag}")
            e(f"{lab}:")
        e(f"s_waitcnt vmcnt({base}) lgkmcnt(0)"); e(f"s_mov_b32 s{S_EXTRA}, 0"); e(f"s_branch {name}_w0{tag}")
    stamp(e, 1)
    if STAMPS == 1:
        e("s_memtime s[100:101]"); e("s_waitcnt lgkmcnt(0)"); e("s_mov_b32 s96, s100")
    e(f"v_lshlrev_b32 v{VP+1}, 7, v{VL}"); e(f"v_mov_b32 v{VP}, 0")
    for s in reads(0,0): e(s)
    first_hook = FLAG_STAGE if is_ffn else POLL_STAGE
    e(f"s_cmp_eq_u32 s{S_WAVE}, 0"); e(f"s_cselect_b32 s{S_HOOK}, {first_hook}, 99")
    e("s_waitcnt lgkmcnt(0)")
    e(f"s_mov_b32 s{S_STG}, 0"); e(f"s_mov_b32 s{S_RSLOT}, 0"); e(f"s_mov_b32 s{S_EXTRA}, {first_extra}")
    e(f"{name}_loop:")
    k0(dg[half:], True, last=f"s_cmp_eq_u32 s{S_EXTRA}, 0")
    wait_extra("a", NTOT)
    e("s_barrier")
    e(f"s_cmp_eq_u32 s{S_STG}, s{S_HOOK}"); e(f"s_cbranch_scc1 {name}_hook")
    e(f"{name}_go:")
    if STAMPS == 3:
        e("s_memrealtime s[100:101]"); e("s_waitcnt lgkmcnt(0)"); e(f"s_mov_b32 m0, s{S_STG}"); e("s_nop 0"); e("s_movreld_b32 s68, s100")
    k1(dg[:half], tail=[f"s_add_u32 s{S_STG}, s{S_STG}, 1", f"s_cmp_lt_u32 s{S_STG}, 7"])
    e("s_waitcnt lgkmcnt(0)")
    e(f"s_cbranch_scc1 {name}_loop")
    ng = len(late_groups); n1 = min(half, ng); n2 = min(NTOT-half, ng-n1); n3 = ng-n1-n2
    g1 = late_groups[:n1]; g2 = late_groups[n1:n1+n2]; g3 = late_groups[n1+n2:]
    k0(dg[half:], False, last=f"s_cmp_eq_u32 s{S_EXTRA}, 0")
    wait_extra("b", 0 + (NTOT - half) + half)
    e(f"s_cmp_eq_u32 s{S_WAVE}, 0"); e(f"s_cbranch_scc1 {name}_chk")
    e(f"{name}_bar7:")
    e("s_barrier")
    if STAMPS == 3:
        e("s_memrealtime s[100:101]"); e("s_waitcnt lgkmcnt(0)"); e("s_mov_b32 s75, s100")
    late_setup()
    k1(None, groups=g1)
    e("s_waitcnt lgkmcnt(0)")
    k0(None, False, groups=g2)
    e(f"s_waitcnt vmcnt({n1+n2}) lgkmcnt(0)")
    e("s_barrier")
    if STAMPS == 3:
        e("s_memrealtime s[100:101]"); e("s_waitcnt lgkmcnt(0)"); e("s_mov_b32 s76, s100")
    k1(None, groups=g3 if g3 else None)
    e("s_waitcnt lgkmcnt(0)")
    k0(None, False)
    e("s_waitcnt lgkmcnt(0)")
    if STAMPS == 3:
        e("s_memrealtime s[100:101]"); e("s_waitcnt lgkmcnt(0)"); e("s_mov_b32 s77, s100")
    k1(None, do_reads=False)
    e(f"s_branch {name}_done")
    wait_extra_ool("a", NTOT, sorted(set([1] + ([first_extra] if first_extra else []))))
    wait_extra_ool("b", NTOT, [1])
    e(f"{name}_chk:")
    e(f"s_mov_b32 s53, 0")
    e(f"{name}_chk2:")
    e("s_mov_b64 exec, 3")
    e(f"v_cmp_ne_u32 vcc, {NFLAG}, v{VP}")
    e("s_mov_b64 exec, -1")
    e("s_nop 1")
    e(f"s_cbranch_vccz {name}_bar7")
    e("s_add_u32 s53, s53, 1"); e("s_cmp_ge_u32 s53, 0x40000"); e(f"s_cbranch_scc1 {name}_bar7")
    e("s_sleep 8")
    e("s_mov_b64 exec, 3")
    e(f"buffer_load_dword v{VP}, v{VP+1}, s[{S_DBG}:{S_DBG+3}], 0 offen sc1")
    e("s_mov_b64 exec, -1")
    e("s_waitcnt vmcnt(0)")
    e(f"s_branch {name}_chk2")
    e(f"{name}_hook:")
    if is_ffn:
        e(f"s_cmp_eq_u32 s{S_STG}, {FLAG_STAGE}"); e(f"s_cbranch_scc0 {name}_poll")
        e(f"s_and_b32 s53, s{S_N}, 1"); e("s_lshl_b32 s53, s53, 7"); e(f"v_mov_b32 v{VP+1}, s53"); e(f"v_mov_b32 v{VP}, 1")
        e("s_mov_b64 exec, 1")
        e(f"buffer_atomic_add v{VP}, v{VP+1}, s[{S_DBG}:{S_DBG+3}], 0 offen")
        e("s_mov_b64 exec, -1")
        e(f"s_mov_b32 s{S_HOOK}, {POLL_STAGE}")
        e(f"s_mov_b32 s{S_EXTRA}, 1"); e(f"s_branch {name}_go")
        e(f"{name}_poll:")
    e(f"v_lshlrev_b32 v{VP+1}, 7, v{VL}")
    e("s_mov_b64 exec, 3")
    e(f"buffer_load_dword v{VP}, v{VP+1}, s[{S_DBG}:{S_DBG+3}], 0 offen sc1")
    e("s_mov_b64 exec, -1")
    e(f"s_mov_b32 s{S_HOOK}, 99")
    e(f"s_mov_b32 s{S_EXTRA}, 1"); e(f"s_branch {name}_go")
    e(f"{name}_done:")
    e("s_nop 7")
    stamp(e, 2)
    if STAMPS == 1:
        e("s_memtime s[100:101]"); e("s_waitcnt lgkmcnt(0)"); e("s_sub_u32 s96, s100, s96")
        stamp_flush_part(e, 1, [6], S_WS, S_WAVE, 0, 250)
    flush3(e)

def x_dma_addr(e, DXA, NXD):
    e(f"v_lshrrev_b32 v200, 3, v{VL}"); e(f"v_lshrrev_b32 v201, 4, v{VL}"); e(f"v_and_b32 v202, 7, v{VL}")
    e(f"s_mul_i32 s30, s{S_WAVE}, {NXD*8}"); e(f"s_add_u32 s30, s30, s{S_T0}")
    e(f"s_mul_i32 s31, s{S_WAVE}, {NXD*4}")
    e("v_add_u32 v204, s30, v200"); e("v_mul_u32_u24 v204, 1280, v204")
    for par in range(2):
        e(f"v_add_u32 v203, {4*par}, v201"); e("v_add_u32 v203, s31, v203"); e("v_and_b32 v203, 7, v203"); e("v_xor_b32 v203, v203, v202"); e("v_lshlrev_b32 v203, 4, v203")
        e(f"v_add_u32 v{205+par}, v203, v204")
    for i in range(NXD):
        e(f"v_add_u32 v{DXA+i}, {8*i*1280}, v{205+(i&1)}")
    e(f"s_mul_i32 s{S_LX}, s{S_WAVE}, {NXD*1024}")

def x_read_addr(e, XRD, tok_off_s):
    e(f"v_and_b32 v200, 15, v{VL}"); e(f"v_lshrrev_b32 v201, 4, v{VL}")
    e("v_lshrrev_b32 v202, 1, v200"); e("v_xor_b32 v202, v202, v201"); e("v_and_b32 v202, 7, v202"); e("v_lshlrev_b32 v202, 4, v202")
    e("v_lshlrev_b32 v203, 7, v200"); e("v_add_u32 v203, v203, v202"); e(f"v_add_u32 v{XRD}, s{tok_off_s}, v203"); e(f"v_xor_b32 v{XRD+1}, 64, v{XRD}")

def x_reads(XF, NT, XRD, ks, setn):
    return [f"ds_read_b128 a[{XF+(setn*NT+tt)*4}:{XF+(setn*NT+tt)*4+3}], v{XRD+ks} offset:{tt*2048}" for tt in range(NT)]

def load_stats(e, NT, dst_v, tok0_s, tmp):
    e(f"v_and_b32 v{tmp}, 15, v{VL}"); e(f"v_add_u32 v{tmp}, s{tok0_s}, v{tmp}"); e(f"v_lshlrev_b32 v{tmp}, 3, v{tmp}")
    for tt in range(NT):
        e(f"buffer_load_dwordx2 v[{dst_v+2*tt}:{dst_v+2*tt+1}], v{tmp}, s[{S_WS}:{S_WS+3}], 0 offen offset:{OFF_STATS + tt*128} sc1")

ROT = int(os.environ.get("K1_ROT", 0))
def krot(e):
    if not ROT:
        e(f"s_mov_b32 s{S_KROT}, 0"); return
    e(f"s_mul_i32 s53, s{S_CG}, 3"); e(f"s_add_u32 s53, s53, s{S_RB}"); e(f"s_add_u32 s53, s53, s{S_RB}"); e(f"s_add_u32 s53, s53, s{S_RB}")
    e(f"s_mul_hi_u32 s54, s53, {(1<<32)//10+1}"); e("s_mul_i32 s54, s54, 10"); e(f"s_sub_u32 s{S_KROT}, s53, s54")

def code_prefetch(e):
    e("s_getpc_b64 s[54:55]")
    l = e.label("PC")
    e(f"{l}:")
    e(f"s_sub_u32 s54, s54, {l}-k1_kernel"); e(f"s_subb_u32 s55, s55, 0")
    e("s_lshr_b32 s53, s2, 3"); e("s_lshl_b32 s53, s53, 11"); e("s_min_u32 s53, s53, CODE_END-k1_kernel-2048")
    e(f"s_lshl_b32 s60, s{S_WAVE}, 9"); e("s_add_u32 s53, s53, s60")
    e(f"v_lshlrev_b32 v200, 4, v{VL}"); e("v_add_u32 v200, s53, v200")
    e("s_mov_b32 exec_hi, 0")
    e("global_load_dwordx4 a[252:255], v200, s[54:55]")
    e("s_mov_b64 exec, -1")

def flush3(e):
    if STAMPS != 3: return
    lab = e.label("F3")
    e(f"s_cmp_eq_u32 s{S_WAVE}, 0"); e(f"s_cbranch_scc0 {lab}")
    e(f"s_lshl_b32 s100, s2, 6"); e(f"s_add_u32 s100, s100, {OFF_TS + 256*64}")
    e("s_mov_b64 exec, 1"); e("v_mov_b32 v251, 0")
    for i in range(10):
        e(f"v_mov_b32 v250, s{68+i}"); e(f"buffer_store_dword v250, v251, s[{S_WS}:{S_WS+3}], s100 offen offset:{24+4*i}")
    e("s_mov_b64 exec, -1"); e(f"{lab}:")

TLBW = int(os.environ.get("K1_TLB", 0))
def tlb_warm(e):
    if not TLBW: return
    n = (18 << 20) // TLBW
    e(f"s_lshl_b32 s53, s2, 2"); e(f"s_add_u32 s53, s53, s{S_WAVE}")
    e(f"v_lshlrev_b32 v200, 10, v{VL}"); e("v_add_u32 v200, s53, v200")
    e(f"v_cmp_gt_u32 vcc, {n}, v200"); e(f"s_mov_b32 s54, {TLBW}"); e("v_mul_lo_u32 v200, v200, s54")
    e("s_mov_b64 exec, vcc")
    l = e.label("TW"); e(f"s_cbranch_execz {l}")
    e(f"buffer_load_dword a252, v200, s[{S_WS}:{S_WS+3}], 0 offen")
    e(f"{l}:")
    e("s_mov_b64 exec, -1")

def sentinel(e):
    e("v_mov_b32 v236, -1"); e("v_mov_b32 v237, -1"); e("v_mov_b32 v238, -1"); e("v_mov_b32 v239, -1"); e(f"v_lshlrev_b32 v240, 4, v{VL}")
    e("s_and_b32 s30, s2, 7"); e("s_lshl_b32 s30, s30, 2"); e("s_lshr_b32 s31, s2, 3"); e("s_sub_u32 s31, s31, 28"); e("s_add_u32 s30, s30, s31")
    e("s_mul_i32 s30, s30, 68"); e("s_add_u32 s30, s30, 48"); e("s_lshl_b32 s30, s30, 12"); e(f"s_mul_i32 s31, s{S_WAVE}, 20480"); e("s_add_u32 s30, s30, s31"); e(f"s_add_u32 s30, s30, {OFF_ACT}")
    for k in range(20):
        e(f"buffer_store_dwordx4 v[236:239], v240, s[{S_WS}:{S_WS+3}], s30 offen sc1")
        if k < 19: e("s_add_u32 s30, s30, 1024")

def wf_idle(e):
    e(f"s_load_dwordx2 s[92:93], s[0:1], {KA_WD}"); e(f"s_load_dwordx2 s[94:95], s[0:1], {KA_WO}")
    e(f"v_lshrrev_b32 v196, 3, v{VL}"); e("v_mul_u32_u24 v196, 1280, v196"); e(f"v_and_b32 v197, 7, v{VL}"); e("v_lshlrev_b32 v197, 4, v197"); e("v_add_u32 v196, v196, v197")
    e(f"v_lshrrev_b32 v3, 4, v{VL}"); e(f"v_and_b32 v4, 15, v{VL}"); e("v_lshrrev_b32 v5, 2, v4"); e("v_and_b32 v6, 3, v4")
    e("v_lshlrev_b32 v3, 2, v3"); e("v_add_u32 v3, v3, v5"); e("v_lshlrev_b32 v3, 7, v3"); e("v_lshlrev_b32 v6, 3, v6"); e("v_add_u32 v3, v3, v6")
    e(f"s_lshl_b32 s70, s{S_WAVE}, 12"); e("v_add_u32 v3, s70, v3"); e(f"v_lshlrev_b32 v7, 4, v{VL}")
    e("s_and_b32 s68, s2, 7"); e("s_sub_u32 s68, s68, 4"); e("s_lshl_b32 s68, s68, 2"); e(f"s_add_u32 s68, s68, s{S_WAVE}"); e("s_add_u32 s68, s68, 624"); e("s_mov_b32 s69, 0")
    e("s_waitcnt lgkmcnt(0)")
    l1 = e.label("WFI"); e(f"{l1}:")
    udiv_const(e, 71, 68, 10)
    e("s_mul_i32 s72, s71, 10"); e("s_sub_u32 s72, s68, s72")
    e("s_mov_b32 s64, s94"); e("s_and_b32 s65, s95, 0xffff"); e(f"s_mov_b32 s66, {640*1280}"); e("s_mov_b32 s67, 0x20000")
    e("s_cmp_ge_u32 s68, 680"); e("s_cselect_b32 s66, 0, s66")
    e("s_sub_u32 s73, s71, 48"); e(f"s_mul_i32 s30, s73, {32*1280}"); e("s_lshl_b32 s31, s72, 7"); e("s_add_u32 s30, s30, s31")
    for k in range(4):
        e(f"s_add_u32 m0, s70, {k*1024}")
        e("buffer_load_dwordx4 v196, s[64:67], s30 offen lds")
        if k < 3: e(f"s_add_u32 s30, s30, {8*1280}")
    e("s_waitcnt vmcnt(0)")
    for ft in range(4):
        e(f"ds_read_b64_tr_b16 v[{16+4*ft}:{17+4*ft}], v3 offset:{ft*32}")
        e(f"ds_read_b64_tr_b16 v[{18+4*ft}:{19+4*ft}], v3 offset:{ft*32+16*128}")
    e("s_waitcnt lgkmcnt(0)")
    for ft in range(4):
        e(f"s_lshl_b32 s30, s72, 2"); e(f"s_add_u32 s30, s30, {ft}")
        udiv_const(e, 31, 30, 5)
        e("s_mul_i32 s32, s31, 5"); e("s_sub_u32 s32, s30, s32")
        e("s_mul_i32 s31, s31, 68"); e("s_add_u32 s31, s31, s71"); e("s_mul_i32 s31, s31, 5"); e("s_add_u32 s31, s31, s32"); e("s_lshl_b32 s31, s31, 10"); e(f"s_add_u32 s31, s31, {OFF_WF}")
        e("s_cmp_ge_u32 s68, 680"); e("s_cselect_b32 s31, 0x7ffffff0, s31")
        e(f"buffer_store_dwordx4 v[{16+4*ft}:{19+4*ft}], v7, s[{S_WS}:{S_WS+3}], s31 offen")
    e("s_add_u32 s68, s68, 16"); e("s_add_u32 s69, s69, 1"); e("s_cmp_lt_u32 s69, 4"); e(f"s_cbranch_scc1 {l1}")

def gen_ffn(e):
    NT, NF = 10, 4
    XF = 0; WF = XF + 2*NT*4
    CS = 112
    XRD = 160; WRD = 162; DXA = 164; DWA = 169
    ST = 174
    VP = 194
    SOFF = 80
    e("FFN:")
    krot(e)
    e(f"s_mul_i32 s{S_T0}, s{S_RB}, 160")
    e("s_mov_b32 s4, s74"); e("s_mov_b32 s5, s75"); e("s_mov_b32 s6, s76"); e("s_mov_b32 s7, s77"); e("s_mov_b32 s60, s66"); e("s_mov_b32 s61, s67")
    x_dma_addr(e, DXA, 5)
    dma_init_x(e, 3072)
    for i in range(5): e(f"s_add_u32 m0, s{S_M0X}, {i*1024}"); e(f"buffer_load_dwordx4 v{DXA+i}, s[{S_X}:{S_X+3}], s{S_XO} offen lds")
    e(f"v_lshrrev_b32 v200, 4, v{VL}"); e(f"v_and_b32 v201, 15, v{VL}"); e("v_lshlrev_b32 v202, 1, v200")
    e(f"s_lshl_b32 s31, s{S_CG}, 8")
    e(f"s_lshl_b32 s32, s{S_WAVE}, 4")
    e("v_add_u32 v204, s32, v200"); e("v_mul_u32_u24 v204, 3072, v204"); e("v_add_u32 v204, s31, v204")
    for par in range(2):
        e(f"v_xor_b32 v203, {par<<3}, v202"); e("v_xor_b32 v203, v203, v201"); e("v_lshlrev_b32 v203, 4, v203"); e(f"v_add_u32 v{205+par}, v203, v204")
    for i in range(4): e(f"v_add_u32 v{DWA+i}, {4*i*3072}, v{205+((i>>1)&1)}")
    e(f"s_lshl_b32 s{S_LW}, s{S_WAVE}, 12"); e(f"s_add_u32 s{S_LW2}, s{S_LW}, {20480+16384}"); e(f"s_add_u32 s{S_LW}, s{S_LW}, 20480")
    srd(e, S_W, 4, 640*3072); srd(e, S_W2, 6, 640*3072)
    dg = []
    for i in range(5): dg.append((f"s_add_u32 m0, s{S_M0X}, {i*1024}", f"buffer_load_dwordx4 v{DXA+i}, s[{S_X}:{S_X+3}], s{S_XO} offen lds"))
    for i in range(4): dg.append((f"s_add_u32 m0, s{S_M0W}, {i*1024}", f"buffer_load_dwordx4 v{DWA+i}, s[{S_W}:{S_W+3}], s{S_WO} offen lds"))
    for i in range(4): dg.append((f"s_add_u32 m0, s{S_M0W2}, {i*1024}", f"buffer_load_dwordx4 v{DWA+i}, s[{S_W2}:{S_W2+3}], s{S_WO} offen lds"))
    dg = [dg[0],dg[5],dg[9],dg[1],dg[6],dg[10], dg[2],dg[7],dg[11],dg[3],dg[8],dg[12],dg[4]]
    e(f"s_mov_b32 s{S_M0W}, s{S_LW}"); e(f"s_mov_b32 s{S_M0W2}, s{S_LW2}")
    for (a,l) in dg:
        if f"s[{S_X}:" not in l: e(a); e(l)
    for t in adv_dma_list(3072, True): e(t)
    e("s_cmp_ge_u32 s78, 20"); e("s_cselect_b32 s30, 20, 0"); e("s_cselect_b32 s32, 1024, 0"); e("s_sub_u32 s30, s78, s30")
    e("s_cmp_ge_u32 s30, 16"); e("s_cselect_b32 s62, 0x40000000, 0")
    e("s_lshl_b32 s31, s79, 4"); e("s_add_u32 s30, s30, s31"); e("s_lshl_b32 s30, s30, 4"); e("s_add_u32 s30, s30, s32")
    e(f"s_lshl_b32 s31, s{S_WAVE}, 2"); e("s_add_u32 s30, s30, s31")
    e(f"v_lshrrev_b32 v200, 5, v{VL}"); e("v_add_u32 v196, s30, v200")
    e(f"v_and_b32 v197, 31, v{VL}")
    e("v_mul_u32_u24 v201, 1280, v196"); e("v_lshlrev_b32 v202, 3, v197"); e("v_add_u32 v201, v201, v202")
    e("s_mov_b32 s31, s62"); e("s_add_u32 s32, s31, 2560")
    for ps in range(2):
        for k in range(5):
            e(f"buffer_load_dwordx2 v[{ps*10+2*k}:{ps*10+2*k+1}], v201, s[{S_X}:{S_X+3}], s{31+ps} offen offset:{k*256}")
    e("s_cmp_ge_u32 s78, 24"); e("s_cbranch_scc1 FFN_uq")
    e("s_lshr_b32 s30, s78, 1"); e("s_and_b32 s63, s78, 1"); e("s_mul_i32 s31, s79, 6"); e("s_add_u32 s31, s31, s30")
    e("s_cmp_ge_u32 s30, 6"); e("s_cselect_b32 s30, 48, 30"); e("s_add_u32 s30, s30, s31")
    e("s_branch FFN_ud")
    e("FFN_uq:")
    e("s_mul_i32 s31, s79, 15"); e("s_add_u32 s31, s31, s78"); e("s_sub_u32 s31, s31, 24"); e("s_and_b32 s63, s31, 1"); e("s_lshr_b32 s31, s31, 1")
    udiv_const(e, 30, 31, 3)
    e("s_mul_i32 s33, s30, 3"); e("s_sub_u32 s33, s31, s33"); e("s_mul_i32 s33, s33, 10"); e("s_add_u32 s30, s30, s33")
    e("FFN_ud:")
    e("s_mov_b32 s77, s30")
    e("s_mov_b32 s64, s60"); e("s_and_b32 s65, s61, 0xffff"); e(f"s_mov_b32 s66, {640*3840}"); e("s_mov_b32 s67, 0x20000"); e("s_mov_b32 s33, 3840"); e("s_mov_b32 s32, s30")
    e("s_cmp_ge_u32 s30, 30"); e("s_cbranch_scc0 FFN_msel")
    e("s_mov_b32 s64, s4"); e("s_and_b32 s65, s5, 0xffff"); e(f"s_mov_b32 s66, {640*3072}"); e("s_mov_b32 s33, 3072"); e("s_sub_u32 s32, s30, 30")
    e("s_cmp_ge_u32 s30, 54"); e("s_cbranch_scc0 FFN_msel")
    e("s_mov_b32 s64, s6"); e("s_and_b32 s65, s7, 0xffff"); e("s_sub_u32 s32, s30, 54")
    e("FFN_msel:")
    e("s_mul_i32 s31, s63, 320"); e(f"s_lshl_b32 s53, s{S_WAVE}, 3"); e("s_add_u32 s31, s31, s53")
    e(f"v_lshrrev_b32 v200, 3, v{VL}"); e("v_add_u32 v200, s31, v200"); e("v_mul_lo_u32 v200, v200, s33")
    e(f"v_and_b32 v201, 7, v{VL}"); e("v_lshlrev_b32 v201, 4, v201"); e("s_lshl_b32 s32, s32, 7"); e("v_add_u32 v201, s32, v201"); e("v_add_u32 v200, v200, v201")
    e("s_lshl_b32 s33, s33, 5"); e("s_mov_b32 s31, 0")
    for k in range(10):
        e(f"buffer_load_dwordx4 v[{20+4*k}:{23+4*k}], v200, s[64:67], s31 offen")
        if k < 9: e("s_add_u32 s31, s31, s33")
    dma_full(e, dg, 3072, True)
    e(f"s_mov_b32 s30, 0")
    x_read_addr(e, XRD, 30)
    e(f"v_and_b32 v200, 15, v{VL}"); e(f"v_lshrrev_b32 v201, 4, v{VL}")
    e("v_lshrrev_b32 v202, 2, v200"); e("v_and_b32 v203, 3, v200")
    e("v_lshlrev_b32 v204, 3, v201"); e("v_add_u32 v204, v204, v202"); e("v_lshlrev_b32 v204, 8, v204")
    e("v_lshlrev_b32 v205, 1, v202"); e("v_and_b32 v206, 1, v201"); e("v_lshlrev_b32 v206, 3, v206"); e("v_or_b32 v205, v205, v206")
    e("v_lshrrev_b32 v206, 1, v203"); e(f"s_lshl_b32 s30, s{S_WAVE}, 2"); e("v_add_u32 v206, s30, v206")
    e("v_and_b32 v207, 1, v203"); e("v_lshlrev_b32 v207, 3, v207")
    for j in range(2):
        e(f"v_add_u32 v199, {2*j}, v206"); e("v_xor_b32 v199, v199, v205"); e("v_lshlrev_b32 v199, 4, v199"); e("v_add_u32 v199, v199, v207")
        e("v_add_u32 v199, v199, v204"); e(f"v_add_u32 v{WRD+j}, 20480, v199")
    e(f"s_lshl_b32 s30, s{S_CG}, 2"); e(f"s_add_u32 s30, s30, s{S_WAVE}"); e(f"s_mul_i32 s31, s{S_RB}, 10")
    for tt in range(NT):
        d = SOFF+tt
        e(f"s_add_u32 s32, s31, {tt}"); e("s_lshr_b32 s33, s32, 2"); e("s_mul_i32 s33, s33, 68"); e("s_add_u32 s33, s33, s30"); e("s_lshl_b32 s33, s33, 2")
        e("s_and_b32 s53, s32, 3"); e("s_add_u32 s33, s33, s53"); e("s_lshl_b32 s33, s33, 10"); e(f"s_add_u32 s33, s33, {OFF_ACT}")
        e("s_cmp_ge_u32 s32, 128"); e(f"s_cselect_b32 s{d}, 0x7ffffff0, s33")
    for i in range(60, 160): e(f"v_mov_b32 v{i}, 0")
    e("s_waitcnt vmcnt(13)")
    st = []
    for ps in range(2):
        a = []
        S0 = 200+2*ps; S1 = S0+1
        a.append(f"v_mov_b32 v{S0}, 0"); a.append(f"v_mov_b32 v{S1}, 0")
        for k in range(10):
            a.append(f"v_dot2c_f32_bf16 v{S0}, 0x3f803f80, v{ps*10+k}"); a.append(f"v_dot2c_f32_bf16 v{S1}, v{ps*10+k}, v{ps*10+k}")
        for sh in (1,2,4,8):
            a.append(f"v_add_f32_dpp v{S0}, v{S0}, v{S0} row_shr:{sh} row_mask:0xf bank_mask:0xf bound_ctrl:0")
            a.append(f"v_add_f32_dpp v{S1}, v{S1}, v{S1} row_shr:{sh} row_mask:0xf bank_mask:0xf bound_ctrl:0")
        a.append(f"v_add_f32_dpp v{S0}, v{S0}, v{S0} row_bcast:15 row_mask:0xa bank_mask:0xf")
        a.append(f"v_add_f32_dpp v{S1}, v{S1}, v{S1} row_bcast:15 row_mask:0xa bank_mask:0xf")
        a.append(f"v_mul_f32 v{S0}, {1.0/640!r}, v{S0}"); a.append(f"v_mul_f32 v{S1}, {1.0/640!r}, v{S1}")
        a.append(f"v_fma_f32 v{S1}, -v{S0}, v{S0}, v{S1}"); a.append(f"v_max_f32 v{S1}, 0, v{S1}"); a.append(f"v_add_f32 v{S1}, {1e-5!r}, v{S1}"); a.append(f"v_rsq_f32 v{S1}, v{S1}")
        st.append(a)
    cs = []
    for i in range(8): cs.append(f"v_mov_b32 v{204+i}, 0")
    for k in range(10):
        for d in range(4):
            r = 20+4*k+d
            cs.append(f"v_lshlrev_b32 v212, 16, v{r}"); cs.append(f"v_and_b32 v213, 0xffff0000, v{r}")
            cs.append(f"v_pk_add_f32 v[{204+2*d}:{205+2*d}], v[{204+2*d}:{205+2*d}], v[212:213]")
    zip2(e, st[0], st[1])
    for it in cs: e(it)
    SCR = 2*SLOT
    e(f"s_lshl_b32 s30, s{S_WAVE}, 11"); e(f"v_lshlrev_b32 v214, 5, v{VL}"); e("v_add_u32 v214, s30, v214"); e(f"v_add_u32 v214, {SCR}, v214")
    e("ds_write_b128 v214, v[204:207]"); e("ds_write_b128 v214, v[208:211] offset:16")
    e("v_lshlrev_b32 v196, 3, v196")
    e(f"s_add_u32 s31, s62, {OFF_STATS}"); e("s_add_u32 s32, s31, 16")
    e("v_cmp_eq_u32 vcc, 31, v197"); e("s_mov_b64 exec, vcc")
    e(f"buffer_store_dwordx2 v[200:201], v196, s[{S_WS}:{S_WS+3}], s31 offen sc1")
    e(f"buffer_store_dwordx2 v[202:203], v196, s[{S_WS}:{S_WS+3}], s32 offen sc1")
    e("s_mov_b64 exec, -1")
    for i in range(60): e(f"v_mov_b32 v{i}, 0")
    e("s_waitcnt lgkmcnt(0)"); e("s_barrier")
    e(f"v_and_b32 v200, 15, v{VL}"); e(f"s_lshl_b32 s30, s{S_WAVE}, 4"); e("v_add_u32 v200, s30, v200")
    e("v_lshrrev_b32 v201, 3, v200"); e("v_lshlrev_b32 v201, 5, v201"); e("v_and_b32 v202, 7, v200"); e("v_lshlrev_b32 v202, 2, v202"); e("v_add_u32 v201, v201, v202")
    e(f"v_lshrrev_b32 v202, 4, v{VL}"); e("v_lshlrev_b32 v202, 11, v202"); e("v_add_u32 v201, v201, v202"); e(f"v_add_u32 v201, {SCR}, v201")
    for i in range(8): e(f"ds_read_b32 v{204+i}, v201 offset:{i*256}")
    e("s_waitcnt lgkmcnt(0)")
    e("v_add_f32 v204, v204, v205"); e("v_add_f32 v206, v206, v207"); e("v_add_f32 v208, v208, v209"); e("v_add_f32 v210, v210, v211")
    e("v_add_f32 v204, v204, v206"); e("v_add_f32 v208, v208, v210"); e("v_add_f32 v204, v204, v208")
    for sw in ("v_permlane16_swap_b32", "v_permlane32_swap_b32"):
        e("v_mov_b32 v205, v204"); e(f"{sw} v204, v205"); e("v_add_f32 v204, v204, v205")
    e("s_mul_i32 s30, s63, 4992"); e("s_lshl_b32 s31, s77, 6"); e("s_add_u32 s30, s30, s31"); e("s_lshl_b32 s30, s30, 2"); e(f"s_add_u32 s30, s30, {OFF_CS}")
    e("v_lshlrev_b32 v200, 2, v200")
    e("s_mov_b64 exec, 0xffff")
    e(f"buffer_store_dword v204, v200, s[{S_WS}:{S_WS+3}], s30 offen sc1")
    e("s_mov_b64 exec, -1")
    code_prefetch(e); tlb_warm(e)
    e("s_barrier")
    for (a,l) in dg[:len(dg)//2]: e(a); e(l)
    def reads(ks, setn):
        w = []
        for t4 in range(4):
            r = WF + (setn*NF + t4)*4
            off = (16384 if t4 >= 2 else 0) + ks*8192
            w.append(f"ds_read_b64_tr_b16 a[{r}:{r+1}], v{WRD+(t4&1)} offset:{off}")
            w.append(f"ds_read_b64_tr_b16 a[{r+2}:{r+3}], v{WRD+(t4&1)} offset:{off+1024}")
        xs = x_reads(XF, NT, XRD, ks, setn)
        return xs[:1] + w + xs[1:]
    def late_setup():
        e(f"v_and_b32 v{VP}, 15, v{VL}"); e(f"v_add_u32 v{VP}, s{S_T0}, v{VP}"); e(f"v_lshlrev_b32 v{VP}, 3, v{VP}")
        e(f"v_lshrrev_b32 v{VP+1}, 4, v{VL}"); e(f"v_lshlrev_b32 v{VP+1}, 4, v{VP+1}")
        e(f"s_lshl_b32 s30, s{S_CG}, 7"); e(f"s_lshl_b32 s31, s{S_WAVE}, 5"); e("s_add_u32 s30, s30, s31"); e("s_lshl_b32 s30, s30, 2")
        e(f"v_add_u32 v{VP+1}, s30, v{VP+1}")
    lg = []
    for tt in range(NT):
        lg.append(([], f"buffer_load_dwordx2 v[{ST+2*tt}:{ST+2*tt+1}], v{VP}, s[{S_WS}:{S_WS+3}], 0 offen offset:{OFF_STATS + tt*128} sc1"))
    for p in range(2):
        for t4 in range(4):
            base = (1920 if t4 < 2 else 3456) + 16*(t4 & 1)
            lg.append(([f"s_mov_b32 s31, {OFF_CS + (p*4992 + base)*4}"], f"buffer_load_dwordx4 a[{CS+p*16+t4*4}:{CS+p*16+t4*4+3}], v{VP+1}, s[{S_WS}:{S_WS+3}], s31 offen sc1"))
    emit_mainloop(e, "FFN", NT, NF, XF, WF, dg, reads, [XRD, XRD+1, WRD, WRD+1], 3072, True, late_setup, lg, True, 4, VP)
    e("s_waitcnt vmcnt(0)")
    e("s_barrier")
    e(f"s_load_dwordx2 s[4:5], s[0:1], {KA_WD}"); e(f"s_load_dwordx2 s[6:7], s[0:1], {KA_WO}")
    e(f"v_lshrrev_b32 v196, 3, v{VL}"); e("v_mul_u32_u24 v196, 1280, v196"); e(f"v_and_b32 v197, 7, v{VL}"); e("v_lshlrev_b32 v197, 4, v197"); e("v_add_u32 v196, v196, v197")
    e("s_waitcnt lgkmcnt(0)")
    for rnd in range(1):
        U = 68+rnd*4
        e(f"s_lshl_b32 s{U}, s{S_N}, 2"); e(f"s_add_u32 s{U}, s{U}, s{S_WAVE}")
        if rnd: e(f"s_add_u32 s{U}, s{U}, 624")
        udiv_const(e, U+1, U, 10)
        e(f"s_mul_i32 s{U+2}, s{U+1}, 10"); e(f"s_sub_u32 s{U+2}, s{U}, s{U+2}")
        e("s_mov_b32 s64, s4"); e("s_and_b32 s65, s5, 0xffff"); e(f"s_mov_b32 s66, {1536*1280}"); e("s_mov_b32 s67, 0x20000"); e(f"s_mov_b32 s30, s{U+1}")
        lab = e.label("FFN_ws")
        e(f"s_cmp_ge_u32 s{U+1}, 48"); e(f"s_cbranch_scc0 {lab}")
        e("s_mov_b32 s64, s6"); e("s_and_b32 s65, s7, 0xffff"); e(f"s_mov_b32 s66, {640*1280}"); e(f"s_sub_u32 s30, s{U+1}, 48")
        e(f"{lab}:")
        e(f"s_cmp_ge_u32 s{U}, 680"); e("s_cselect_b32 s66, 0, s66")
        e(f"s_mul_i32 s30, s30, {32*1280}"); e(f"s_lshl_b32 s31, s{U+2}, 7"); e("s_add_u32 s30, s30, s31")
        e(f"s_lshl_b32 s31, s{S_WAVE}, 13"); e(f"s_add_u32 s31, s31, {rnd*4096}")
        for k in range(4):
            e(f"s_add_u32 m0, s31, {k*1024}")
            e("buffer_load_dwordx4 v196, s[64:67], s30 offen lds")
            if k < 3: e(f"s_add_u32 s30, s30, {8*1280}")
    for i in range(16): e(f"v_accvgpr_read_b32 v{224+i}, a{CS+i}")
    for i in range(16): e(f"v_accvgpr_read_b32 v{196+i}, a{CS+16+i}")
    for i in range(0, 16, 2): e(f"v_pk_add_f32 v[{224+i}:{225+i}], v[{224+i}:{225+i}], v[{196+i}:{197+i}]")
    e(f"v_lshlrev_b32 v240, 4, v{VL}")
    def tile(tt, R):
        s = []; a = s.append
        m = ST+2*tt; r = m+1; A = tt*16
        a(f"v_sub_f32 v{R}, 0, v{m}"); a(f"v_mul_f32 v{R+2}, {-LOG2E!r}, v{r}"); a(f"v_mul_f32 v{R+4}, v{r}, v{r}"); a(f"v_rcp_f32 v{R+4}, v{R+4}")
        for k in range(0, 16, 2): a(f"v_pk_fma_f32 v[{A+k}:{A+k+1}], v[{224+k}:{225+k}], v[{R}:{R+1}], v[{A+k}:{A+k+1}] op_sel_hi:[1,0,1]")
        E = R+6
        for k in range(0, 8, 2): a(f"v_pk_mul_f32 v[{E+k}:{E+k+1}], v[{A+k}:{A+k+1}], v[{R+2}:{R+3}] op_sel_hi:[1,0]")
        for k in range(8): a(f"v_exp_f32 v{E+k}, v{E+k}")
        for k in range(0, 8, 2): a(f"v_pk_mul_f32 v[{A+k}:{A+k+1}], v[{A+k}:{A+k+1}], v[{A+8+k}:{A+9+k}]")
        for k in range(0, 8, 2): a(f"v_pk_fma_f32 v[{E+k}:{E+k+1}], v[{E+k}:{E+k+1}], v[{R+4}:{R+5}], v[{R+4}:{R+5}] op_sel_hi:[1,0,0]")
        for k in range(8): a(f"v_rcp_f32 v{E+k}, v{E+k}")
        for k in range(0, 8, 2): a(f"v_pk_mul_f32 v[{A+k}:{A+k+1}], v[{A+k}:{A+k+1}], v[{E+k}:{E+k+1}]")
        for k in range(4): a(f"v_cvt_pk_bf16_f32 v{A+8+k}, v{A+2*k}, v{A+2*k+1}")
        a(f"buffer_store_dwordx4 v[{A+8}:{A+11}], v240, s[{S_WS}:{S_WS+3}], s{SOFF+tt} offen{OSC}")
        return s
    for tt in range(0, NT, 2): zip2(e, tile(tt, 196), tile(tt+1, 210))
    e("s_waitcnt vmcnt(10)")
    e(f"v_lshrrev_b32 v3, 4, v{VL}"); e(f"v_and_b32 v4, 15, v{VL}"); e("v_lshrrev_b32 v5, 2, v4"); e("v_and_b32 v6, 3, v4")
    e("v_lshlrev_b32 v3, 2, v3"); e("v_add_u32 v3, v3, v5"); e("v_lshlrev_b32 v3, 7, v3"); e("v_lshlrev_b32 v6, 3, v6"); e("v_add_u32 v3, v3, v6")
    e(f"s_lshl_b32 s31, s{S_WAVE}, 13"); e("v_add_u32 v3, s31, v3")
    for rnd in range(1):
        U = 68+rnd*4
        lab = e.label("FFN_wf")
        e(f"s_cmp_ge_u32 s{U}, 680"); e(f"s_cbranch_scc1 {lab}")
        for ft in range(4):
            e(f"ds_read_b64_tr_b16 v[{16+4*ft}:{17+4*ft}], v3 offset:{rnd*4096+ft*32}")
            e(f"ds_read_b64_tr_b16 v[{18+4*ft}:{19+4*ft}], v3 offset:{rnd*4096+ft*32+16*128}")
        e("s_waitcnt lgkmcnt(0)")
        for ft in range(4):
            e(f"s_lshl_b32 s30, s{U+2}, 2"); e(f"s_add_u32 s30, s30, {ft}")
            udiv_const(e, 31, 30, 5)
            e("s_mul_i32 s32, s31, 5"); e("s_sub_u32 s32, s30, s32")
            e("s_mul_i32 s31, s31, 68"); e(f"s_add_u32 s31, s31, s{U+1}"); e("s_mul_i32 s31, s31, 5"); e("s_add_u32 s31, s31, s32"); e("s_lshl_b32 s31, s31, 10"); e(f"s_add_u32 s31, s31, {OFF_WF}")
            e(f"buffer_store_dwordx4 v[{16+4*ft}:{19+4*ft}], v240, s[{S_WS}:{S_WS+3}], s31 offen{OSC}")
        e(f"{lab}:")
    if STAMPS: e("s_waitcnt vmcnt(0)")
    stamp(e, 3); stamp_flush(e, 1, 4, S_WS, S_WAVE)
    e("s_endpgm")

def fperm():
    ft0 = [('p', 5*q+e_) for q in range(4) for e_ in range(4)]
    ft1 = []
    for q in range(4): ft1 += [('p', 5*q+4), ('m', 5*q), ('m', 5*q+1), ('m', 5*q+2)]
    ft2 = [[('m', 5*q+3), ('m', 5*q+4)] for q in range(4)]
    return ft0, ft1, ft2

def gen_att(e):
    NT, NF = 4, 10
    XF = 0; WF = XF + 2*NT*4
    PHI = 112
    CS = 172
    XRD = 160; WRD = 162; DXA = 172; DWA = 180
    VP = 186
    ST = 246
    WPH = 159744
    e("ATT:")
    krot(e)
    e(f"s_lshl_b32 s{S_T0}, s{S_RB}, 8")
    e("s_mov_b32 s4, s66"); e("s_mov_b32 s5, s67"); e("s_mov_b32 s6, s68"); e("s_mov_b32 s7, s69")
    x_dma_addr(e, DXA, 8)
    dma_init_x(e, 3840)
    for i in range(8): e(f"s_add_u32 m0, s{S_M0X}, {i*1024}"); e(f"buffer_load_dwordx4 v{DXA+i}, s[{S_X}:{S_X+3}], s{S_XO} offen lds")
    e(f"s_mul_i32 s30, s{S_WAVE}, 5")
    e(f"s_lshl_b32 s31, s{S_COL0}, 1"); e(f"s_lshl_b32 s32, s{S_COL1}, 1"); e("s_sub_u32 s32, s32, s31"); e("s_sub_u32 s32, s32, 160")
    e("s_mov_b32 s33, 0xCCCD")
    for i in range(5):
        e(f"s_add_u32 s53, s30, {i}"); e("s_lshl_b32 s53, s53, 6")
        e(f"v_add_u32 v200, s53, v{VL}")
        e("v_mul_lo_u32 v201, v200, s33"); e("v_lshrrev_b32 v201, 20, v201")
        e("v_mul_u32_u24 v202, 20, v201"); e("v_sub_u32 v202, v200, v202")
        e("v_lshrrev_b32 v203, 2, v201"); e("v_and_b32 v203, 2, v203"); e("v_xor_b32 v202, v202, v203")
        e("v_cmp_le_u32 vcc, 10, v202"); e("v_mov_b32 v204, s32"); e("v_cndmask_b32 v204, 0, v204, vcc")
        e("v_lshlrev_b32 v202, 4, v202"); e("v_add_u32 v202, v202, v204")
        e("v_mul_u32_u24 v201, 3840, v201"); e("v_add_u32 v201, v201, v202"); e(f"v_add_u32 v{DWA+i}, s31, v201")
    e(f"s_lshl_b32 s{S_LW}, s30, 10"); e(f"s_add_u32 s{S_LW}, s{S_LW}, 32768")
    srd(e, S_W, 4, 640*3840); srd(e, S_W2, 6, 32*800)
    dg = []
    for i in range(8): dg.append((f"s_add_u32 m0, s{S_M0X}, {i*1024}", f"buffer_load_dwordx4 v{DXA+i}, s[{S_X}:{S_X+3}], s{S_XO} offen lds"))
    for i in range(5): dg.append((f"s_add_u32 m0, s{S_M0W}, {i*1024}", f"buffer_load_dwordx4 v{DWA+i}, s[{S_W}:{S_W+3}], s{S_WO} offen lds"))
    dg = [dg[0],dg[8],dg[1],dg[9],dg[2],dg[3],  dg[10],dg[4],dg[5],dg[11],dg[6],dg[12],dg[7]]
    stamp(e, 4)
    e(f"s_mov_b32 s{S_M0W}, s{S_LW}")
    for (a,l) in dg:
        if f"s[{S_X}:" not in l: e(a); e(l)
    for t in adv_dma_list(3840, False): e(t)
    e(f"v_lshlrev_b32 v201, 4, v{VL}")
    e(f"s_mul_i32 s31, s{S_CG}, 3200"); e(f"s_lshl_b32 s32, s{S_WAVE}, 10"); e("s_add_u32 s31, s31, s32")
    e(f"s_add_u32 m0, s32, {WPH}")
    e(f"s_cmp_eq_u32 s{S_WAVE}, 3"); e("s_cselect_b64 s[54:55], 0xff, -1"); e("s_mov_b64 exec, s[54:55]")
    e(f"buffer_load_dwordx4 v201, s[{S_W2}:{S_W2+3}], s31 offen lds")
    e("s_mov_b64 exec, -1")
    e(f"v_mov_b32 v204, 0"); e("v_mov_b32 v205, 0"); e("v_mov_b32 v206, 0"); e("v_mov_b32 v207, 0")
    e(f"v_lshlrev_b32 v203, 4, v{VL}"); e(f"v_add_u32 v203, {WPH+3200}, v203")
    e("s_mov_b32 exec_hi, 0x00ffffff")
    e("ds_write_b128 v203, v[204:207]")
    e("s_mov_b64 exec, -1")
    e(f"s_lshl_b32 s30, s{S_WAVE}, 13")
    x_read_addr(e, XRD, 30)
    e(f"v_and_b32 v200, 15, v{VL}"); e(f"v_lshrrev_b32 v201, 4, v{VL}")
    e("v_lshrrev_b32 v202, 2, v200"); e("v_and_b32 v203, 3, v200")
    e("v_lshlrev_b32 v204, 3, v201"); e("v_add_u32 v204, v204, v202"); e("v_mul_u32_u24 v204, 320, v204")
    e("v_mul_u32_u24 v205, 5, v203")
    e("v_and_b32 v206, 1, v201"); e("v_lshlrev_b32 v206, 2, v206")
    for t in range(10):
        e(f"v_add_u32 v207, {(t%5) + 20*(t//5)}, v205"); e("v_xor_b32 v207, v207, v206"); e("v_lshlrev_b32 v207, 3, v207"); e("v_add_u32 v207, v207, v204"); e(f"v_add_u32 v{WRD+t}, 32768, v207")
    e("v_mul_u32_u24 v208, 800, v201"); e("v_mul_u32_u24 v209, 40, v202"); e("v_add_u32 v208, v208, v209"); e(f"v_add_u32 v245, {WPH}, v208")
    e(f"v_mov_b32 v209, {WPH+3200}")
    e("v_cmp_eq_u32 vcc, v203, v201"); e("v_cndmask_b32 v245, v209, v245, vcc")
    if DRY:
        e(f"s_cmp_eq_u32 s{S_ISKV}, 1"); e("s_cbranch_scc0 KVD_DONE")
        e("s_mov_b32 s53, 0")
        e("s_mov_b64 exec, 0")
        e(f"s_cmp_eq_u32 s{S_WAVE}, 0"); e("s_cbranch_scc1 KVD0")
        e(f"s_cmp_eq_u32 s{S_WAVE}, 1"); e("s_cbranch_scc1 KVD1")
        e(f"s_cmp_eq_u32 s{S_WAVE}, 2"); e("s_cbranch_scc1 KVD2x")
        e("s_branch KVD3x")
        e("KVD_RET:")
        e("s_cmp_eq_u32 s53, 0"); e("s_mov_b32 s53, 1"); e("s_cbranch_scc0 KVD_END")
        e(f"s_cmp_eq_u32 s{S_WAVE}, 0"); e("s_cbranch_scc1 KVD6")
        e(f"s_cmp_eq_u32 s{S_WAVE}, 2"); e("s_cbranch_scc1 KVD4x")
        e("KVD_END:")
        e("s_mov_b64 exec, -1")
        e("s_waitcnt lgkmcnt(0)")
        e("KVD_DONE:")
    for i in range(160): e(f"v_mov_b32 v{i}, 0")
    dma_full(e, dg, 3840, False)
    code_prefetch(e); tlb_warm(e)
    stamp(e, 5)
    e(f"s_waitcnt vmcnt({13+1}) lgkmcnt(0)")
    e("s_barrier")
    for (a,l) in dg[:len(dg)//2]: e(a); e(l)
    def reads(ks, setn):
        w = []
        for t in range(10):
            r = WF + (setn*NF + t)*4
            w.append(f"ds_read_b64_tr_b16 a[{r}:{r+1}], v{WRD+t} offset:{ks*10240}")
            w.append(f"ds_read_b64_tr_b16 a[{r+2}:{r+3}], v{WRD+t} offset:{ks*10240+1280}")
        xs = x_reads(XF, NT, XRD, ks, setn)
        return xs[:1] + w + xs[1:]
    def late_setup():
        e(f"s_lshl_b32 s30, s{S_WAVE}, 6"); e(f"s_add_u32 s30, s30, s{S_T0}")
        e(f"v_and_b32 v{VP}, 15, v{VL}"); e(f"v_add_u32 v{VP}, s30, v{VP}"); e(f"v_lshlrev_b32 v{VP}, 3, v{VP}")
        e(f"v_lshrrev_b32 v{VP+1}, 4, v{VL}"); e(f"v_mul_u32_u24 v{VP+1}, 80, v{VP+1}")
        e(f"s_lshl_b32 s60, s{S_COL0}, 2"); e(f"s_add_u32 s60, s60, {OFF_CS}"); e(f"s_lshl_b32 s61, s{S_COL1}, 2"); e(f"s_add_u32 s61, s61, {OFF_CS}")
        e(f"s_add_u32 s62, s60, {4992*4}"); e(f"s_add_u32 s63, s61, {4992*4}")
    lg = []
    for tt in range(NT):
        lg.append(([], f"buffer_load_dwordx2 v[{ST+2*tt}:{ST+2*tt+1}], v{VP}, s[{S_WS}:{S_WS+3}], 0 offen offset:{OFF_STATS + tt*128} sc1"))
    for p in range(2):
        for half in range(2):
            for j in range(5):
                d = CS + p*40 + (half*5+j)*4
                lg.append(([], f"buffer_load_dwordx4 a[{d}:{d+3}], v{VP+1}, s[{S_WS}:{S_WS+3}], s{60+2*p+half} offen offset:{j*16} sc1"))
    emit_mainloop(e, "ATT", NT, NF, XF, WF, dg, reads, [XRD, XRD+1] + [WRD+t for t in range(10)], 3840, False, late_setup, lg, False, 1, VP)
    e("s_waitcnt vmcnt(0)")
    e(f"s_cmp_eq_u32 s{S_ISKV}, 1"); e("s_cbranch_scc1 KV_EPI")
    sentinel(e)
    for i in range(40): e(f"v_accvgpr_read_b32 v{160+i}, a{CS+i}")
    for i in range(40): e(f"v_accvgpr_read_b32 v{200+i}, a{CS+40+i}")
    for i in range(0, 40, 2): e(f"v_pk_add_f32 v[{160+i}:{161+i}], v[{160+i}:{161+i}], v[{200+i}:{201+i}]")
    e(f"v_lshrrev_b32 v200, 4, v{VL}"); e(f"v_and_b32 v201, 15, v{VL}")
    e(f"v_mul_u32_u24 v202, {128*768}, v200")
    e("v_lshlrev_b32 v203, 4, v201"); e("v_add_u32 v204, v202, v203")
    e(f"s_lshl_b32 s30, s{S_RB}, 4"); e(f"s_lshl_b32 s31, s{S_WAVE}, 2"); e("s_add_u32 s30, s30, s31")
    e(f"s_lshl_b32 s31, s{S_CG}, 3")
    for tt in range(NT):
        m = ST+2*tt; r = m+1
        e(f"v_sub_f32 v208, 0, v{m}"); e(f"v_mov_b32 v210, v{r}")
        strs = []
        for half in range(2):
            s = []; a = s.append
            A = (tt*10 + half*5)*4; C = 160 + half*20
            for k in range(0, 20, 2): a(f"v_pk_fma_f32 v[{A+k}:{A+k+1}], v[{C+k}:{C+k+1}], v[208:209], v[{A+k}:{A+k+1}] op_sel_hi:[1,0,1]")
            for k in range(0, 20, 2): a(f"v_pk_mul_f32 v[{A+k}:{A+k+1}], v[{A+k}:{A+k+1}], v[210:211] op_sel_hi:[1,0]")
            for k in range(10): a(f"v_cvt_pk_bf16_f32 v{A+k}, v{A+2*k}, v{A+2*k+1}")
            a(f"v_mov_b32 v{A+10}, 0"); a(f"v_mov_b32 v{A+11}, 0")
            sx = 60+half
            a(f"s_add_u32 s{sx}, s31, {4*half}"); a(f"s_lshl_b32 s{sx}, s{sx}, 7"); a(f"s_add_u32 s{sx}, s{sx}, s30"); a(f"s_add_u32 s{sx}, s{sx}, {tt}")
            a(f"s_mul_i32 s{sx}, s{sx}, 768"); a(f"s_add_u32 s{sx}, s{sx}, {OFF_QF}")
            a(f"buffer_store_dwordx4 v[{A}:{A+3}], v204, s[{S_WS}:{S_WS+3}], s{sx} offen{OSC}")
            a(f"buffer_store_dwordx4 v[{A+4}:{A+7}], v204, s[{S_WS}:{S_WS+3}], s{sx} offen offset:256{OSC}")
            a(f"buffer_store_dwordx4 v[{A+8}:{A+11}], v204, s[{S_WS}:{S_WS+3}], s{sx} offen offset:512{OSC}")
            strs.append(s)
        zip2(e, strs[0], strs[1])
    if STAMPS: e("s_waitcnt vmcnt(0)")
    stamp(e, 3); stamp_flush(e, 1, 6, S_WS, S_WAVE)
    e("s_endpgm")
    e("KV_EPI:")
    e("s_barrier")
    e("KVD0:")
    for jp in range(5):
        for s in range(3):
            r = PHI + (jp*3+s)*4
            e(f"ds_read_b64_tr_b16 a[{r}:{r+1}], v245 offset:{s*320 + jp*8}")
            e(f"ds_read_b64_tr_b16 a[{r+2}:{r+3}], v245 offset:{s*320 + 160 + jp*8}")
    e(f"v_lshrrev_b32 v200, 4, v{VL}"); e(f"v_and_b32 v201, 15, v{VL}")
    e("v_lshlrev_b32 v202, 15, v200"); e("v_lshlrev_b32 v203, 5, v201"); e("v_add_u32 v202, v202, v203")
    e(f"s_lshl_b32 s30, s{S_WAVE}, 11"); e("v_add_u32 v244, s30, v202")
    for i in range(40): e(f"v_accvgpr_read_b32 v{160+i}, a{CS+i}")
    for i in range(40): e(f"v_accvgpr_read_b32 v{200+i}, a{CS+40+i}")
    for i in range(0, 40, 2): e(f"v_pk_add_f32 v[{160+i}:{161+i}], v[{160+i}:{161+i}], v[{200+i}:{201+i}]")
    def vtile(tt, R):
        s = []; a = s.append
        m = ST+2*tt; r = m+1; A = (tt*10+5)*4
        a(f"v_sub_f32 v{R}, 0, v{m}"); a(f"v_mov_b32 v{R+2}, v{r}")
        for k in range(0, 20, 2): a(f"v_pk_fma_f32 v[{A+k}:{A+k+1}], v[{180+k}:{181+k}], v[{R}:{R+1}], v[{A+k}:{A+k+1}] op_sel_hi:[1,0,1]")
        for k in range(0, 20, 2): a(f"v_pk_mul_f32 v[{A+k}:{A+k+1}], v[{A+k}:{A+k+1}], v[{R+2}:{R+3}] op_sel_hi:[1,0]")
        for k in range(10): a(f"v_cvt_pk_bf16_f32 v{A+k}, v{A+2*k}, v{A+2*k+1}")
        a(f"ds_write_b128 v244, v[{A}:{A+3}] offset:{3*8192 + tt*512}")
        a(f"ds_write_b128 v244, v[{A+4}:{A+7}] offset:{3*8192 + tt*512 + 16}")
        return s
    zip2(e, vtile(0, 200), vtile(1, 204)); zip2(e, vtile(2, 200), vtile(3, 204))
    ft0, ft1, ft2 = fperm()
    Pb = [200, 220]; EM = 180
    def stageA(tt):
        s = []; a = s.append
        m = ST+2*tt; A = tt*40; P = Pb[tt & 1]
        a(f"v_sub_f32 v240, 0, v{m}")
        for k in range(0, 20, 2): a(f"v_pk_fma_f32 v[{A+k}:{A+k+1}], v[{160+k}:{161+k}], v[240:241], v[{A+k}:{A+k+1}] op_sel_hi:[1,0,1]")
        for k in range(10): a(f"v_cvt_pk_bf16_f32 v{A+k}, v{A+2*k}, v{A+2*k+1}")
        a(f"v_mov_b32 v{A+10}, 0"); a(f"v_mov_b32 v{A+11}, 0")
        for sidx in range(3):
            for jp in range(5):
                c = "0" if sidx == 0 else f"v[{P+jp*4}:{P+jp*4+3}]"
                a(f"v_mfma_f32_16x16x32_bf16 v[{P+jp*4}:{P+jp*4+3}], a[{PHI+(jp*3+sidx)*4}:{PHI+(jp*3+sidx)*4+3}], v[{A+sidx*4}:{A+sidx*4+3}], {c}")
        return s
    def stageB(tt):
        s = []; a = s.append
        r = ST+2*tt+1; A = tt*40; AV = A+20; P = Pb[tt & 1]
        C, NC, MXC, MNC, MX, MN, SP, SM_ = AV, AV+2, AV+4, AV+6, AV+10, AV+11, AV+12, AV+14
        a(f"v_mul_f32 v{C}, {LOG2E!r}, v{r}"); a(f"v_sub_f32 v{NC}, 0, v{C}")
        a(f"v_max3_f32 v{MX}, v{P}, v{P+1}, v{P+2}"); a(f"v_min3_f32 v{MN}, v{P}, v{P+1}, v{P+2}")
        for k in range(3, 19, 2):
            a(f"v_max3_f32 v{MX}, v{MX}, v{P+k}, v{P+k+1}"); a(f"v_min3_f32 v{MN}, v{MN}, v{P+k}, v{P+k+1}")
        a(f"v_max_f32 v{MX}, v{MX}, v{P+19}"); a(f"v_min_f32 v{MN}, v{MN}, v{P+19}")
        a(f"v_mul_f32 v{MXC}, v{MX}, v{NC}"); a(f"v_mul_f32 v{MNC}, v{MN}, v{C}")
        for k in range(0, 20, 2): a(f"v_pk_fma_f32 v[{EM+k}:{EM+k+1}], v[{P+k}:{P+k+1}], v[{NC}:{NC+1}], v[{MNC}:{MNC+1}] op_sel_hi:[1,0,0]")
        for k in range(0, 20, 2): a(f"v_pk_fma_f32 v[{P+k}:{P+k+1}], v[{P+k}:{P+k+1}], v[{C}:{C+1}], v[{MXC}:{MXC+1}] op_sel_hi:[1,0,0]")
        for k in range(20): a(f"v_exp_f32 v{EM+k}, v{EM+k}")
        for k in range(20): a(f"v_exp_f32 v{P+k}, v{P+k}")
        a(f"v_pk_add_f32 v[{SM_}:{SM_+1}], v[{EM}:{EM+1}], v[{EM+2}:{EM+3}]"); a(f"v_pk_add_f32 v[{SP}:{SP+1}], v[{P}:{P+1}], v[{P+2}:{P+3}]")
        for k in range(4, 20, 2):
            a(f"v_pk_add_f32 v[{SM_}:{SM_+1}], v[{SM_}:{SM_+1}], v[{EM+k}:{EM+k+1}]"); a(f"v_pk_add_f32 v[{SP}:{SP+1}], v[{SP}:{SP+1}], v[{P+k}:{P+k+1}]")
        a(f"v_add_f32 v{SM_}, v{SM_}, v{SM_+1}"); a(f"v_add_f32 v{SP}, v{SP}, v{SP+1}")
        a(f"v_rcp_f32 v{SM_}, v{SM_}"); a(f"v_rcp_f32 v{SP}, v{SP}")
        for k in range(0, 20, 2):
            a(f"v_pk_mul_f32 v[{EM+k}:{EM+k+1}], v[{EM+k}:{EM+k+1}], v[{SM_}:{SM_+1}] op_sel_hi:[1,0]")
            a(f"v_pk_mul_f32 v[{P+k}:{P+k+1}], v[{P+k}:{P+k+1}], v[{SP}:{SP+1}] op_sel_hi:[1,0]")
        def reg(x): return (P if x[0] == 'p' else EM) + x[1]
        I = AV+12
        for k in range(8): a(f"v_cvt_pk_bf16_f32 v{A+k}, v{reg(ft0[2*k])}, v{reg(ft0[2*k+1])}")
        a(f"ds_write_b128 v244, v[{A}:{A+3}] offset:{tt*512}"); a(f"ds_write_b128 v244, v[{A+4}:{A+7}] offset:{tt*512+16}")
        for k in range(8): a(f"v_cvt_pk_bf16_f32 v{A+8+k}, v{reg(ft1[2*k])}, v{reg(ft1[2*k+1])}")
        a(f"ds_write_b128 v244, v[{A+8}:{A+11}] offset:{8192+tt*512}"); a(f"ds_write_b128 v244, v[{A+12}:{A+15}] offset:{8192+tt*512+16}")
        for q in range(4): a(f"v_cvt_pk_bf16_f32 v{I+2*q}, v{reg(ft2[q][0])}, v{reg(ft2[q][1])}")
        a(f"v_mov_b32 v{I+1}, v{AV+8}"); a(f"v_mov_b32 v{I+3}, v{AV+9}"); a(f"v_mov_b32 v{I+5}, 0x3f80"); a(f"v_mov_b32 v{I+7}, 0")
        a(f"ds_write_b128 v244, v[{I}:{I+3}] offset:{2*8192+tt*512}"); a(f"ds_write_b128 v244, v[{I+4}:{I+7}] offset:{2*8192+tt*512+16}")
        return s
    e("s_waitcnt lgkmcnt(0)")
    e("s_cbranch_execz KVD_RET") if DRY else None; e("KVD1:")
    for it in stageA(0): e(it)
    for tt in range(NT):
        if tt+1 < NT: zip_ratio(e, stageB(tt), stageA(tt+1))
        else:
            for it in stageB(tt): e(it)
        e("s_cbranch_execz KVD_RET") if DRY else None
        e(f"KVD{tt+2}x:")
    e("s_waitcnt lgkmcnt(0)")
    stamp(e, 4)
    e("s_barrier")
    stamp(e, 5)
    e("KVD6:")
    e(f"v_lshrrev_b32 v200, 4, v{VL}"); e(f"v_and_b32 v201, 15, v{VL}"); e("v_lshrrev_b32 v202, 2, v201"); e("v_and_b32 v203, 3, v201")
    e("v_lshlrev_b32 v200, 2, v200"); e("v_add_u32 v200, v200, v202"); e("v_lshlrev_b32 v200, 5, v200"); e("v_lshlrev_b32 v203, 3, v203"); e("v_add_u32 v200, v200, v203")
    e(f"s_lshl_b32 s30, s{S_WAVE}, 15"); e("v_add_u32 v200, s30, v200")
    KA = 0; FR = 32
    def kvreads(ks, st_):
        for sub in range(4):
            rr = FR + (st_*4+sub)*4
            e(f"ds_read_b64_tr_b16 v[{rr}:{rr+1}], v200 offset:{sub*8192 + ks*1024}")
            e(f"ds_read_b64_tr_b16 v[{rr+2}:{rr+3}], v200 offset:{sub*8192 + ks*1024 + 512}")
    NSET = 3
    def kvreads(ks):
        st_ = ks % NSET
        for sub in range(4):
            rr = FR + (st_*4+sub)*4
            e(f"ds_read_b64_tr_b16 v[{rr}:{rr+1}], v200 offset:{sub*8192 + ks*1024}")
            e(f"ds_read_b64_tr_b16 v[{rr+2}:{rr+3}], v200 offset:{sub*8192 + ks*1024 + 512}")
    kvreads(0)
    for i in range(24): e(f"v_mov_b32 v{KA+i}, 0")
    for ks in range(8):
        st_ = ks % NSET
        if ks < 7:
            kvreads(ks+1); e("s_waitcnt lgkmcnt(8)")
        else:
            e("s_waitcnt lgkmcnt(0)")
        for ft in range(3):
            for dt in range(2):
                a = KA + (ft*2+dt)*4
                Af = FR + (st_*4+ft)*4
                Bf = FR + (st_*4 + (3 if dt == 0 else 2))*4
                e(f"v_mfma_f32_16x16x32_bf16 v[{a}:{a+3}], v[{Af}:{Af+3}], v[{Bf}:{Bf+3}], v[{a}:{a+3}]")
    e("s_cbranch_execz KVD_RET") if DRY else None
    e(f"s_lshl_b32 s30, s{S_RB}, 5"); e(f"s_lshl_b32 s31, s{S_CG}, 2"); e("s_add_u32 s30, s30, s31"); e(f"s_add_u32 s30, s30, s{S_WAVE}")
    e("s_mul_i32 s30, s30, 5120"); e(f"s_add_u32 s30, s30, {OFF_KVP}")
    e(f"v_lshlrev_b32 v201, 5, v{VL}"); e(f"v_lshlrev_b32 v202, 3, v{VL}")
    for dt in range(2):
        a0 = KA + (0*2+dt)*4; a1 = KA + (1*2+dt)*4; a2 = KA + (2*2+dt)*4
        if dt == 1: e("s_add_u32 s30, s30, 2560")
        e(f"buffer_store_dwordx4 v[{a0}:{a0+3}], v201, s[{S_WS}:{S_WS+3}], s30 offen{OSC}")
        e(f"buffer_store_dwordx4 v[{a1}:{a1+3}], v201, s[{S_WS}:{S_WS+3}], s30 offen offset:16{OSC}")
        e(f"buffer_store_dwordx2 v[{a2}:{a2+1}], v202, s[{S_WS}:{S_WS+3}], s30 offen offset:2048{OSC}")
    if STAMPS: e("s_waitcnt vmcnt(0)")
    stamp(e, 3); stamp_flush(e, 1, 6, S_WS, S_WAVE)
    e("s_endpgm")

def gen_k1():
    e = Em()
    STAMP_BASE[0] = 90
    e("s_cmp_ge_u32 s2, 256"); e("s_cbranch_scc1 K1_end")
    e(f"s_load_dwordx16 s[64:79], s[0:1], 0"); e(f"s_load_dwordx4 s[92:95], s[0:1], {KA_DBG}")
    e("v_lshrrev_b32 v1, 6, v0"); e(f"v_and_b32 v{VL}, 63, v0"); e(f"v_readfirstlane_b32 s{S_WAVE}, v1")
    stamp(e, 0)
    e("s_and_b32 s30, s2, 7"); e("s_lshr_b32 s31, s2, 3")
    e("s_lshr_b32 s32, s30, 2"); e("s_and_b32 s33, s30, 3")
    e("s_waitcnt lgkmcnt(0)")
    srd(e, S_X, 64, 2048*1280); srd(e, S_WS, 94, WS_BYTES); srd(e, S_DBG, 92, 256)
    e("s_cmp_ge_u32 s31, 28"); e("s_cbranch_scc1 K1_q")
    e("s_cmp_ge_u32 s31, 20"); e("s_cbranch_scc1 K1_kv")
    e("s_mul_i32 s35, s32, 20"); e("s_add_u32 s34, s31, s35")
    e("s_cmp_ge_u32 s34, 39"); e("s_cbranch_scc1 K1_idle")
    udiv_const(e, S_RB, 34, 3)
    e(f"s_mul_i32 s35, s{S_RB}, 3"); e("s_sub_u32 s35, s34, s35"); e("s_mul_i32 s36, s33, 3"); e(f"s_add_u32 s{S_CG}, s35, s36")
    e(f"s_mul_i32 s{S_N}, s33, 39"); e(f"s_add_u32 s{S_N}, s{S_N}, s34")
    e("s_mov_b32 s78, s34"); e("s_mov_b32 s79, s33")
    e("s_branch FFN")
    e("K1_kv:")
    e("s_sub_u32 s31, s31, 20")
    e("s_lshl_b32 s34, s33, 1"); e("s_and_b32 s35, s31, 1"); e(f"s_add_u32 s{S_CG}, s34, s35")
    e("s_lshl_b32 s34, s32, 2"); e("s_lshr_b32 s35, s31, 1"); e(f"s_add_u32 s{S_RB}, s34, s35")
    e(f"s_mul_i32 s34, s{S_CG}, 80"); e(f"s_add_u32 s{S_COL0}, s34, 640"); e(f"s_add_u32 s{S_COL1}, s34, 1280"); e(f"s_mov_b32 s{S_ISKV}, 1")
    e("s_branch ATT")
    e("K1_q:")
    e(f"s_mov_b32 s{S_CG}, s33"); e("s_lshl_b32 s34, s32, 2"); e("s_sub_u32 s35, s31, 28"); e(f"s_add_u32 s{S_RB}, s34, s35")
    e(f"s_mul_i32 s{S_COL0}, s33, 160"); e(f"s_add_u32 s{S_COL1}, s{S_COL0}, 80"); e(f"s_mov_b32 s{S_ISKV}, 0")
    e("s_branch ATT")
    e("K1_idle:")
    wf_idle(e)
    e("s_endpgm")
    gen_ffn(e)
    gen_att(e)
    e("K1_end:")
    return kernel("k1_kernel", e.text(), vgpr=256, accum=256, agpr=256, sgpr=102)
```

```python
OFF_STATS = 0
OFF_CS = 0x4000
OFF_WF = 0x20000
OFF_ACT = 0x300000
OFF_QF = 0xC00000
OFF_KVP = 0xF80000
OFF_FLAG = 0x1100000
WS_BYTES = 268435456
KA_X, KA_WQKV, KA_WPHI, KA_WO, KA_BX, KA_WG, KA_WU, KA_WD, KA_OUT, KA_DBG, KA_WS = [8*i for i in range(11)]
LOG2E = 1.4426950408889634

def srd(e, sreg, ptr_lo, nbytes):
    e(f"s_mov_b32 s{sreg}, s{ptr_lo} ; srd")
    e(f"s_and_b32 s{sreg+1}, s{ptr_lo+1}, 0xffff ; srd")
    e(f"s_mov_b32 s{sreg+2}, {nbytes} ; srd")
    e(f"s_mov_b32 s{sreg+3}, 0x20000 ; srd")

def audit_srd(text, regs):
    import re
    for l in text.split("\n"):
        if "; srd" in l: continue
        m = re.match(r"\s*(s_\w+|v_readfirstlane_b32|v_readlane_b32|v_cmp\w*)\s+s\[?(\d+)(?::(\d+))?", l)
        if m and not m.group(1).startswith(("s_cmp","s_cbranch","s_waitcnt","s_nop","s_barrier","s_branch","s_sleep","s_setprio","s_bitcmp")):
            a = int(m.group(2)); b = int(m.group(3)) if m.group(3) else a
            for r in range(a, b+1):
                assert r not in regs, "SRD register overwritten: " + l

def udiv_const(e, dst, src, d):
    magic = (1 << 32) // d + 1
    e(f"s_mul_hi_u32 s{dst}, s{src}, {magic}")

import os
STAMPS = int(os.environ.get("STAMPS", "0"))
OFF_TS = 0x2000000
STAMP_BASE = [64]
STAMP_V = [None]
def stamp(e, idx, force=False):
    if not STAMPS: return
    if STAMPS == 2 and not force: return
    e("s_memrealtime s[100:101]")
    e("s_waitcnt lgkmcnt(0)")
    if STAMP_V[0] is not None:
        e(f"v_writelane_b32 v{STAMP_V[0]}, s100, {idx}")
    else:
        e(f"s_mov_b32 s{STAMP_BASE[0]+idx}, s100")
def stamp_val(e, idx, sreg):
    if not STAMPS: return
    e(f"v_writelane_b32 v{STAMP_V[0]}, s{sreg}, {idx}")
def stamp_flush_v(e, ws_srd, wave_s, vtmp):
    if not STAMPS: return
    lab = e.label("TSF")
    e(f"s_cmp_eq_u32 s{wave_s}, 0"); e(f"s_cbranch_scc0 {lab}")
    e(f"s_lshl_b32 s100, s2, 6"); e(f"s_add_u32 s100, s100, {OFF_TS}")
    e(f"v_lshlrev_b32 v{vtmp}, 2, v255")
    e("s_mov_b64 exec, 0xffff")
    e(f"buffer_store_dword v{STAMP_V[0]}, v{vtmp}, s[{ws_srd}:{ws_srd+3}], s100 offen")
    e("s_mov_b64 exec, -1")
    e(f"{lab}:")
def stamp_flush_part(e, kern, idxs, ws_srd, wave_s, wave, vtmp):
    if not STAMPS or STAMP_V[0] is not None: return
    lab = e.label("TSF")
    e(f"s_cmp_eq_u32 s{wave_s}, {wave}"); e(f"s_cbranch_scc0 {lab}")
    e(f"s_lshl_b32 s100, s2, 6"); e(f"s_add_u32 s100, s100, {OFF_TS + kern*256*64}")
    e("s_mov_b64 exec, 1")
    e(f"v_mov_b32 v{vtmp+1}, 0")
    for i in idxs:
        e(f"v_mov_b32 v{vtmp}, s{STAMP_BASE[0]+i}")
        e(f"buffer_store_dword v{vtmp}, v{vtmp+1}, s[{ws_srd}:{ws_srd+3}], s100 offen offset:{4*i}")
    e("s_mov_b64 exec, -1")
    e(f"{lab}:")
def stamp_flush(e, kern, n, ws_srd, wave_s, vtmp=250):
    stamp_flush_part(e, kern, list(range(n)), ws_srd, wave_s, 0, vtmp)

def ticket(e, dbg, wave_s, lds_addr, name, vt=(2,3,4), sb=30):
    a, b, c = vt
    e(f"s_getreg_b32 s{sb+0}, hwreg(HW_REG_XCC_ID, 0, 3)")
    e(f"s_cmp_eq_u32 s{wave_s}, 0"); e(f"s_cbranch_scc0 {name}_w")
    e(f"s_lshl_b32 s{sb+1}, s{sb+0}, 5"); e(f"s_add_u32 s{sb+1}, s{sb+1}, 16"); e(f"v_mov_b32 v{a}, s{sb+1}"); e(f"v_mov_b32 v{b}, 1")
    e("s_mov_b64 exec, 1")
    e(f"buffer_atomic_add v{b}, v{a}, s[{dbg}:{dbg+3}], 0 offen sc0")
    e("s_waitcnt vmcnt(0)")
    e(f"v_readfirstlane_b32 s{sb+2}, v{b}")
    e("s_mov_b64 exec, -1")
    e(f"s_cmp_lt_u32 s{sb+2}, 32"); e(f"s_cbranch_scc0 {name}_ovf")
    e(f"s_lshl_b32 s{sb+2}, s{sb+2}, 3"); e(f"s_add_u32 s{sb+2}, s{sb+2}, s{sb+0}")
    e(f"{name}_pub:")
    e(f"v_mov_b32 v{a}, {lds_addr}"); e(f"v_mov_b32 v{b}, s{sb+2}")
    e("s_mov_b64 exec, 1")
    e(f"ds_write_b32 v{a}, v{b}")
    e("s_mov_b64 exec, -1")
    e("s_waitcnt lgkmcnt(0)")
    e(f"{name}_w:")
    e("s_barrier")
    e(f"v_mov_b32 v{a}, {lds_addr}")
    e(f"ds_read_b32 v{b}, v{a}")
    e("s_waitcnt lgkmcnt(0)")
    e(f"v_readfirstlane_b32 s2, v{b}")
    e(f"s_branch {name}_done")
    e(f"{name}_ovf:")
    e(f"v_mov_b32 v{a}, 8"); e(f"v_mov_b32 v{b}, 1")
    e("s_mov_b64 exec, 1")
    e(f"buffer_atomic_add v{b}, v{a}, s[{dbg}:{dbg+3}], 0 offen sc0")
    e("s_waitcnt vmcnt(0)")
    e(f"v_readfirstlane_b32 s{sb+3}, v{b}")
    e("s_mov_b64 exec, -1")
    e(f"s_mov_b32 s{sb+7}, 0")
    e(f"{name}_o1:")
    e(f"v_and_b32 v{a}, 7, v0"); e(f"v_lshlrev_b32 v{a}, 5, v{a}"); e(f"v_add_u32 v{a}, 16, v{a}")
    e(f"buffer_load_dword v{c}, v{a}, s[{dbg}:{dbg+3}], 0 offen sc1")
    e("s_waitcnt vmcnt(0)")
    e(f"s_mov_b32 s{sb+4}, 0")
    for x in range(8):
        e(f"v_readlane_b32 s{sb+5}, v{c}, {x}"); e(f"s_add_u32 s{sb+4}, s{sb+4}, s{sb+5}")
    e(f"s_cmp_ge_u32 s{sb+4}, 256"); e(f"s_cbranch_scc1 {name}_o2")
    e(f"s_add_u32 s{sb+7}, s{sb+7}, 1"); e(f"s_cmp_ge_u32 s{sb+7}, 0x20000"); e(f"s_cbranch_scc1 {name}_o2")
    e("s_sleep 4"); e(f"s_branch {name}_o1")
    e(f"{name}_o2:")
    e(f"s_mov_b32 s{sb+2}, 0")
    for x in range(8):
        lab = e.label(f"{name}_x")
        e(f"v_readlane_b32 s{sb+5}, v{c}, {x}")
        e(f"s_sub_i32 s{sb+6}, 32, s{sb+5}"); e(f"s_cmp_gt_i32 s{sb+6}, 0"); e(f"s_cbranch_scc0 {lab}")
        e(f"s_cmp_lt_u32 s{sb+3}, s{sb+6}"); e(f"s_cbranch_scc0 {lab}m")
        e(f"s_add_u32 s{sb+2}, s{sb+5}, s{sb+3}"); e(f"s_lshl_b32 s{sb+2}, s{sb+2}, 3"); e(f"s_add_u32 s{sb+2}, s{sb+2}, {x}"); e(f"s_branch {name}_pub")
        e(f"{lab}m:")
        e(f"s_sub_u32 s{sb+3}, s{sb+3}, s{sb+6}")
        e(f"{lab}:")
    e(f"s_branch {name}_pub")
    e(f"{name}_done:")
```

```python
from asmgen import *
from gen_common import *
import os
OSC = " sc1" if int(os.environ.get("K1_SC1", 1)) else ""
KSC = " sc1" if int(os.environ.get("K1_KSC", 0)) else ""
WSC = " sc1" if int(os.environ.get("K1_WSC", 1)) else ""
HPL = int(os.environ.get("K1_HPL", 10))

DRY = int(os.environ.get('K1_DRY', 0))
KVOV = int(os.environ.get('K1_KVOV', 1))
SLOT = 53248
NST = 10
S_X = 8; S_W = 12; S_W2 = 16; S_WS = 20
S_WAVE = 24; S_RB = 25; S_CG = 26; S_T0 = 27; S_COL0 = 28; S_COL1 = 29
S_LX = 34; S_LW = 35; S_LW2 = 36; S_N = 37
S_DSLOT = 40; S_XO = 41; S_WO = 42; S_TMP = 43; S_STG = 44; S_RSLOT = 45; S_T46 = 46; S_DELTA = 47; S_M0X = 48; S_M0W = 49; S_M0W2 = 50
S_ISKV = 51; S_EXTRA = 52; S_DBG = 56
S_KROT = 38; S_KST = 39; S_HOOK = 33
S_PTR = 4
VL = 255
POLL_STAGE = 5; FLAG_STAGE = 1
NFLAG = 78

def zip_ratio(e, main, side):
    n, m = len(main), len(side)
    j = 0
    for i, it in enumerate(main):
        it() if callable(it) else e(it)
        while j < m and (j+1)*n <= (i+1)*m + 0:
            side[j]() if callable(side[j]) else e(side[j]); j += 1
    while j < m:
        side[j]() if callable(side[j]) else e(side[j]); j += 1

def zip2(e, a, b):
    n = max(len(a), len(b))
    for i in range(n):
        for s in (a, b):
            if i < len(s): s[i]() if callable(s[i]) else e(s[i])

def place(sched, items, f0, f1):
    M=len(sched); n=len(items)
    for k,it in enumerate(items):
        pos = int((f0 + (f1-f0)*(k+0.5)/n)*M); pos=min(max(pos,0),M-1)
        sched[pos].append(it)
def place_dma(sched, groups, f0, f1):
    M=len(sched); n=len(groups)
    for k,(m0w, ld) in enumerate(groups):
        pos = int((f0 + (f1-f0)*(k+0.5)/n)*M); pos=min(max(pos,0),M-2)
        sched[pos].append(m0w); sched[pos+1].insert(0, ld)

def adv_dma_list(wstride, two_w):
    l = [f"s_add_u32 s{S_KST}, s{S_KST}, 1", f"s_cmp_ge_u32 s{S_KST}, 10\ns_cselect_b32 s{S_KST}, 0, s{S_KST}",
         f"s_lshl_b32 s{S_XO}, s{S_KST}, 7", f"s_mul_i32 s{S_WO}, s{S_KST}, {64*wstride}", f"s_add_u32 s{S_DSLOT}, s{S_DSLOT}, {SLOT}",
         f"s_cmp_ge_u32 s{S_DSLOT}, {3*SLOT}\ns_cselect_b32 s{S_TMP}, {3*SLOT}, 0", f"s_sub_u32 s{S_DSLOT}, s{S_DSLOT}, s{S_TMP}",
         f"s_add_u32 s{S_M0X}, s{S_DSLOT}, s{S_LX}", f"s_add_u32 s{S_M0W}, s{S_DSLOT}, s{S_LW}"]
    if two_w: l.append(f"s_add_u32 s{S_M0W2}, s{S_DSLOT}, s{S_LW2}")
    return l

def dma_init(e, two_w, wstride):
    e(f"s_mov_b32 s{S_DSLOT}, 0"); e(f"s_mov_b32 s{S_KST}, s{S_KROT}"); e(f"s_lshl_b32 s{S_XO}, s{S_KST}, 7"); e(f"s_mul_i32 s{S_WO}, s{S_KST}, {64*wstride}")
    e(f"s_mov_b32 s{S_M0X}, s{S_LX}"); e(f"s_mov_b32 s{S_M0W}, s{S_LW}")
    if two_w: e(f"s_mov_b32 s{S_M0W2}, s{S_LW2}")
def dma_init_x(e, wstride):
    e(f"s_mov_b32 s{S_DSLOT}, 0"); e(f"s_mov_b32 s{S_KST}, s{S_KROT}"); e(f"s_lshl_b32 s{S_XO}, s{S_KST}, 7"); e(f"s_mul_i32 s{S_WO}, s{S_KST}, {64*wstride}")
    e(f"s_mov_b32 s{S_M0X}, s{S_LX}")
def dma_full(e, dg, wstride, two_w):
    for (a,l) in dg: e(a); e(l)
    for s in adv_dma_list(wstride, two_w): e(s)

def emit_mainloop(e, name, NT, NF, XF, WF, dg, reads, bump, wstride, two_w, late_setup, late_groups, is_ffn, first_extra, VP, RSPAN=0.6):
    NTOT = len(dg); half = NTOT//2; M = NT*NF
    def mfmas(setn):
        out=[]
        for tt in range(NT):
            for j in range(NF):
                a = (tt*NF+j)*4
                out.append(f"v_mfma_f32_16x16x32_bf16 v[{a}:{a+3}], a[{WF+(setn*NF+j)*4}:{WF+(setn*NF+j)*4+3}], a[{XF+(setn*NT+tt)*4}:{XF+(setn*NT+tt)*4+3}], v[{a}:{a+3}]")
        return out
    def emit(mf, sched):
        for i,m in enumerate(mf):
            e(m)
            for s in sched[i]: e(s)
    upd = [f"s_add_u32 s{S_T46}, s{S_RSLOT}, {SLOT}", f"s_cmp_ge_u32 s{S_T46}, {3*SLOT}\ns_cselect_b32 s{S_DELTA}, {3*SLOT}, 0", f"s_sub_u32 s{S_T46}, s{S_T46}, s{S_DELTA}",
           f"s_sub_u32 s{S_DELTA}, s{S_T46}, s{S_RSLOT}", f"s_mov_b32 s{S_RSLOT}, s{S_T46}"]
    def k0(dmas, adv, groups=None, last=None):
        sched=[[] for _ in range(M)]
        place(sched, reads(1,1), 0.0, RSPAN)
        if dmas: place_dma(sched, dmas, 0.05, 0.85)
        if groups: place_groups(sched, groups)
        place(sched, upd, 0.0, 0.3)
        place(sched, [f"v_add_u32 v{r}, s{S_DELTA}, v{r}" for r in bump], RSPAN+0.03, 0.98)
        if adv: place(sched, adv_dma_list(wstride, two_w), 0.87, 1.0)
        if last: sched[M-1].append(last)
        emit(mfmas(0), sched)
    def k1(dmas, groups=None, tail=None, do_reads=True):
        sched=[[] for _ in range(M)]
        if do_reads: place(sched, reads(0,0), 0.0, RSPAN)
        if dmas: place_dma(sched, dmas, 0.05, 0.85)
        if groups: place_groups(sched, groups)
        if tail:
            place(sched, tail[:-1], 0.93, 0.95); sched[M-1].append(tail[-1])
        emit(mfmas(1), sched)
    def place_groups(sched, groups):
        n = len(groups)
        for k,(setup, ld) in enumerate(groups):
            pos = int((0.05 + 0.85*(k+0.5)/n)*M); pos = min(max(pos,1), M-1)
            for t in setup: sched[pos-1].append(t)
            sched[pos].append(ld)
    def wait_extra(tag, base):
        e(f"s_cbranch_scc0 {name}_wx{tag}")
        e(f"s_waitcnt vmcnt({base}) lgkmcnt(0)")
        e(f"{name}_w0{tag}:")
    def wait_extra_ool(tag, base, vals):
        e(f"{name}_wx{tag}:")
        for v in vals:
            lab = e.label(f"{name}_x")
            e(f"s_cmp_eq_u32 s{S_EXTRA}, {v}"); e(f"s_cbranch_scc0 {lab}")
            e(f"s_waitcnt vmcnt({min(63, base+v)}) lgkmcnt(0)"); e(f"s_mov_b32 s{S_EXTRA}, 0"); e(f"s_branch {name}_w0{tag}")
            e(f"{lab}:")
        e(f"s_waitcnt vmcnt({base}) lgkmcnt(0)"); e(f"s_mov_b32 s{S_EXTRA}, 0"); e(f"s_branch {name}_w0{tag}")
    stamp(e, 1)
    if STAMPS == 1:
        e("s_memtime s[100:101]"); e("s_waitcnt lgkmcnt(0)"); e("s_mov_b32 s96, s100")
    e(f"v_lshlrev_b32 v{VP+1}, 7, v{VL}"); e(f"v_mov_b32 v{VP}, 0")
    for s in reads(0,0): e(s)
    first_hook = FLAG_STAGE if is_ffn else POLL_STAGE
    e(f"s_cmp_eq_u32 s{S_WAVE}, 0"); e(f"s_cselect_b32 s{S_HOOK}, {first_hook}, 99")
    e("s_waitcnt lgkmcnt(0)")
    e(f"s_mov_b32 s{S_STG}, 0"); e(f"s_mov_b32 s{S_RSLOT}, 0"); e(f"s_mov_b32 s{S_EXTRA}, {first_extra}")
    e(f"{name}_loop:")
    k0(dg[half:], True, last=f"s_cmp_eq_u32 s{S_EXTRA}, 0")
    wait_extra("a", NTOT)
    e("s_barrier")
    e(f"s_cmp_eq_u32 s{S_STG}, s{S_HOOK}"); e(f"s_cbranch_scc1 {name}_hook")
    e(f"{name}_go:")
    if STAMPS == 3:
        e("s_memrealtime s[100:101]"); e("s_waitcnt lgkmcnt(0)"); e(f"s_mov_b32 m0, s{S_STG}"); e("s_nop 0"); e("s_movreld_b32 s68, s100")
    k1(dg[:half], tail=[f"s_add_u32 s{S_STG}, s{S_STG}, 1", f"s_cmp_lt_u32 s{S_STG}, 7"])
    e("s_waitcnt lgkmcnt(0)")
    e(f"s_cbranch_scc1 {name}_loop")
    ng = len(late_groups); n1 = min(half, ng); n2 = min(NTOT-half, ng-n1); n3 = ng-n1-n2
    g1 = late_groups[:n1]; g2 = late_groups[n1:n1+n2]; g3 = late_groups[n1+n2:]
    k0(dg[half:], False, last=f"s_cmp_eq_u32 s{S_EXTRA}, 0")
    wait_extra("b", 0 + (NTOT - half) + half)
    e(f"s_cmp_eq_u32 s{S_WAVE}, 0"); e(f"s_cbranch_scc1 {name}_chk")
    e(f"{name}_bar7:")
    e("s_barrier")
    if STAMPS == 3:
        e("s_memrealtime s[100:101]"); e("s_waitcnt lgkmcnt(0)"); e("s_mov_b32 s75, s100")
    late_setup()
    k1(None, groups=g1)
    e("s_waitcnt lgkmcnt(0)")
    k0(None, False, groups=g2)
    e(f"s_waitcnt vmcnt({n1+n2}) lgkmcnt(0)")
    e("s_barrier")
    if STAMPS == 3:
        e("s_memrealtime s[100:101]"); e("s_waitcnt lgkmcnt(0)"); e("s_mov_b32 s76, s100")
    k1(None, groups=g3 if g3 else None)
    e("s_waitcnt lgkmcnt(0)")
    k0(None, False)
    e("s_waitcnt lgkmcnt(0)")
    if STAMPS == 3:
        e("s_memrealtime s[100:101]"); e("s_waitcnt lgkmcnt(0)"); e("s_mov_b32 s77, s100")
    k1(None, do_reads=False)
    e(f"s_branch {name}_done")
    wait_extra_ool("a", NTOT, sorted(set([1] + ([first_extra] if first_extra else []))))
    wait_extra_ool("b", NTOT, [1])
    e(f"{name}_chk:")
    e(f"s_mov_b32 s53, 0")
    e(f"{name}_chk2:")
    e("s_mov_b64 exec, 3")
    e(f"v_cmp_ne_u32 vcc, {NFLAG}, v{VP}")
    e("s_mov_b64 exec, -1")
    e("s_nop 1")
    e(f"s_cbranch_vccz {name}_bar7")
    e("s_add_u32 s53, s53, 1"); e("s_cmp_ge_u32 s53, 0x40000"); e(f"s_cbranch_scc1 {name}_bar7")
    e("s_sleep 8")
    e("s_mov_b64 exec, 3")
    e(f"buffer_load_dword v{VP}, v{VP+1}, s[{S_DBG}:{S_DBG+3}], 0 offen sc1")
    e("s_mov_b64 exec, -1")
    e("s_waitcnt vmcnt(0)")
    e(f"s_branch {name}_chk2")
    e(f"{name}_hook:")
    if is_ffn:
        e(f"s_cmp_eq_u32 s{S_STG}, {FLAG_STAGE}"); e(f"s_cbranch_scc0 {name}_poll")
        e(f"s_and_b32 s53, s{S_N}, 1"); e("s_lshl_b32 s53, s53, 7"); e(f"v_mov_b32 v{VP+1}, s53"); e(f"v_mov_b32 v{VP}, 1")
        e("s_mov_b64 exec, 1")
        e(f"buffer_atomic_add v{VP}, v{VP+1}, s[{S_DBG}:{S_DBG+3}], 0 offen")
        e("s_mov_b64 exec, -1")
        e(f"s_mov_b32 s{S_HOOK}, {POLL_STAGE}")
        e(f"s_mov_b32 s{S_EXTRA}, 1"); e(f"s_branch {name}_go")
        e(f"{name}_poll:")
    e(f"v_lshlrev_b32 v{VP+1}, 7, v{VL}")
    e("s_mov_b64 exec, 3")
    e(f"buffer_load_dword v{VP}, v{VP+1}, s[{S_DBG}:{S_DBG+3}], 0 offen sc1")
    e("s_mov_b64 exec, -1")
    e(f"s_mov_b32 s{S_HOOK}, 99")
    e(f"s_mov_b32 s{S_EXTRA}, 1"); e(f"s_branch {name}_go")
    e(f"{name}_done:")
    e("s_nop 7")
    stamp(e, 2)
    if STAMPS == 1:
        e("s_memtime s[100:101]"); e("s_waitcnt lgkmcnt(0)"); e("s_sub_u32 s96, s100, s96")
        stamp_flush_part(e, 1, [6], S_WS, S_WAVE, 0, 250)
    flush3(e)

def x_dma_addr(e, DXA, NXD):
    e(f"v_lshrrev_b32 v200, 3, v{VL}"); e(f"v_lshrrev_b32 v201, 4, v{VL}"); e(f"v_and_b32 v202, 7, v{VL}")
    e(f"s_mul_i32 s30, s{S_WAVE}, {NXD*8}"); e(f"s_add_u32 s30, s30, s{S_T0}")
    e(f"s_mul_i32 s31, s{S_WAVE}, {NXD*4}")
    e("v_add_u32 v204, s30, v200"); e("v_mul_u32_u24 v204, 1280, v204")
    for par in range(2):
        e(f"v_add_u32 v203, {4*par}, v201"); e("v_add_u32 v203, s31, v203"); e("v_and_b32 v203, 7, v203"); e("v_xor_b32 v203, v203, v202"); e("v_lshlrev_b32 v203, 4, v203")
        e(f"v_add_u32 v{205+par}, v203, v204")
    for i in range(NXD):
        e(f"v_add_u32 v{DXA+i}, {8*i*1280}, v{205+(i&1)}")
    e(f"s_mul_i32 s{S_LX}, s{S_WAVE}, {NXD*1024}")

def x_read_addr(e, XRD, tok_off_s):
    e(f"v_and_b32 v200, 15, v{VL}"); e(f"v_lshrrev_b32 v201, 4, v{VL}")
    e("v_lshrrev_b32 v202, 1, v200"); e("v_xor_b32 v202, v202, v201"); e("v_and_b32 v202, 7, v202"); e("v_lshlrev_b32 v202, 4, v202")
    e("v_lshlrev_b32 v203, 7, v200"); e("v_add_u32 v203, v203, v202"); e(f"v_add_u32 v{XRD}, s{tok_off_s}, v203"); e(f"v_xor_b32 v{XRD+1}, 64, v{XRD}")

def x_reads(XF, NT, XRD, ks, setn):
    return [f"ds_read_b128 a[{XF+(setn*NT+tt)*4}:{XF+(setn*NT+tt)*4+3}], v{XRD+ks} offset:{tt*2048}" for tt in range(NT)]

def load_stats(e, NT, dst_v, tok0_s, tmp):
    e(f"v_and_b32 v{tmp}, 15, v{VL}"); e(f"v_add_u32 v{tmp}, s{tok0_s}, v{tmp}"); e(f"v_lshlrev_b32 v{tmp}, 3, v{tmp}")
    for tt in range(NT):
        e(f"buffer_load_dwordx2 v[{dst_v+2*tt}:{dst_v+2*tt+1}], v{tmp}, s[{S_WS}:{S_WS+3}], 0 offen offset:{OFF_STATS + tt*128} sc1")

ROT = int(os.environ.get("K1_ROT", 0))
def krot(e):
    if not ROT:
        e(f"s_mov_b32 s{S_KROT}, 0"); return
    e(f"s_mul_i32 s53, s{S_CG}, 3"); e(f"s_add_u32 s53, s53, s{S_RB}"); e(f"s_add_u32 s53, s53, s{S_RB}"); e(f"s_add_u32 s53, s53, s{S_RB}")
    e(f"s_mul_hi_u32 s54, s53, {(1<<32)//10+1}"); e("s_mul_i32 s54, s54, 10"); e(f"s_sub_u32 s{S_KROT}, s53, s54")

def code_prefetch(e):
    e("s_getpc_b64 s[54:55]")
    l = e.label("PC")
    e(f"{l}:")
    e(f"s_sub_u32 s54, s54, {l}-k1_kernel"); e(f"s_subb_u32 s55, s55, 0")
    e("s_lshr_b32 s53, s2, 3"); e("s_lshl_b32 s53, s53, 11"); e("s_min_u32 s53, s53, CODE_END-k1_kernel-2048")
    e(f"s_lshl_b32 s60, s{S_WAVE}, 9"); e("s_add_u32 s53, s53, s60")
    e(f"v_lshlrev_b32 v200, 4, v{VL}"); e("v_add_u32 v200, s53, v200")
    e("s_mov_b32 exec_hi, 0")
    e("global_load_dwordx4 a[252:255], v200, s[54:55]")
    e("s_mov_b64 exec, -1")

def flush3(e):
    if STAMPS != 3: return
    lab = e.label("F3")
    e(f"s_cmp_eq_u32 s{S_WAVE}, 0"); e(f"s_cbranch_scc0 {lab}")
    e(f"s_lshl_b32 s100, s2, 6"); e(f"s_add_u32 s100, s100, {OFF_TS + 256*64}")
    e("s_mov_b64 exec, 1"); e("v_mov_b32 v251, 0")
    for i in range(10):
        e(f"v_mov_b32 v250, s{68+i}"); e(f"buffer_store_dword v250, v251, s[{S_WS}:{S_WS+3}], s100 offen offset:{24+4*i}")
    e("s_mov_b64 exec, -1"); e(f"{lab}:")

TLBW = int(os.environ.get("K1_TLB", 0))
def tlb_warm(e):
    if not TLBW: return
    n = (18 << 20) // TLBW
    e(f"s_lshl_b32 s53, s2, 2"); e(f"s_add_u32 s53, s53, s{S_WAVE}")
    e(f"v_lshlrev_b32 v200, 10, v{VL}"); e("v_add_u32 v200, s53, v200")
    e(f"v_cmp_gt_u32 vcc, {n}, v200"); e(f"s_mov_b32 s54, {TLBW}"); e("v_mul_lo_u32 v200, v200, s54")
    e("s_mov_b64 exec, vcc")
    l = e.label("TW"); e(f"s_cbranch_execz {l}")
    e(f"buffer_load_dword a252, v200, s[{S_WS}:{S_WS+3}], 0 offen")
    e(f"{l}:")
    e("s_mov_b64 exec, -1")

def sentinel(e):
    e("v_mov_b32 v236, -1"); e("v_mov_b32 v237, -1"); e("v_mov_b32 v238, -1"); e("v_mov_b32 v239, -1"); e(f"v_lshlrev_b32 v240, 4, v{VL}")
    e("s_and_b32 s30, s2, 7"); e("s_lshl_b32 s30, s30, 2"); e("s_lshr_b32 s31, s2, 3"); e("s_sub_u32 s31, s31, 28"); e("s_add_u32 s30, s30, s31")
    e("s_mul_i32 s30, s30, 68"); e("s_add_u32 s30, s30, 48"); e("s_lshl_b32 s30, s30, 12"); e(f"s_mul_i32 s31, s{S_WAVE}, 20480"); e("s_add_u32 s30, s30, s31"); e(f"s_add_u32 s30, s30, {OFF_ACT}")
    for k in range(20):
        e(f"buffer_store_dwordx4 v[236:239], v240, s[{S_WS}:{S_WS+3}], s30 offen sc1")
        if k < 19: e("s_add_u32 s30, s30, 1024")

def wf_idle(e):
    e(f"s_load_dwordx2 s[92:93], s[0:1], {KA_WD}"); e(f"s_load_dwordx2 s[94:95], s[0:1], {KA_WO}")
    e(f"v_lshrrev_b32 v196, 3, v{VL}"); e("v_mul_u32_u24 v196, 1280, v196"); e(f"v_and_b32 v197, 7, v{VL}"); e("v_lshlrev_b32 v197, 4, v197"); e("v_add_u32 v196, v196, v197")
    e(f"v_lshrrev_b32 v3, 4, v{VL}"); e(f"v_and_b32 v4, 15, v{VL}"); e("v_lshrrev_b32 v5, 2, v4"); e("v_and_b32 v6, 3, v4")
    e("v_lshlrev_b32 v3, 2, v3"); e("v_add_u32 v3, v3, v5"); e("v_lshlrev_b32 v3, 7, v3"); e("v_lshlrev_b32 v6, 3, v6"); e("v_add_u32 v3, v3, v6")
    e(f"s_lshl_b32 s70, s{S_WAVE}, 12"); e("v_add_u32 v3, s70, v3"); e(f"v_lshlrev_b32 v7, 4, v{VL}")
    e("s_and_b32 s68, s2, 7"); e("s_sub_u32 s68, s68, 4"); e("s_lshl_b32 s68, s68, 2"); e(f"s_add_u32 s68, s68, s{S_WAVE}"); e("s_add_u32 s68, s68, 624"); e("s_mov_b32 s69, 0")
    e("s_waitcnt lgkmcnt(0)")
    l1 = e.label("WFI"); e(f"{l1}:")
    udiv_const(e, 71, 68, 10)
    e("s_mul_i32 s72, s71, 10"); e("s_sub_u32 s72, s68, s72")
    e("s_mov_b32 s64, s94"); e("s_and_b32 s65, s95, 0xffff"); e(f"s_mov_b32 s66, {640*1280}"); e("s_mov_b32 s67, 0x20000")
    e("s_cmp_ge_u32 s68, 680"); e("s_cselect_b32 s66, 0, s66")
    e("s_sub_u32 s73, s71, 48"); e(f"s_mul_i32 s30, s73, {32*1280}"); e("s_lshl_b32 s31, s72, 7"); e("s_add_u32 s30, s30, s31")
    for k in range(4):
        e(f"s_add_u32 m0, s70, {k*1024}")
        e("buffer_load_dwordx4 v196, s[64:67], s30 offen lds")
        if k < 3: e(f"s_add_u32 s30, s30, {8*1280}")
    e("s_waitcnt vmcnt(0)")
    for ft in range(4):
        e(f"ds_read_b64_tr_b16 v[{16+4*ft}:{17+4*ft}], v3 offset:{ft*32}")
        e(f"ds_read_b64_tr_b16 v[{18+4*ft}:{19+4*ft}], v3 offset:{ft*32+16*128}")
    e("s_waitcnt lgkmcnt(0)")
    for ft in range(4):
        e(f"s_lshl_b32 s30, s72, 2"); e(f"s_add_u32 s30, s30, {ft}")
        udiv_const(e, 31, 30, 5)
        e("s_mul_i32 s32, s31, 5"); e("s_sub_u32 s32, s30, s32")
        e("s_mul_i32 s31, s31, 68"); e("s_add_u32 s31, s31, s71"); e("s_mul_i32 s31, s31, 5"); e("s_add_u32 s31, s31, s32"); e("s_lshl_b32 s31, s31, 10"); e(f"s_add_u32 s31, s31, {OFF_WF}")
        e("s_cmp_ge_u32 s68, 680"); e("s_cselect_b32 s31, 0x7ffffff0, s31")
        e(f"buffer_store_dwordx4 v[{16+4*ft}:{19+4*ft}], v7, s[{S_WS}:{S_WS+3}], s31 offen")
    e("s_add_u32 s68, s68, 16"); e("s_add_u32 s69, s69, 1"); e("s_cmp_lt_u32 s69, 4"); e(f"s_cbranch_scc1 {l1}")

def gen_ffn(e):
    NT, NF = 10, 4
    XF = 0; WF = XF + 2*NT*4
    CS = 112
    XRD = 160; WRD = 162; DXA = 164; DWA = 169
    ST = 174
    VP = 194
    SOFF = 80
    e("FFN:")
    krot(e)
    e(f"s_mul_i32 s{S_T0}, s{S_RB}, 160")
    e("s_mov_b32 s4, s74"); e("s_mov_b32 s5, s75"); e("s_mov_b32 s6, s76"); e("s_mov_b32 s7, s77"); e("s_mov_b32 s60, s66"); e("s_mov_b32 s61, s67")
    x_dma_addr(e, DXA, 5)
    dma_init_x(e, 3072)
    for i in range(5): e(f"s_add_u32 m0, s{S_M0X}, {i*1024}"); e(f"buffer_load_dwordx4 v{DXA+i}, s[{S_X}:{S_X+3}], s{S_XO} offen lds")
    e(f"v_lshrrev_b32 v200, 4, v{VL}"); e(f"v_and_b32 v201, 15, v{VL}"); e("v_lshlrev_b32 v202, 1, v200")
    e(f"s_lshl_b32 s31, s{S_CG}, 8")
    e(f"s_lshl_b32 s32, s{S_WAVE}, 4")
    e("v_add_u32 v204, s32, v200"); e("v_mul_u32_u24 v204, 3072, v204"); e("v_add_u32 v204, s31, v204")
    for par in range(2):
        e(f"v_xor_b32 v203, {par<<3}, v202"); e("v_xor_b32 v203, v203, v201"); e("v_lshlrev_b32 v203, 4, v203"); e(f"v_add_u32 v{205+par}, v203, v204")
    for i in range(4): e(f"v_add_u32 v{DWA+i}, {4*i*3072}, v{205+((i>>1)&1)}")
    e(f"s_lshl_b32 s{S_LW}, s{S_WAVE}, 12"); e(f"s_add_u32 s{S_LW2}, s{S_LW}, {20480+16384}"); e(f"s_add_u32 s{S_LW}, s{S_LW}, 20480")
    srd(e, S_W, 4, 640*3072); srd(e, S_W2, 6, 640*3072)
    dg = []
    for i in range(5): dg.append((f"s_add_u32 m0, s{S_M0X}, {i*1024}", f"buffer_load_dwordx4 v{DXA+i}, s[{S_X}:{S_X+3}], s{S_XO} offen lds"))
    for i in range(4): dg.append((f"s_add_u32 m0, s{S_M0W}, {i*1024}", f"buffer_load_dwordx4 v{DWA+i}, s[{S_W}:{S_W+3}], s{S_WO} offen lds"))
    for i in range(4): dg.append((f"s_add_u32 m0, s{S_M0W2}, {i*1024}", f"buffer_load_dwordx4 v{DWA+i}, s[{S_W2}:{S_W2+3}], s{S_WO} offen lds"))
    dg = [dg[0],dg[5],dg[9],dg[1],dg[6],dg[10], dg[2],dg[7],dg[11],dg[3],dg[8],dg[12],dg[4]]
    e(f"s_mov_b32 s{S_M0W}, s{S_LW}"); e(f"s_mov_b32 s{S_M0W2}, s{S_LW2}")
    for (a,l) in dg:
        if f"s[{S_X}:" not in l: e(a); e(l)
    for t in adv_dma_list(3072, True): e(t)
    e("s_cmp_ge_u32 s78, 20"); e("s_cselect_b32 s30, 20, 0"); e("s_cselect_b32 s32, 1024, 0"); e("s_sub_u32 s30, s78, s30")
    e("s_cmp_ge_u32 s30, 16"); e("s_cselect_b32 s62, 0x40000000, 0")
    e("s_lshl_b32 s31, s79, 4"); e("s_add_u32 s30, s30, s31"); e("s_lshl_b32 s30, s30, 4"); e("s_add_u32 s30, s30, s32")
    e(f"s_lshl_b32 s31, s{S_WAVE}, 2"); e("s_add_u32 s30, s30, s31")
    e(f"v_lshrrev_b32 v200, 5, v{VL}"); e("v_add_u32 v196, s30, v200")
    e(f"v_and_b32 v197, 31, v{VL}")
    e("v_mul_u32_u24 v201, 1280, v196"); e("v_lshlrev_b32 v202, 3, v197"); e("v_add_u32 v201, v201, v202")
    e("s_mov_b32 s31, s62"); e("s_add_u32 s32, s31, 2560")
    for ps in range(2):
        for k in range(5):
            e(f"buffer_load_dwordx2 v[{ps*10+2*k}:{ps*10+2*k+1}], v201, s[{S_X}:{S_X+3}], s{31+ps} offen offset:{k*256}")
    e("s_cmp_ge_u32 s78, 24"); e("s_cbranch_scc1 FFN_uq")
    e("s_lshr_b32 s30, s78, 1"); e("s_and_b32 s63, s78, 1"); e("s_mul_i32 s31, s79, 6"); e("s_add_u32 s31, s31, s30")
    e("s_cmp_ge_u32 s30, 6"); e("s_cselect_b32 s30, 48, 30"); e("s_add_u32 s30, s30, s31")
    e("s_branch FFN_ud")
    e("FFN_uq:")
    e("s_mul_i32 s31, s79, 15"); e("s_add_u32 s31, s31, s78"); e("s_sub_u32 s31, s31, 24"); e("s_and_b32 s63, s31, 1"); e("s_lshr_b32 s31, s31, 1")
    udiv_const(e, 30, 31, 3)
    e("s_mul_i32 s33, s30, 3"); e("s_sub_u32 s33, s31, s33"); e("s_mul_i32 s33, s33, 10"); e("s_add_u32 s30, s30, s33")
    e("FFN_ud:")
    e("s_mov_b32 s77, s30")
    e("s_mov_b32 s64, s60"); e("s_and_b32 s65, s61, 0xffff"); e(f"s_mov_b32 s66, {640*3840}"); e("s_mov_b32 s67, 0x20000"); e("s_mov_b32 s33, 3840"); e("s_mov_b32 s32, s30")
    e("s_cmp_ge_u32 s30, 30"); e("s_cbranch_scc0 FFN_msel")
    e("s_mov_b32 s64, s4"); e("s_and_b32 s65, s5, 0xffff"); e(f"s_mov_b32 s66, {640*3072}"); e("s_mov_b32 s33, 3072"); e("s_sub_u32 s32, s30, 30")
    e("s_cmp_ge_u32 s30, 54"); e("s_cbranch_scc0 FFN_msel")
    e("s_mov_b32 s64, s6"); e("s_and_b32 s65, s7, 0xffff"); e("s_sub_u32 s32, s30, 54")
    e("FFN_msel:")
    e("s_mul_i32 s31, s63, 320"); e(f"s_lshl_b32 s53, s{S_WAVE}, 3"); e("s_add_u32 s31, s31, s53")
    e(f"v_lshrrev_b32 v200, 3, v{VL}"); e("v_add_u32 v200, s31, v200"); e("v_mul_lo_u32 v200, v200, s33")
    e(f"v_and_b32 v201, 7, v{VL}"); e("v_lshlrev_b32 v201, 4, v201"); e("s_lshl_b32 s32, s32, 7"); e("v_add_u32 v201, s32, v201"); e("v_add_u32 v200, v200, v201")
    e("s_lshl_b32 s33, s33, 5"); e("s_mov_b32 s31, 0")
    for k in range(10):
        e(f"buffer_load_dwordx4 v[{20+4*k}:{23+4*k}], v200, s[64:67], s31 offen")
        if k < 9: e("s_add_u32 s31, s31, s33")
    dma_full(e, dg, 3072, True)
    e(f"s_mov_b32 s30, 0")
    x_read_addr(e, XRD, 30)
    e(f"v_and_b32 v200, 15, v{VL}"); e(f"v_lshrrev_b32 v201, 4, v{VL}")
    e("v_lshrrev_b32 v202, 2, v200"); e("v_and_b32 v203, 3, v200")
    e("v_lshlrev_b32 v204, 3, v201"); e("v_add_u32 v204, v204, v202"); e("v_lshlrev_b32 v204, 8, v204")
    e("v_lshlrev_b32 v205, 1, v202"); e("v_and_b32 v206, 1, v201"); e("v_lshlrev_b32 v206, 3, v206"); e("v_or_b32 v205, v205, v206")
    e("v_lshrrev_b32 v206, 1, v203"); e(f"s_lshl_b32 s30, s{S_WAVE}, 2"); e("v_add_u32 v206, s30, v206")
    e("v_and_b32 v207, 1, v203"); e("v_lshlrev_b32 v207, 3, v207")
    for j in range(2):
        e(f"v_add_u32 v199, {2*j}, v206"); e("v_xor_b32 v199, v199, v205"); e("v_lshlrev_b32 v199, 4, v199"); e("v_add_u32 v199, v199, v207")
        e("v_add_u32 v199, v199, v204"); e(f"v_add_u32 v{WRD+j}, 20480, v199")
    e(f"s_lshl_b32 s30, s{S_CG}, 2"); e(f"s_add_u32 s30, s30, s{S_WAVE}"); e(f"s_mul_i32 s31, s{S_RB}, 10")
    for tt in range(NT):
        d = SOFF+tt
        e(f"s_add_u32 s32, s31, {tt}"); e("s_lshr_b32 s33, s32, 2"); e("s_mul_i32 s33, s33, 68"); e("s_add_u32 s33, s33, s30"); e("s_lshl_b32 s33, s33, 2")
        e("s_and_b32 s53, s32, 3"); e("s_add_u32 s33, s33, s53"); e("s_lshl_b32 s33, s33, 10"); e(f"s_add_u32 s33, s33, {OFF_ACT}")
        e("s_cmp_ge_u32 s32, 128"); e(f"s_cselect_b32 s{d}, 0x7ffffff0, s33")
    for i in range(60, 160): e(f"v_mov_b32 v{i}, 0")
    e("s_waitcnt vmcnt(13)")
    st = []
    for ps in range(2):
        a = []
        S0 = 200+2*ps; S1 = S0+1
        a.append(f"v_mov_b32 v{S0}, 0"); a.append(f"v_mov_b32 v{S1}, 0")
        for k in range(10):
            a.append(f"v_dot2c_f32_bf16 v{S0}, 0x3f803f80, v{ps*10+k}"); a.append(f"v_dot2c_f32_bf16 v{S1}, v{ps*10+k}, v{ps*10+k}")
        for sh in (1,2,4,8):
            a.append(f"v_add_f32_dpp v{S0}, v{S0}, v{S0} row_shr:{sh} row_mask:0xf bank_mask:0xf bound_ctrl:0")
            a.append(f"v_add_f32_dpp v{S1}, v{S1}, v{S1} row_shr:{sh} row_mask:0xf bank_mask:0xf bound_ctrl:0")
        a.append(f"v_add_f32_dpp v{S0}, v{S0}, v{S0} row_bcast:15 row_mask:0xa bank_mask:0xf")
        a.append(f"v_add_f32_dpp v{S1}, v{S1}, v{S1} row_bcast:15 row_mask:0xa bank_mask:0xf")
        a.append(f"v_mul_f32 v{S0}, {1.0/640!r}, v{S0}"); a.append(f"v_mul_f32 v{S1}, {1.0/640!r}, v{S1}")
        a.append(f"v_fma_f32 v{S1}, -v{S0}, v{S0}, v{S1}"); a.append(f"v_max_f32 v{S1}, 0, v{S1}"); a.append(f"v_add_f32 v{S1}, {1e-5!r}, v{S1}"); a.append(f"v_rsq_f32 v{S1}, v{S1}")
        st.append(a)
    cs = []
    for i in range(8): cs.append(f"v_mov_b32 v{204+i}, 0")
    for k in range(10):
        for d in range(4):
            r = 20+4*k+d
            cs.append(f"v_lshlrev_b32 v212, 16, v{r}"); cs.append(f"v_and_b32 v213, 0xffff0000, v{r}")
            cs.append(f"v_pk_add_f32 v[{204+2*d}:{205+2*d}], v[{204+2*d}:{205+2*d}], v[212:213]")
    zip2(e, st[0], st[1])
    for it in cs: e(it)
    SCR = 2*SLOT
    e(f"s_lshl_b32 s30, s{S_WAVE}, 11"); e(f"v_lshlrev_b32 v214, 5, v{VL}"); e("v_add_u32 v214, s30, v214"); e(f"v_add_u32 v214, {SCR}, v214")
    e("ds_write_b128 v214, v[204:207]"); e("ds_write_b128 v214, v[208:211] offset:16")
    e("v_lshlrev_b32 v196, 3, v196")
    e(f"s_add_u32 s31, s62, {OFF_STATS}"); e("s_add_u32 s32, s31, 16")
    e("v_cmp_eq_u32 vcc, 31, v197"); e("s_mov_b64 exec, vcc")
    e(f"buffer_store_dwordx2 v[200:201], v196, s[{S_WS}:{S_WS+3}], s31 offen sc1")
    e(f"buffer_store_dwordx2 v[202:203], v196, s[{S_WS}:{S_WS+3}], s32 offen sc1")
    e("s_mov_b64 exec, -1")
    for i in range(60): e(f"v_mov_b32 v{i}, 0")
    e("s_waitcnt lgkmcnt(0)"); e("s_barrier")
    e(f"v_and_b32 v200, 15, v{VL}"); e(f"s_lshl_b32 s30, s{S_WAVE}, 4"); e("v_add_u32 v200, s30, v200")
    e("v_lshrrev_b32 v201, 3, v200"); e("v_lshlrev_b32 v201, 5, v201"); e("v_and_b32 v202, 7, v200"); e("v_lshlrev_b32 v202, 2, v202"); e("v_add_u32 v201, v201, v202")
    e(f"v_lshrrev_b32 v202, 4, v{VL}"); e("v_lshlrev_b32 v202, 11, v202"); e("v_add_u32 v201, v201, v202"); e(f"v_add_u32 v201, {SCR}, v201")
    for i in range(8): e(f"ds_read_b32 v{204+i}, v201 offset:{i*256}")
    e("s_waitcnt lgkmcnt(0)")
    e("v_add_f32 v204, v204, v205"); e("v_add_f32 v206, v206, v207"); e("v_add_f32 v208, v208, v209"); e("v_add_f32 v210, v210, v211")
    e("v_add_f32 v204, v204, v206"); e("v_add_f32 v208, v208, v210"); e("v_add_f32 v204, v204, v208")
    for sw in ("v_permlane16_swap_b32", "v_permlane32_swap_b32"):
        e("v_mov_b32 v205, v204"); e(f"{sw} v204, v205"); e("v_add_f32 v204, v204, v205")
    e("s_mul_i32 s30, s63, 4992"); e("s_lshl_b32 s31, s77, 6"); e("s_add_u32 s30, s30, s31"); e("s_lshl_b32 s30, s30, 2"); e(f"s_add_u32 s30, s30, {OFF_CS}")
    e("v_lshlrev_b32 v200, 2, v200")
    e("s_mov_b64 exec, 0xffff")
    e(f"buffer_store_dword v204, v200, s[{S_WS}:{S_WS+3}], s30 offen sc1")
    e("s_mov_b64 exec, -1")
    code_prefetch(e); tlb_warm(e)
    e("s_barrier")
    for (a,l) in dg[:len(dg)//2]: e(a); e(l)
    def reads(ks, setn):
        w = []
        for t4 in range(4):
            r = WF + (setn*NF + t4)*4
            off = (16384 if t4 >= 2 else 0) + ks*8192
            w.append(f"ds_read_b64_tr_b16 a[{r}:{r+1}], v{WRD+(t4&1)} offset:{off}")
            w.append(f"ds_read_b64_tr_b16 a[{r+2}:{r+3}], v{WRD+(t4&1)} offset:{off+1024}")
        xs = x_reads(XF, NT, XRD, ks, setn)
        return xs[:1] + w + xs[1:]
    def late_setup():
        e(f"v_and_b32 v{VP}, 15, v{VL}"); e(f"v_add_u32 v{VP}, s{S_T0}, v{VP}"); e(f"v_lshlrev_b32 v{VP}, 3, v{VP}")
        e(f"v_lshrrev_b32 v{VP+1}, 4, v{VL}"); e(f"v_lshlrev_b32 v{VP+1}, 4, v{VP+1}")
        e(f"s_lshl_b32 s30, s{S_CG}, 7"); e(f"s_lshl_b32 s31, s{S_WAVE}, 5"); e("s_add_u32 s30, s30, s31"); e("s_lshl_b32 s30, s30, 2")
        e(f"v_add_u32 v{VP+1}, s30, v{VP+1}")
    lg = []
    for tt in range(NT):
        lg.append(([], f"buffer_load_dwordx2 v[{ST+2*tt}:{ST+2*tt+1}], v{VP}, s[{S_WS}:{S_WS+3}], 0 offen offset:{OFF_STATS + tt*128} sc1"))
    for p in range(2):
        for t4 in range(4):
            base = (1920 if t4 < 2 else 3456) + 16*(t4 & 1)
            lg.append(([f"s_mov_b32 s31, {OFF_CS + (p*4992 + base)*4}"], f"buffer_load_dwordx4 a[{CS+p*16+t4*4}:{CS+p*16+t4*4+3}], v{VP+1}, s[{S_WS}:{S_WS+3}], s31 offen sc1"))
    emit_mainloop(e, "FFN", NT, NF, XF, WF, dg, reads, [XRD, XRD+1, WRD, WRD+1], 3072, True, late_setup, lg, True, 4, VP)
    e("s_waitcnt vmcnt(0)")
    e("s_barrier")
    e(f"s_load_dwordx2 s[4:5], s[0:1], {KA_WD}"); e(f"s_load_dwordx2 s[6:7], s[0:1], {KA_WO}")
    e(f"v_lshrrev_b32 v196, 3, v{VL}"); e("v_mul_u32_u24 v196, 1280, v196"); e(f"v_and_b32 v197, 7, v{VL}"); e("v_lshlrev_b32 v197, 4, v197"); e("v_add_u32 v196, v196, v197")
    e("s_waitcnt lgkmcnt(0)")
    for rnd in range(1):
        U = 68+rnd*4
        e(f"s_lshl_b32 s{U}, s{S_N}, 2"); e(f"s_add_u32 s{U}, s{U}, s{S_WAVE}")
        if rnd: e(f"s_add_u32 s{U}, s{U}, 624")
        udiv_const(e, U+1, U, 10)
        e(f"s_mul_i32 s{U+2}, s{U+1}, 10"); e(f"s_sub_u32 s{U+2}, s{U}, s{U+2}")
        e("s_mov_b32 s64, s4"); e("s_and_b32 s65, s5, 0xffff"); e(f"s_mov_b32 s66, {1536*1280}"); e("s_mov_b32 s67, 0x20000"); e(f"s_mov_b32 s30, s{U+1}")
        lab = e.label("FFN_ws")
        e(f"s_cmp_ge_u32 s{U+1}, 48"); e(f"s_cbranch_scc0 {lab}")
        e("s_mov_b32 s64, s6"); e("s_and_b32 s65, s7, 0xffff"); e(f"s_mov_b32 s66, {640*1280}"); e(f"s_sub_u32 s30, s{U+1}, 48")
        e(f"{lab}:")
        e(f"s_cmp_ge_u32 s{U}, 680"); e("s_cselect_b32 s66, 0, s66")
        e(f"s_mul_i32 s30, s30, {32*1280}"); e(f"s_lshl_b32 s31, s{U+2}, 7"); e("s_add_u32 s30, s30, s31")
        e(f"s_lshl_b32 s31, s{S_WAVE}, 13"); e(f"s_add_u32 s31, s31, {rnd*4096}")
        for k in range(4):
            e(f"s_add_u32 m0, s31, {k*1024}")
            e("buffer_load_dwordx4 v196, s[64:67], s30 offen lds")
            if k < 3: e(f"s_add_u32 s30, s30, {8*1280}")
    for i in range(16): e(f"v_accvgpr_read_b32 v{224+i}, a{CS+i}")
    for i in range(16): e(f"v_accvgpr_read_b32 v{196+i}, a{CS+16+i}")
    for i in range(0, 16, 2): e(f"v_pk_add_f32 v[{224+i}:{225+i}], v[{224+i}:{225+i}], v[{196+i}:{197+i}]")
    e(f"v_lshlrev_b32 v240, 4, v{VL}")
    def tile(tt, R):
        s = []; a = s.append
        m = ST+2*tt; r = m+1; A = tt*16
        a(f"v_sub_f32 v{R}, 0, v{m}"); a(f"v_mul_f32 v{R+2}, {-LOG2E!r}, v{r}"); a(f"v_mul_f32 v{R+4}, v{r}, v{r}"); a(f"v_rcp_f32 v{R+4}, v{R+4}")
        for k in range(0, 16, 2): a(f"v_pk_fma_f32 v[{A+k}:{A+k+1}], v[{224+k}:{225+k}], v[{R}:{R+1}], v[{A+k}:{A+k+1}] op_sel_hi:[1,0,1]")
        E = R+6
        for k in range(0, 8, 2): a(f"v_pk_mul_f32 v[{E+k}:{E+k+1}], v[{A+k}:{A+k+1}], v[{R+2}:{R+3}] op_sel_hi:[1,0]")
        for k in range(8): a(f"v_exp_f32 v{E+k}, v{E+k}")
        for k in range(0, 8, 2): a(f"v_pk_mul_f32 v[{A+k}:{A+k+1}], v[{A+k}:{A+k+1}], v[{A+8+k}:{A+9+k}]")
        for k in range(0, 8, 2): a(f"v_pk_fma_f32 v[{E+k}:{E+k+1}], v[{E+k}:{E+k+1}], v[{R+4}:{R+5}], v[{R+4}:{R+5}] op_sel_hi:[1,0,0]")
        for k in range(8): a(f"v_rcp_f32 v{E+k}, v{E+k}")
        for k in range(0, 8, 2): a(f"v_pk_mul_f32 v[{A+k}:{A+k+1}], v[{A+k}:{A+k+1}], v[{E+k}:{E+k+1}]")
        for k in range(4): a(f"v_cvt_pk_bf16_f32 v{A+8+k}, v{A+2*k}, v{A+2*k+1}")
        a(f"buffer_store_dwordx4 v[{A+8}:{A+11}], v240, s[{S_WS}:{S_WS+3}], s{SOFF+tt} offen{OSC if tt < HPL else ''}")
        return s
    for tt in range(0, NT, 2): zip2(e, tile(tt, 196), tile(tt+1, 210))
    e("s_waitcnt vmcnt(10)")
    e(f"v_lshrrev_b32 v3, 4, v{VL}"); e(f"v_and_b32 v4, 15, v{VL}"); e("v_lshrrev_b32 v5, 2, v4"); e("v_and_b32 v6, 3, v4")
    e("v_lshlrev_b32 v3, 2, v3"); e("v_add_u32 v3, v3, v5"); e("v_lshlrev_b32 v3, 7, v3"); e("v_lshlrev_b32 v6, 3, v6"); e("v_add_u32 v3, v3, v6")
    e(f"s_lshl_b32 s31, s{S_WAVE}, 13"); e("v_add_u32 v3, s31, v3")
    for rnd in range(1):
        U = 68+rnd*4
        lab = e.label("FFN_wf")
        e(f"s_cmp_ge_u32 s{U}, 680"); e(f"s_cbranch_scc1 {lab}")
        for ft in range(4):
            e(f"ds_read_b64_tr_b16 v[{16+4*ft}:{17+4*ft}], v3 offset:{rnd*4096+ft*32}")
            e(f"ds_read_b64_tr_b16 v[{18+4*ft}:{19+4*ft}], v3 offset:{rnd*4096+ft*32+16*128}")
        e("s_waitcnt lgkmcnt(0)")
        for ft in range(4):
            e(f"s_lshl_b32 s30, s{U+2}, 2"); e(f"s_add_u32 s30, s30, {ft}")
            udiv_const(e, 31, 30, 5)
            e("s_mul_i32 s32, s31, 5"); e("s_sub_u32 s32, s30, s32")
            e("s_mul_i32 s31, s31, 68"); e(f"s_add_u32 s31, s31, s{U+1}"); e("s_mul_i32 s31, s31, 5"); e("s_add_u32 s31, s31, s32"); e("s_lshl_b32 s31, s31, 10"); e(f"s_add_u32 s31, s31, {OFF_WF}")
            e(f"buffer_store_dwordx4 v[{16+4*ft}:{19+4*ft}], v240, s[{S_WS}:{S_WS+3}], s31 offen{WSC}")
        e(f"{lab}:")
    if STAMPS: e("s_waitcnt vmcnt(0)")
    stamp(e, 3); stamp_flush(e, 1, 4, S_WS, S_WAVE)
    e("s_endpgm")

def fperm():
    ft0 = [('p', 5*q+e_) for q in range(4) for e_ in range(4)]
    ft1 = []
    for q in range(4): ft1 += [('p', 5*q+4), ('m', 5*q), ('m', 5*q+1), ('m', 5*q+2)]
    ft2 = [[('m', 5*q+3), ('m', 5*q+4)] for q in range(4)]
    return ft0, ft1, ft2

def gen_att(e):
    NT, NF = 4, 10
    XF = 0; WF = XF + 2*NT*4
    PHI = 112
    CS = 172
    XRD = 160; WRD = 162; DXA = 172; DWA = 180
    VP = 186
    ST = 246
    WPH = 159744
    e("ATT:")
    krot(e)
    e(f"s_lshl_b32 s{S_T0}, s{S_RB}, 8")
    e("s_mov_b32 s4, s66"); e("s_mov_b32 s5, s67"); e("s_mov_b32 s6, s68"); e("s_mov_b32 s7, s69")
    x_dma_addr(e, DXA, 8)
    dma_init_x(e, 3840)
    for i in range(8): e(f"s_add_u32 m0, s{S_M0X}, {i*1024}"); e(f"buffer_load_dwordx4 v{DXA+i}, s[{S_X}:{S_X+3}], s{S_XO} offen lds")
    e(f"s_mul_i32 s30, s{S_WAVE}, 5")
    e(f"s_lshl_b32 s31, s{S_COL0}, 1"); e(f"s_lshl_b32 s32, s{S_COL1}, 1"); e("s_sub_u32 s32, s32, s31"); e("s_sub_u32 s32, s32, 160")
    e("s_mov_b32 s33, 0xCCCD")
    for i in range(5):
        e(f"s_add_u32 s53, s30, {i}"); e("s_lshl_b32 s53, s53, 6")
        e(f"v_add_u32 v200, s53, v{VL}")
        e("v_mul_lo_u32 v201, v200, s33"); e("v_lshrrev_b32 v201, 20, v201")
        e("v_mul_u32_u24 v202, 20, v201"); e("v_sub_u32 v202, v200, v202")
        e("v_lshrrev_b32 v203, 2, v201"); e("v_and_b32 v203, 2, v203"); e("v_xor_b32 v202, v202, v203")
        e("v_cmp_le_u32 vcc, 10, v202"); e("v_mov_b32 v204, s32"); e("v_cndmask_b32 v204, 0, v204, vcc")
        e("v_lshlrev_b32 v202, 4, v202"); e("v_add_u32 v202, v202, v204")
        e("v_mul_u32_u24 v201, 3840, v201"); e("v_add_u32 v201, v201, v202"); e(f"v_add_u32 v{DWA+i}, s31, v201")
    e(f"s_lshl_b32 s{S_LW}, s30, 10"); e(f"s_add_u32 s{S_LW}, s{S_LW}, 32768")
    srd(e, S_W, 4, 640*3840); srd(e, S_W2, 6, 32*800)
    dg = []
    for i in range(8): dg.append((f"s_add_u32 m0, s{S_M0X}, {i*1024}", f"buffer_load_dwordx4 v{DXA+i}, s[{S_X}:{S_X+3}], s{S_XO} offen lds"))
    for i in range(5): dg.append((f"s_add_u32 m0, s{S_M0W}, {i*1024}", f"buffer_load_dwordx4 v{DWA+i}, s[{S_W}:{S_W+3}], s{S_WO} offen lds"))
    dg = [dg[0],dg[8],dg[1],dg[9],dg[2],dg[3],  dg[10],dg[4],dg[5],dg[11],dg[6],dg[12],dg[7]]
    stamp(e, 4)
    e(f"s_mov_b32 s{S_M0W}, s{S_LW}")
    for (a,l) in dg:
        if f"s[{S_X}:" not in l: e(a); e(l)
    for t in adv_dma_list(3840, False): e(t)
    e(f"v_lshlrev_b32 v201, 4, v{VL}")
    e(f"s_mul_i32 s31, s{S_CG}, 3200"); e(f"s_lshl_b32 s32, s{S_WAVE}, 10"); e("s_add_u32 s31, s31, s32")
    e(f"s_add_u32 m0, s32, {WPH}")
    e(f"s_cmp_eq_u32 s{S_WAVE}, 3"); e("s_cselect_b64 s[54:55], 0xff, -1"); e("s_mov_b64 exec, s[54:55]")
    e(f"buffer_load_dwordx4 v201, s[{S_W2}:{S_W2+3}], s31 offen lds")
    e("s_mov_b64 exec, -1")
    e(f"v_mov_b32 v204, 0"); e("v_mov_b32 v205, 0"); e("v_mov_b32 v206, 0"); e("v_mov_b32 v207, 0")
    e(f"v_lshlrev_b32 v203, 4, v{VL}"); e(f"v_add_u32 v203, {WPH+3200}, v203")
    e("s_mov_b32 exec_hi, 0x00ffffff")
    e("ds_write_b128 v203, v[204:207]")
    e("s_mov_b64 exec, -1")
    e(f"s_lshl_b32 s30, s{S_WAVE}, 13")
    x_read_addr(e, XRD, 30)
    e(f"v_and_b32 v200, 15, v{VL}"); e(f"v_lshrrev_b32 v201, 4, v{VL}")
    e("v_lshrrev_b32 v202, 2, v200"); e("v_and_b32 v203, 3, v200")
    e("v_lshlrev_b32 v204, 3, v201"); e("v_add_u32 v204, v204, v202"); e("v_mul_u32_u24 v204, 320, v204")
    e("v_mul_u32_u24 v205, 5, v203")
    e("v_and_b32 v206, 1, v201"); e("v_lshlrev_b32 v206, 2, v206")
    for t in range(10):
        e(f"v_add_u32 v207, {(t%5) + 20*(t//5)}, v205"); e("v_xor_b32 v207, v207, v206"); e("v_lshlrev_b32 v207, 3, v207"); e("v_add_u32 v207, v207, v204"); e(f"v_add_u32 v{WRD+t}, 32768, v207")
    e("v_mul_u32_u24 v208, 800, v201"); e("v_mul_u32_u24 v209, 40, v202"); e("v_add_u32 v208, v208, v209"); e(f"v_add_u32 v245, {WPH}, v208")
    e(f"v_mov_b32 v209, {WPH+3200}")
    e("v_cmp_eq_u32 vcc, v203, v201"); e("v_cndmask_b32 v245, v209, v245, vcc")
    if DRY:
        e(f"s_cmp_eq_u32 s{S_ISKV}, 1"); e("s_cbranch_scc0 KVD_DONE")
        e("s_mov_b32 s53, 0")
        e("s_mov_b64 exec, 0")
        e(f"s_cmp_eq_u32 s{S_WAVE}, 0"); e("s_cbranch_scc1 KVD0")
        e(f"s_cmp_eq_u32 s{S_WAVE}, 1"); e("s_cbranch_scc1 KVD1")
        e(f"s_cmp_eq_u32 s{S_WAVE}, 2"); e("s_cbranch_scc1 KVD2x")
        e("s_branch KVD3x")
        e("KVD_RET:")
        e("s_cmp_eq_u32 s53, 0"); e("s_mov_b32 s53, 1"); e("s_cbranch_scc0 KVD_END")
        e(f"s_cmp_eq_u32 s{S_WAVE}, 0"); e("s_cbranch_scc1 KVD6")
        e(f"s_cmp_eq_u32 s{S_WAVE}, 2"); e("s_cbranch_scc1 KVD4x")
        e("KVD_END:")
        e("s_mov_b64 exec, -1")
        e("s_waitcnt lgkmcnt(0)")
        e("KVD_DONE:")
    for i in range(160): e(f"v_mov_b32 v{i}, 0")
    dma_full(e, dg, 3840, False)
    code_prefetch(e); tlb_warm(e)
    stamp(e, 5)
    e(f"s_waitcnt vmcnt({13+1}) lgkmcnt(0)")
    e("s_barrier")
    for (a,l) in dg[:len(dg)//2]: e(a); e(l)
    def reads(ks, setn):
        w = []
        for t in range(10):
            r = WF + (setn*NF + t)*4
            w.append(f"ds_read_b64_tr_b16 a[{r}:{r+1}], v{WRD+t} offset:{ks*10240}")
            w.append(f"ds_read_b64_tr_b16 a[{r+2}:{r+3}], v{WRD+t} offset:{ks*10240+1280}")
        xs = x_reads(XF, NT, XRD, ks, setn)
        return xs[:1] + w + xs[1:]
    def late_setup():
        e(f"s_lshl_b32 s30, s{S_WAVE}, 6"); e(f"s_add_u32 s30, s30, s{S_T0}")
        e(f"v_and_b32 v{VP}, 15, v{VL}"); e(f"v_add_u32 v{VP}, s30, v{VP}"); e(f"v_lshlrev_b32 v{VP}, 3, v{VP}")
        e(f"v_lshrrev_b32 v{VP+1}, 4, v{VL}"); e(f"v_mul_u32_u24 v{VP+1}, 80, v{VP+1}")
        e(f"s_lshl_b32 s60, s{S_COL0}, 2"); e(f"s_add_u32 s60, s60, {OFF_CS}"); e(f"s_lshl_b32 s61, s{S_COL1}, 2"); e(f"s_add_u32 s61, s61, {OFF_CS}")
        e(f"s_add_u32 s62, s60, {4992*4}"); e(f"s_add_u32 s63, s61, {4992*4}")
    lg = []
    for tt in range(NT):
        lg.append(([], f"buffer_load_dwordx2 v[{ST+2*tt}:{ST+2*tt+1}], v{VP}, s[{S_WS}:{S_WS+3}], 0 offen offset:{OFF_STATS + tt*128} sc1"))
    for p in range(2):
        for half in range(2):
            for j in range(5):
                d = CS + p*40 + (half*5+j)*4
                lg.append(([], f"buffer_load_dwordx4 a[{d}:{d+3}], v{VP+1}, s[{S_WS}:{S_WS+3}], s{60+2*p+half} offen offset:{j*16} sc1"))
    emit_mainloop(e, "ATT", NT, NF, XF, WF, dg, reads, [XRD, XRD+1] + [WRD+t for t in range(10)], 3840, False, late_setup, lg, False, 1, VP)
    e("s_waitcnt vmcnt(0)")
    e(f"s_cmp_eq_u32 s{S_ISKV}, 1"); e("s_cbranch_scc1 KV_EPI")
    sentinel(e)
    for i in range(40): e(f"v_accvgpr_read_b32 v{160+i}, a{CS+i}")
    for i in range(40): e(f"v_accvgpr_read_b32 v{200+i}, a{CS+40+i}")
    for i in range(0, 40, 2): e(f"v_pk_add_f32 v[{160+i}:{161+i}], v[{160+i}:{161+i}], v[{200+i}:{201+i}]")
    e(f"v_lshrrev_b32 v200, 4, v{VL}"); e(f"v_and_b32 v201, 15, v{VL}")
    e(f"v_mul_u32_u24 v202, {128*768}, v200")
    e("v_lshlrev_b32 v203, 4, v201"); e("v_add_u32 v204, v202, v203")
    e(f"s_lshl_b32 s30, s{S_RB}, 4"); e(f"s_lshl_b32 s31, s{S_WAVE}, 2"); e("s_add_u32 s30, s30, s31")
    e(f"s_lshl_b32 s31, s{S_CG}, 3")
    for tt in range(NT):
        m = ST+2*tt; r = m+1
        e(f"v_sub_f32 v208, 0, v{m}"); e(f"v_mov_b32 v210, v{r}")
        strs = []
        for half in range(2):
            s = []; a = s.append
            A = (tt*10 + half*5)*4; C = 160 + half*20
            for k in range(0, 20, 2): a(f"v_pk_fma_f32 v[{A+k}:{A+k+1}], v[{C+k}:{C+k+1}], v[208:209], v[{A+k}:{A+k+1}] op_sel_hi:[1,0,1]")
            for k in range(0, 20, 2): a(f"v_pk_mul_f32 v[{A+k}:{A+k+1}], v[{A+k}:{A+k+1}], v[210:211] op_sel_hi:[1,0]")
            for k in range(10): a(f"v_cvt_pk_bf16_f32 v{A+k}, v{A+2*k}, v{A+2*k+1}")
            a(f"v_mov_b32 v{A+10}, 0"); a(f"v_mov_b32 v{A+11}, 0")
            sx = 60+half
            a(f"s_add_u32 s{sx}, s31, {4*half}"); a(f"s_lshl_b32 s{sx}, s{sx}, 7"); a(f"s_add_u32 s{sx}, s{sx}, s30"); a(f"s_add_u32 s{sx}, s{sx}, {tt}")
            a(f"s_mul_i32 s{sx}, s{sx}, 768"); a(f"s_add_u32 s{sx}, s{sx}, {OFF_QF}")
            a(f"buffer_store_dwordx4 v[{A}:{A+3}], v204, s[{S_WS}:{S_WS+3}], s{sx} offen{OSC}")
            a(f"buffer_store_dwordx4 v[{A+4}:{A+7}], v204, s[{S_WS}:{S_WS+3}], s{sx} offen offset:256{OSC}")
            a(f"buffer_store_dwordx4 v[{A+8}:{A+11}], v204, s[{S_WS}:{S_WS+3}], s{sx} offen offset:512{OSC}")
            strs.append(s)
        zip2(e, strs[0], strs[1])
    if STAMPS: e("s_waitcnt vmcnt(0)")
    stamp(e, 3); stamp_flush(e, 1, 6, S_WS, S_WAVE)
    e("s_endpgm")
    e("KV_EPI:")
    e("s_barrier")
    e("KVD0:")
    for jp in range(5):
        for s in range(3):
            r = PHI + (jp*3+s)*4
            e(f"ds_read_b64_tr_b16 a[{r}:{r+1}], v245 offset:{s*320 + jp*8}")
            e(f"ds_read_b64_tr_b16 a[{r+2}:{r+3}], v245 offset:{s*320 + 160 + jp*8}")
    e(f"v_lshrrev_b32 v200, 4, v{VL}"); e(f"v_and_b32 v201, 15, v{VL}")
    e("v_lshlrev_b32 v202, 15, v200"); e("v_lshlrev_b32 v203, 5, v201"); e("v_add_u32 v202, v202, v203")
    e(f"s_lshl_b32 s30, s{S_WAVE}, 11"); e("v_add_u32 v244, s30, v202")
    for i in range(40): e(f"v_accvgpr_read_b32 v{160+i}, a{CS+i}")
    for i in range(40): e(f"v_accvgpr_read_b32 v{200+i}, a{CS+40+i}")
    for i in range(0, 40, 2): e(f"v_pk_add_f32 v[{160+i}:{161+i}], v[{160+i}:{161+i}], v[{200+i}:{201+i}]")
    def vtile(tt, R):
        s = []; a = s.append
        m = ST+2*tt; r = m+1; A = (tt*10+5)*4
        a(f"v_sub_f32 v{R}, 0, v{m}"); a(f"v_mov_b32 v{R+2}, v{r}")
        for k in range(0, 20, 2): a(f"v_pk_fma_f32 v[{A+k}:{A+k+1}], v[{180+k}:{181+k}], v[{R}:{R+1}], v[{A+k}:{A+k+1}] op_sel_hi:[1,0,1]")
        for k in range(0, 20, 2): a(f"v_pk_mul_f32 v[{A+k}:{A+k+1}], v[{A+k}:{A+k+1}], v[{R+2}:{R+3}] op_sel_hi:[1,0]")
        for k in range(10): a(f"v_cvt_pk_bf16_f32 v{A+k}, v{A+2*k}, v{A+2*k+1}")
        a(f"ds_write_b128 v244, v[{A}:{A+3}] offset:{3*8192 + tt*512}")
        a(f"ds_write_b128 v244, v[{A+4}:{A+7}] offset:{3*8192 + tt*512 + 16}")
        return s
    zip2(e, vtile(0, 200), vtile(1, 204)); zip2(e, vtile(2, 200), vtile(3, 204))
    ft0, ft1, ft2 = fperm()
    Pb = [200, 220]; EM = 180
    def stageA(tt):
        s = []; a = s.append
        m = ST+2*tt; A = tt*40; P = Pb[tt & 1]
        a(f"v_sub_f32 v240, 0, v{m}")
        for k in range(0, 20, 2): a(f"v_pk_fma_f32 v[{A+k}:{A+k+1}], v[{160+k}:{161+k}], v[240:241], v[{A+k}:{A+k+1}] op_sel_hi:[1,0,1]")
        for k in range(10): a(f"v_cvt_pk_bf16_f32 v{A+k}, v{A+2*k}, v{A+2*k+1}")
        a(f"v_mov_b32 v{A+10}, 0"); a(f"v_mov_b32 v{A+11}, 0")
        for sidx in range(3):
            for jp in range(5):
                c = "0" if sidx == 0 else f"v[{P+jp*4}:{P+jp*4+3}]"
                a(f"v_mfma_f32_16x16x32_bf16 v[{P+jp*4}:{P+jp*4+3}], a[{PHI+(jp*3+sidx)*4}:{PHI+(jp*3+sidx)*4+3}], v[{A+sidx*4}:{A+sidx*4+3}], {c}")
        return s
    def stageB(tt):
        s = []; a = s.append
        r = ST+2*tt+1; A = tt*40; AV = A+20; P = Pb[tt & 1]
        C, NC, MXC, MNC, MX, MN, SP, SM_ = AV, AV+2, AV+4, AV+6, AV+10, AV+11, AV+12, AV+14
        a(f"v_mul_f32 v{C}, {LOG2E!r}, v{r}"); a(f"v_sub_f32 v{NC}, 0, v{C}")
        a(f"v_max3_f32 v{MX}, v{P}, v{P+1}, v{P+2}"); a(f"v_min3_f32 v{MN}, v{P}, v{P+1}, v{P+2}")
        for k in range(3, 19, 2):
            a(f"v_max3_f32 v{MX}, v{MX}, v{P+k}, v{P+k+1}"); a(f"v_min3_f32 v{MN}, v{MN}, v{P+k}, v{P+k+1}")
        a(f"v_max_f32 v{MX}, v{MX}, v{P+19}"); a(f"v_min_f32 v{MN}, v{MN}, v{P+19}")
        a(f"v_mul_f32 v{MXC}, v{MX}, v{NC}"); a(f"v_mul_f32 v{MNC}, v{MN}, v{C}")
        for k in range(0, 20, 2): a(f"v_pk_fma_f32 v[{EM+k}:{EM+k+1}], v[{P+k}:{P+k+1}], v[{NC}:{NC+1}], v[{MNC}:{MNC+1}] op_sel_hi:[1,0,0]")
        for k in range(0, 20, 2): a(f"v_pk_fma_f32 v[{P+k}:{P+k+1}], v[{P+k}:{P+k+1}], v[{C}:{C+1}], v[{MXC}:{MXC+1}] op_sel_hi:[1,0,0]")
        for k in range(20): a(f"v_exp_f32 v{EM+k}, v{EM+k}")
        for k in range(20): a(f"v_exp_f32 v{P+k}, v{P+k}")
        a(f"v_pk_add_f32 v[{SM_}:{SM_+1}], v[{EM}:{EM+1}], v[{EM+2}:{EM+3}]"); a(f"v_pk_add_f32 v[{SP}:{SP+1}], v[{P}:{P+1}], v[{P+2}:{P+3}]")
        for k in range(4, 20, 2):
            a(f"v_pk_add_f32 v[{SM_}:{SM_+1}], v[{SM_}:{SM_+1}], v[{EM+k}:{EM+k+1}]"); a(f"v_pk_add_f32 v[{SP}:{SP+1}], v[{SP}:{SP+1}], v[{P+k}:{P+k+1}]")
        a(f"v_add_f32 v{SM_}, v{SM_}, v{SM_+1}"); a(f"v_add_f32 v{SP}, v{SP}, v{SP+1}")
        a(f"v_rcp_f32 v{SM_}, v{SM_}"); a(f"v_rcp_f32 v{SP}, v{SP}")
        for k in range(0, 20, 2):
            a(f"v_pk_mul_f32 v[{EM+k}:{EM+k+1}], v[{EM+k}:{EM+k+1}], v[{SM_}:{SM_+1}] op_sel_hi:[1,0]")
            a(f"v_pk_mul_f32 v[{P+k}:{P+k+1}], v[{P+k}:{P+k+1}], v[{SP}:{SP+1}] op_sel_hi:[1,0]")
        def reg(x): return (P if x[0] == 'p' else EM) + x[1]
        I = AV+12
        for k in range(8): a(f"v_cvt_pk_bf16_f32 v{A+k}, v{reg(ft0[2*k])}, v{reg(ft0[2*k+1])}")
        a(f"ds_write_b128 v244, v[{A}:{A+3}] offset:{tt*512}"); a(f"ds_write_b128 v244, v[{A+4}:{A+7}] offset:{tt*512+16}")
        for k in range(8): a(f"v_cvt_pk_bf16_f32 v{A+8+k}, v{reg(ft1[2*k])}, v{reg(ft1[2*k+1])}")
        a(f"ds_write_b128 v244, v[{A+8}:{A+11}] offset:{8192+tt*512}"); a(f"ds_write_b128 v244, v[{A+12}:{A+15}] offset:{8192+tt*512+16}")
        for q in range(4): a(f"v_cvt_pk_bf16_f32 v{I+2*q}, v{reg(ft2[q][0])}, v{reg(ft2[q][1])}")
        a(f"v_mov_b32 v{I+1}, v{AV+8}"); a(f"v_mov_b32 v{I+3}, v{AV+9}"); a(f"v_mov_b32 v{I+5}, 0x3f80"); a(f"v_mov_b32 v{I+7}, 0")
        a(f"ds_write_b128 v244, v[{I}:{I+3}] offset:{2*8192+tt*512}"); a(f"ds_write_b128 v244, v[{I+4}:{I+7}] offset:{2*8192+tt*512+16}")
        return s
    e("s_waitcnt lgkmcnt(0)")
    e("s_cbranch_execz KVD_RET") if DRY else None; e("KVD1:")
    KA = 0; FR = 32; VA = 64
    def kvr(ks, st_):
        out = []
        for sub in range(4):
            rr = FR + (st_*4+sub)*4
            out.append(f"ds_read_b64_tr_b16 v[{rr}:{rr+1}], v{VA} offset:{sub*8192 + ks*1024}")
            out.append(f"ds_read_b64_tr_b16 v[{rr+2}:{rr+3}], v{VA} offset:{sub*8192 + ks*1024 + 512}")
        return out
    def kvm(st_, first):
        out = []
        for ft in range(3):
            for dt in range(2):
                a_ = KA + (ft*2+dt)*4
                Af = FR + (st_*4+ft)*4
                Bf = FR + (st_*4 + (3 if dt == 0 else 2))*4
                c = "0" if first else f"v[{a_}:{a_+3}]"
                out.append(f"v_mfma_f32_16x16x32_bf16 v[{a_}:{a_+3}], v[{Af}:{Af+3}], v[{Bf}:{Bf+3}], {c}")
        return out
    def merge_spread(main, side):
        out = []; n, m = len(main), len(side); j = 0
        for i, it in enumerate(main):
            out.append(it)
            while j < m and (j+1)*n <= (i+1)*m: out.append(side[j]); j += 1
        out += side[j:]
        return out
    for it in stageA(0): e(it)
    zip_ratio(e, stageB(0), stageA(1))
    zip_ratio(e, stageB(1), stageA(2))
    if KVOV:
        e("s_waitcnt lgkmcnt(0)"); e("s_barrier")
        addr = [f"v_lshrrev_b32 v{VA}, 4, v{VL}", f"v_and_b32 v65, 15, v{VL}", "v_lshrrev_b32 v66, 2, v65", "v_and_b32 v67, 3, v65",
                f"v_lshlrev_b32 v{VA}, 2, v{VA}", f"v_add_u32 v{VA}, v{VA}, v66", f"v_lshlrev_b32 v{VA}, 5, v{VA}", "v_lshlrev_b32 v67, 3, v67", f"v_add_u32 v{VA}, v{VA}, v67",
                f"s_lshl_b32 s30, s{S_WAVE}, 15", f"v_add_u32 v{VA}, s30, v{VA}"]
        W0 = "s_waitcnt lgkmcnt(0)"
        kv1 = addr + kvr(0, 0) + kvr(2, 1) + [W0] + kvm(0, True) + kvr(4, 0) + [W0] + kvm(1, False) + kvr(6, 1) + [W0] + kvm(0, False) + [W0] + kvm(1, False)
        mainl = merge_spread(stageB(2), stageA(3)) + stageB(3)
        for it in merge_spread(mainl, kv1): e(it)
        e("s_waitcnt lgkmcnt(0)")
        stamp(e, 4)
        e("s_barrier")
        stamp(e, 5)
        for it in kvr(1, 0) + kvr(3, 1): e(it)
        e("s_waitcnt lgkmcnt(8)")
        for it in kvm(0, False) + kvr(5, 0): e(it)
        e("s_waitcnt lgkmcnt(8)")
        for it in kvm(1, False) + kvr(7, 1): e(it)
        e("s_waitcnt lgkmcnt(8)")
        for it in kvm(0, False): e(it)
        e("s_waitcnt lgkmcnt(0)")
        for it in kvm(1, False): e(it)
    else:
        zip_ratio(e, stageB(2), stageA(3))
        for it in stageB(3): e(it)
        e("s_waitcnt lgkmcnt(0)")
        stamp(e, 4)
        e("s_barrier")
        stamp(e, 5)
        e(f"v_lshrrev_b32 v{VA}, 4, v{VL}"); e(f"v_and_b32 v65, 15, v{VL}"); e("v_lshrrev_b32 v66, 2, v65"); e("v_and_b32 v67, 3, v65")
        e(f"v_lshlrev_b32 v{VA}, 2, v{VA}"); e(f"v_add_u32 v{VA}, v{VA}, v66"); e(f"v_lshlrev_b32 v{VA}, 5, v{VA}"); e("v_lshlrev_b32 v67, 3, v67"); e(f"v_add_u32 v{VA}, v{VA}, v67")
        e(f"s_lshl_b32 s30, s{S_WAVE}, 15"); e(f"v_add_u32 v{VA}, s30, v{VA}")
        for it in kvr(0, 0): e(it)
        for ks in range(8):
            if ks < 7:
                for it in kvr(ks+1, (ks+1) & 1): e(it)
                e("s_waitcnt lgkmcnt(8)")
            else:
                e("s_waitcnt lgkmcnt(0)")
            for it in kvm(ks & 1, ks == 0): e(it)
    e("s_cbranch_execz KVD_RET") if DRY else None
    e(f"s_lshl_b32 s30, s{S_RB}, 5"); e(f"s_lshl_b32 s31, s{S_CG}, 2"); e("s_add_u32 s30, s30, s31"); e(f"s_add_u32 s30, s30, s{S_WAVE}")
    e("s_mul_i32 s30, s30, 5120"); e(f"s_add_u32 s30, s30, {OFF_KVP}")
    e(f"v_lshlrev_b32 v201, 5, v{VL}"); e(f"v_lshlrev_b32 v202, 3, v{VL}")
    for dt in range(2):
        a0 = KA + (0*2+dt)*4; a1 = KA + (1*2+dt)*4; a2 = KA + (2*2+dt)*4
        if dt == 1: e("s_add_u32 s30, s30, 2560")
        e(f"buffer_store_dwordx4 v[{a0}:{a0+3}], v201, s[{S_WS}:{S_WS+3}], s30 offen{KSC}")
        e(f"buffer_store_dwordx4 v[{a1}:{a1+3}], v201, s[{S_WS}:{S_WS+3}], s30 offen offset:16{KSC}")
        e(f"buffer_store_dwordx2 v[{a2}:{a2+1}], v202, s[{S_WS}:{S_WS+3}], s30 offen offset:2048{KSC}")
    if STAMPS: e("s_waitcnt vmcnt(0)")
    stamp(e, 3); stamp_flush(e, 1, 6, S_WS, S_WAVE)
    e("s_endpgm")

def gen_k1():
    e = Em()
    STAMP_BASE[0] = 90
    e("s_cmp_ge_u32 s2, 256"); e("s_cbranch_scc1 K1_end")
    e(f"s_load_dwordx16 s[64:79], s[0:1], 0"); e(f"s_load_dwordx4 s[92:95], s[0:1], {KA_DBG}")
    e("v_lshrrev_b32 v1, 6, v0"); e(f"v_and_b32 v{VL}, 63, v0"); e(f"v_readfirstlane_b32 s{S_WAVE}, v1")
    stamp(e, 0)
    e("s_and_b32 s30, s2, 7"); e("s_lshr_b32 s31, s2, 3")
    e("s_lshr_b32 s32, s30, 2"); e("s_and_b32 s33, s30, 3")
    e("s_waitcnt lgkmcnt(0)")
    srd(e, S_X, 64, 2048*1280); srd(e, S_WS, 94, WS_BYTES); srd(e, S_DBG, 92, 256)
    e("s_cmp_ge_u32 s31, 28"); e("s_cbranch_scc1 K1_q")
    e("s_cmp_ge_u32 s31, 20"); e("s_cbranch_scc1 K1_kv")
    e("s_mul_i32 s35, s32, 20"); e("s_add_u32 s34, s31, s35")
    e("s_cmp_ge_u32 s34, 39"); e("s_cbranch_scc1 K1_idle")
    udiv_const(e, S_RB, 34, 3)
    e(f"s_mul_i32 s35, s{S_RB}, 3"); e("s_sub_u32 s35, s34, s35"); e("s_mul_i32 s36, s33, 3"); e(f"s_add_u32 s{S_CG}, s35, s36")
    e(f"s_mul_i32 s{S_N}, s33, 39"); e(f"s_add_u32 s{S_N}, s{S_N}, s34")
    e("s_mov_b32 s78, s34"); e("s_mov_b32 s79, s33")
    e("s_branch FFN")
    e("K1_kv:")
    e("s_sub_u32 s31, s31, 20")
    e("s_lshl_b32 s34, s33, 1"); e("s_and_b32 s35, s31, 1"); e(f"s_add_u32 s{S_CG}, s34, s35")
    e("s_lshl_b32 s34, s32, 2"); e("s_lshr_b32 s35, s31, 1"); e(f"s_add_u32 s{S_RB}, s34, s35")
    e(f"s_mul_i32 s34, s{S_CG}, 80"); e(f"s_add_u32 s{S_COL0}, s34, 640"); e(f"s_add_u32 s{S_COL1}, s34, 1280"); e(f"s_mov_b32 s{S_ISKV}, 1")
    e("s_branch ATT")
    e("K1_q:")
    e(f"s_mov_b32 s{S_CG}, s33"); e("s_lshl_b32 s34, s32, 2"); e("s_sub_u32 s35, s31, 28"); e(f"s_add_u32 s{S_RB}, s34, s35")
    e(f"s_mul_i32 s{S_COL0}, s33, 160"); e(f"s_add_u32 s{S_COL1}, s{S_COL0}, 80"); e(f"s_mov_b32 s{S_ISKV}, 0")
    e("s_branch ATT")
    e("K1_idle:")
    wf_idle(e)
    e("s_endpgm")
    gen_ffn(e)
    gen_att(e)
    e("K1_end:")
    return kernel("k1_kernel", e.text(), vgpr=256, accum=256, agpr=256, sgpr=102)
```

```python
from asmgen import *
from gen_common import *

S_X = 8; S_OUT = 12; S_DBG = 16; S_WS = 20; S_WPHI = 28
S_WAVE = 24; S_RB64 = 25; S_CG = 26; S_HEAD = 27; S_RB256 = 32
LDS_PHI = 86016
LDS_KVX = 88064
LDS_CNT = 112640
K2_LDS = 112704
import os
NBUF = 4; LOOK = int(os.environ.get('K2_LOOK', 3))
NOMFMA = int(os.environ.get('K2_NOMFMA', 0)); PRIO = int(os.environ.get('K2_PRIO', 3)); NOO = int(os.environ.get('K2_NOO', 0))
VL = 175

def zip_streams(e, streams):
    n = max(len(s) for s in streams)
    for i in range(n):
        for s in streams:
            if i < len(s):
                it = s[i]
                if callable(it): it()
                else: e(it)

def gen_k2():
    e = Em()
    STAMP_BASE[0] = 64
    e("s_cmp_ge_u32 s2, 256"); e("s_cbranch_scc1 K2_end")
    e(f"s_load_dwordx2 s[4:5], s[0:1], {KA_X}"); e(f"s_load_dwordx2 s[6:7], s[0:1], {KA_WS}")
    e(f"s_load_dwordx2 s[34:35], s[0:1], {KA_OUT}"); e(f"s_load_dwordx2 s[36:37], s[0:1], {KA_DBG}"); e(f"s_load_dwordx2 s[38:39], s[0:1], {KA_WPHI}")
    e("v_lshrrev_b32 v1, 6, v0"); e(f"v_and_b32 v{VL}, 63, v0"); e(f"v_readfirstlane_b32 s33, v1")
    stamp(e, 0)
    e("s_waitcnt lgkmcnt(0)")
    srd(e, S_DBG, 36, 256)
    if int(os.environ.get("TICKET", 1)): ticket(e, S_DBG, 33, LDS_CNT+32, "TK2", vt=(2,3,4), sb=80)
    e("s_and_b32 s40, s2, 7"); e("s_lshr_b32 s41, s2, 3")
    e("s_lshr_b32 s42, s40, 1"); e("s_lshl_b32 s42, s42, 3"); e("s_lshr_b32 s43, s41, 2"); e(f"s_add_u32 s{S_RB64}, s42, s43")
    e("s_and_b32 s42, s40, 1"); e("s_lshl_b32 s42, s42, 2"); e("s_and_b32 s43, s41, 3"); e(f"s_add_u32 s{S_CG}, s42, s43")
    e("s_lshl_b32 s42, s40, 2"); e("s_and_b32 s43, s41, 3"); e(f"s_add_u32 s{S_HEAD}, s42, s43"); e(f"s_lshr_b32 s{S_RB256}, s2, 5")
    e(f"s_and_b32 s{S_WAVE}, s33, 3")
    srd(e, S_WS, 6, WS_BYTES)
    WS = f"s[{S_WS}:{S_WS+3}]"
    e("s_cmp_ge_u32 s33, 4"); e("s_cbranch_scc1 K2_OW")
    vm = Vm(e)
    e(f"v_lshlrev_b32 v144, 4, v{VL}"); e("v_add_u32 v145, 4096, v144"); e(f"v_lshlrev_b32 v171, 3, v{VL}")
    e(f"s_mul_i32 s44, s{S_RB64}, 68"); e("s_lshl_b32 s44, s44, 12"); e(f"s_add_u32 s44, s44, {OFF_ACT}")
    e(f"s_mul_i32 s45, s{S_CG}, {68*5*1024}"); e(f"s_add_u32 s45, s45, {OFF_WF}")
    e(f"s_mul_i32 s46, s{S_WAVE}, {12*4096}"); e("s_add_u32 s46, s46, s44")
    e(f"s_mul_i32 s47, s{S_WAVE}, {12*5120}"); e("s_add_u32 s47, s47, s45")
    e(f"s_mul_i32 s48, s{S_WAVE}, {5*4096}"); e("s_add_u32 s48, s48, s44"); e(f"s_add_u32 s48, s48, {48*4096}")
    e(f"s_mul_i32 s49, s{S_WAVE}, {5*5120}"); e("s_add_u32 s49, s49, s45"); e(f"s_add_u32 s49, s49, {48*5120}")
    ROT2 = int(os.environ.get("K2_ROT", 1))
    e(f"s_and_b32 s40, s{S_CG}, 3"); e(f"s_and_b32 s41, s{S_RB64}, 7"); e("s_mov_b32 s43, s40"); e("s_mul_i32 s40, s40, 3")
    if ROT2 == 2:
        e("s_add_u32 s40, s40, s41"); e("s_cmp_ge_u32 s40, 12"); e("s_cselect_b32 s41, 12, 0"); e("s_sub_u32 s40, s40, s41")
    if ROT2 == 0: e("s_mov_b32 s40, 0"); e("s_mov_b32 s43, 0")
    e(f"s_add_u32 s80, s46, {12*4096}"); e(f"s_add_u32 s81, s47, {12*5120}"); e(f"s_add_u32 s82, s48, {5*4096}"); e(f"s_add_u32 s83, s49, {5*5120}")
    e(f"s_mul_i32 s41, s40, {4096}"); e("s_add_u32 s46, s46, s41"); e(f"s_mul_i32 s41, s40, {5120}"); e("s_add_u32 s47, s47, s41")
    e(f"s_mul_i32 s41, s43, 4096"); e("s_add_u32 s48, s48, s41"); e(f"s_mul_i32 s41, s43, 5120"); e("s_add_u32 s49, s49, s41")
    def act_loads(k):
        st = (k % NBUF)*36; sa = 46 if k < 12 else 48
        if k < 12:
            l = [(f"buffer_load_dwordx4 v[{st+4*ti}:{st+4*ti+3}], v144, {WS}, s{sa} offen offset:{ti*1024}", f"a{k}") for ti in range(4)]
        else:
            l = []
            for ti in range(4):
                l.append((f"buffer_load_dwordx2 v[{st+4*ti}:{st+4*ti+1}], v171, {WS}, s{sa} offen offset:{ti*1024} sc1", f"a{k}"))
                l.append((f"buffer_load_dwordx2 v[{st+4*ti+2}:{st+4*ti+3}], v171, {WS}, s{sa} offen offset:{ti*1024+512} sc1", f"a{k}"))
        if k >= 12: l.insert(0, (f"s_mov_b32 s{84+(k-12)}, s48", None))
        lim, span = (80, 12*4096) if k < 12 else (82, 5*4096)
        l.append((f"s_add_u32 s{sa}, s{sa}, 4096\ns_cmp_ge_u32 s{sa}, s{lim}\ns_cselect_b32 s79, {span}, 0\ns_sub_u32 s{sa}, s{sa}, s79", None))
        return l
    def w_loads(k):
        st = (k % NBUF)*36; sw_ = 47 if k < 12 else 49
        l = [(f"buffer_load_dwordx4 v[{st+16+4*ft}:{st+16+4*ft+3}], v144, {WS}, s{sw_} offen offset:{ft*1024}", f"w{k}") for ft in range(4)]
        l.append((f"buffer_load_dwordx4 v[{st+32}:{st+35}], v145, {WS}, s{sw_} offen", f"w{k}"))
        lim, span = (81, 12*5120) if k < 12 else (83, 5*5120)
        l.append((f"s_add_u32 s{sw_}, s{sw_}, 5120\ns_cmp_ge_u32 s{sw_}, s{lim}\ns_cselect_b32 s79, {span}, 0\ns_sub_u32 s{sw_}, s{sw_}, s79", None))
        return l
    def put(items):
        for t, tag in items:
            if tag: vm.issue(t, tag)
            else: e(t)
    BFIRST = int(os.environ.get("K2_BFIRST", 1))
    if BFIRST: e("s_barrier")
    for k in range(LOOK):
        put(act_loads(k)); put(w_loads(k))
    if not BFIRST: e("s_barrier")
    for i in range(80): e(f"v_accvgpr_write_b32 a{i}, 0")
    srd(e, S_X, 4, 2048*1280); srd(e, S_OUT, 34, 2048*1280)
    TOP = int(os.environ.get("K2_TOP", 0))
    def kstep(k, items):
        if TOP:
            put(items); items = []
        vm.wait([f"a{k}", f"w{k}"])
        st = (k % NBUF)*36
        if k >= 12 and not NOO:
            lt = e.label("K2_v"); lo = e.label("K2_vo")
            e(f"s_mov_b32 s50, 0")
            e(f"{lt}:")
            e(f"v_max3_u32 v172, v{st}, v{st+1}, v{st+2}")
            for r in range(3, 15, 2): e(f"v_max3_u32 v172, v172, v{st+r}, v{st+r+1}")
            e(f"v_max_u32 v172, v172, v{st+15}")
            e("v_cmp_eq_u32 vcc, -1, v172")
            e(f"s_cbranch_vccz {lo}")
            e("s_add_u32 s50, s50, 1"); e("s_cmp_ge_u32 s50, 0x20000"); e(f"s_cbranch_scc1 {lo}")
            e(f"s_mov_b32 s51, s{84+(k-12)}")
            for ti in range(4):
                e(f"buffer_load_dwordx2 v[{st+4*ti}:{st+4*ti+1}], v171, {WS}, s51 offen offset:{ti*1024} sc1")
                e(f"buffer_load_dwordx2 v[{st+4*ti+2}:{st+4*ti+3}], v171, {WS}, s51 offen offset:{ti*1024+512} sc1")
            e("s_waitcnt vmcnt(0)")
            e(f"s_branch {lt}")
            e(f"{lo}:")
        mf = []
        for ti in range(4):
            for ft in range(5):
                a = (ti*5+ft)*4
                mf.append(f"v_mfma_f32_16x16x32_bf16 a[{a}:{a+3}], v[{st+16+4*ft}:{st+16+4*ft+3}], v[{st+4*ti}:{st+4*ti+3}], a[{a}:{a+3}]")
        n = len(items); pos = [int((j+0.5)*20/max(n,1)) for j in range(n)]
        for i, m in enumerate(mf):
            if not NOMFMA: e(m)
            for j in range(n):
                if pos[j] == i:
                    t, tag = items[j]
                    if tag: vm.issue(t, tag)
                    else: e(t)
    e("s_mov_b32 s53, s48")
    for k in range(17):
        nk = k + LOOK
        items = (act_loads(nk) + w_loads(nk)) if nk < 17 else []
        if k == 12:
            stamp(e, 3)
            e("s_mov_b32 s43, 0xCCCD")
            e(f"s_lshl_b32 s41, s{S_RB64}, 6"); e(f"s_lshl_b32 s42, s{S_WAVE}, 4"); e("s_add_u32 s41, s41, s42")
            e(f"s_mul_i32 s44, s{S_CG}, 160")
            for it in range(5):
                e(f"v_add_u32 v166, {it*64}, v{VL}"); e("v_mul_lo_u32 v167, v166, s43"); e("v_lshrrev_b32 v167, 20, v167")
                e("v_mul_u32_u24 v168, 20, v167"); e("v_sub_u32 v168, v166, v168")
                e("v_add_u32 v169, s41, v167"); e("v_mul_u32_u24 v169, 1280, v169"); e("v_lshlrev_b32 v170, 3, v168"); e("v_add_u32 v169, v169, v170"); e(f"v_add_u32 v{156+it}, s44, v169")
                e("v_add_u32 v169, s42, v167"); e("v_mul_u32_u24 v169, 336, v169"); e("v_lshlrev_b32 v170, 4, v168"); e(f"v_add_u32 v{161+it}, v169, v170")
                vm.issue(f"buffer_load_dwordx2 v[{146+2*it}:{147+2*it}], v{156+it}, s[{S_X}:{S_X+3}], 0 offen", "x")
        kstep(k, items)
        if k == 12: stamp(e, 4)
    stamp(e, 5)
    e(f"v_and_b32 v166, 15, v{VL}"); e(f"v_lshrrev_b32 v167, 4, v{VL}")
    e(f"v_mul_u32_u24 v166, 336, v166"); e("v_lshlrev_b32 v167, 4, v167"); e("v_add_u32 v166, v166, v167")
    e(f"s_mul_i32 s41, s{S_WAVE}, 21504"); e("v_add_u32 v166, s41, v166")
    e("s_nop 7")
    for ti in range(4):
        for ft in range(5):
            a = (ti*5+ft)*4
            e(f"ds_write_b128 v166, a[{a}:{a+3}] offset:{ti*16*336 + ft*64}")
    vm.wait("x", "lgkmcnt(0)"); e("s_barrier")
    for it in range(5):
        for w in range(4):
            e(f"ds_read_b128 v[{16*it+4*w}:{16*it+4*w+3}], v{161+it} offset:{w*21504}")
    for it in range(5):
        e(f"s_waitcnt lgkmcnt({min(15,4*(4-it))})")
        b = 16*it
        for w in range(1, 4):
            e(f"v_pk_add_f32 v[{b}:{b+1}], v[{b}:{b+1}], v[{b+4*w}:{b+4*w+1}]"); e(f"v_pk_add_f32 v[{b+2}:{b+3}], v[{b+2}:{b+3}], v[{b+4*w+2}:{b+4*w+3}]")
        x0 = 146+2*it
        e(f"v_lshlrev_b32 v100, 16, v{x0}"); e(f"v_and_b32 v101, 0xffff0000, v{x0}"); e(f"v_lshlrev_b32 v102, 16, v{x0+1}"); e(f"v_and_b32 v103, 0xffff0000, v{x0+1}")
        e(f"v_pk_add_f32 v[{b}:{b+1}], v[{b}:{b+1}], v[100:101]"); e(f"v_pk_add_f32 v[{b+2}:{b+3}], v[{b+2}:{b+3}], v[102:103]")
        e(f"v_cvt_pk_bf16_f32 v{b+4}, v{b}, v{b+1}"); e(f"v_cvt_pk_bf16_f32 v{b+5}, v{b+2}, v{b+3}")
        e(f"buffer_store_dwordx2 v[{b+4}:{b+5}], v{156+it}, s[{S_OUT}:{S_OUT+3}], 0 offen")
    if STAMPS: e("s_waitcnt vmcnt(0)")
    stamp(e, 6)
    stamp_flush_part(e, 2, [0,3,4,5,6], S_WS, 33, 0, 170)
    e("s_endpgm")
    e("K2_OW:")
    e(f"s_setprio {PRIO}")
    if NOO:
        e("s_barrier"); e("s_endpgm")
    vm = Vm(e)
    e(f"v_and_b32 v144, 15, v{VL}"); e(f"v_lshrrev_b32 v145, 4, v{VL}")
    e(f"v_lshlrev_b32 v146, 5, v{VL}"); e(f"v_lshlrev_b32 v147, 3, v{VL}"); e(f"v_lshlrev_b32 v148, 4, v{VL}")
    PB = 0
    e(f"s_lshl_b32 s40, s{S_WAVE}, 1")
    for pp in range(2):
        e(f"s_add_u32 s41, s40, {pp}"); e("s_lshl_b32 s41, s41, 5"); e(f"s_add_u32 s41, s41, s{S_HEAD}"); e("s_mul_i32 s41, s41, 5120"); e(f"s_add_u32 s41, s41, {OFF_KVP}")
        for dt in range(2):
            b = PB + pp*24 + dt*12
            if dt == 1: e("s_add_u32 s41, s41, 2560")
            vm.issue(f"buffer_load_dwordx4 v[{b}:{b+3}], v146, {WS}, s41 offen", "po")
            vm.issue(f"buffer_load_dwordx4 v[{b+4}:{b+7}], v146, {WS}, s41 offen offset:16", "po")
            vm.issue(f"buffer_load_dwordx2 v[{b+8}:{b+9}], v147, {WS}, s41 offen offset:2048", "po")
    QB = 48
    e("v_lshlrev_b32 v149, 4, v144"); e("v_min_u32 v150, 2, v145"); e("v_lshlrev_b32 v150, 8, v150"); e("v_add_u32 v150, v150, v149")
    e(f"s_lshl_b32 s41, s{S_HEAD}, 7"); e(f"s_lshl_b32 s42, s{S_RB256}, 4"); e("s_add_u32 s41, s41, s42"); e(f"s_lshl_b32 s42, s{S_WAVE}, 2"); e("s_add_u32 s41, s41, s42")
    e("s_mul_i32 s41, s41, 768"); e(f"s_add_u32 s41, s41, {OFF_QF}")
    for i in range(4):
        vm.issue(f"buffer_load_dwordx4 v[{QB+4*i}:{QB+4*i+3}], v150, {WS}, s41 offen offset:{i*768}", "q")
    srd(e, S_WPHI, 38, 32*800)
    e(f"s_cmp_eq_u32 s{S_WAVE}, 0"); e("s_cbranch_scc0 K2_nophi")
    e(f"s_mul_i32 s41, s{S_HEAD}, 800"); e(f"s_mov_b32 m0, {LDS_PHI}")
    e("s_mov_b32 exec_hi, 0x3ffff")
    vm.issue(f"buffer_load_dwordx4 v148, s[{S_WPHI}:{S_WPHI+3}], s41 offen lds", "phi", cond=True)
    e("s_mov_b64 exec, -1")
    e("v_mov_b32 v152, 0"); e("v_mov_b32 v153, 0"); e("v_mov_b32 v154, 0"); e("v_mov_b32 v155, 0")
    e(f"v_add_u32 v151, {LDS_PHI+800}, v148")
    e("s_mov_b32 exec_hi, 0x3")
    e("ds_write_b128 v151, v[152:155]")
    e("s_mov_b64 exec, 1")
    e(f"v_mov_b32 v151, {LDS_CNT}")
    e("ds_write_b128 v151, v[152:155]")
    e("s_mov_b64 exec, -1")
    e("s_waitcnt lgkmcnt(0)")
    e("K2_nophi:")
    e("s_barrier")
    e(f"v_mul_u32_u24 v156, 48, v{VL}"); e(f"s_mul_i32 s41, s{S_WAVE}, 6144"); e(f"s_add_u32 s41, s41, {LDS_KVX}"); e("v_add_u32 v156, s41, v156")
    e(f"v_mul_u32_u24 v157, 48, v{VL}"); e(f"v_add_u32 v157, {LDS_KVX}, v157")
    e("v_and_b32 v158, 1, v144"); e("v_and_b32 v159, 2, v144"); e("v_lshlrev_b32 v159, 1, v159"); e("v_add_u32 v158, v158, v159"); e("v_add_u32 v158, 2, v158")
    e("v_lshlrev_b32 v159, 4, v145"); e("v_add_u32 v158, v158, v159"); e("v_mul_u32_u24 v158, 48, v158"); e(f"v_add_u32 v158, {LDS_KVX+3072}, v158")
    e("v_add_u32 v159, 10, v159"); e("v_mul_u32_u24 v159, 48, v159"); e(f"v_add_u32 v159, {LDS_KVX+3072}, v159")
    e("v_lshrrev_b32 v160, 2, v144"); e("v_mul_u32_u24 v160, 5, v160"); e("v_and_b32 v161, 3, v144"); e("v_add_u32 v161, v161, v160"); e("v_add_u32 v162, 4, v160")
    e("v_mul_u32_u24 v160, 320, v145")
    e("v_lshlrev_b32 v161, 1, v161"); e("v_add_u32 v161, v161, v160"); e(f"v_add_u32 v161, {LDS_PHI}, v161")
    e("v_lshlrev_b32 v162, 1, v162"); e("v_add_u32 v162, v162, v160"); e(f"v_add_u32 v162, {LDS_PHI}, v162")
    e(f"s_mul_i32 s41, s{S_HEAD}, 5")
    for dst, gsrc in ((163, "v145"), (164, None)):
        if gsrc: e(f"v_add_u32 v165, s41, {gsrc}")
        else: e("s_add_u32 s42, s41, 4"); e("v_mov_b32 v165, s42")
        e("v_lshrrev_b32 v166, 3, v165"); e("v_lshlrev_b32 v166, 12, v166")
        e("v_and_b32 v167, 7, v165"); e("v_lshlrev_b32 v167, 7, v167"); e("v_add_u32 v166, v166, v167")
        e("v_lshlrev_b32 v167, 3, v144"); e(f"v_add_u32 v{dst}, v166, v167")
    e(f"s_lshl_b32 s52, s{S_RB256}, 2"); e(f"s_add_u32 s52, s52, s{S_WAVE}"); e("s_mul_i32 s52, s52, 68"); e("s_add_u32 s52, s52, 48"); e("s_lshl_b32 s52, s52, 12"); e(f"s_add_u32 s52, s52, {OFF_ACT}")
    e(f"v_mov_b32 v168, {LDS_CNT}"); e("v_mov_b32 v169, 1")
    vm.wait("po")
    for k in range(0, 24, 2):
        if k % 12 < 10: e(f"v_pk_add_f32 v[{PB+k}:{PB+k+1}], v[{PB+k}:{PB+k+1}], v[{PB+24+k}:{PB+25+k}]")
    for dt in range(2):
        for k in range(3):
            e(f"ds_write_b128 v156, v[{PB+dt*12+4*k}:{PB+dt*12+4*k+3}] offset:{dt*3072+16*k}")
    vm.waitall("lgkmcnt(0)")
    e("s_mov_b64 exec, 1"); e("ds_add_u32 v168, v169"); e("s_mov_b64 exec, -1")
    e("K2_ospin:")
    e("ds_read_b32 v170, v168"); e("s_waitcnt lgkmcnt(0)"); e("v_readfirstlane_b32 s42, v170")
    e("s_cmp_ge_u32 s42, 4"); e("s_cbranch_scc0 K2_ospin")
    stamp(e, 1)
    SM = 64
    for tl, av in enumerate((157, 158, 159)):
        for w in range(4):
            T = SM + 12*tl if w == 0 else 100 + 12*(w-1)
            for k in range(3):
                e(f"ds_read_b128 v[{T+4*k}:{T+4*k+3}], v{av} offset:{w*6144+16*k}")
        e("s_waitcnt lgkmcnt(0)")
        for w in range(1, 4):
            for k in range(0, 10, 2):
                e(f"v_pk_add_f32 v[{SM+12*tl+k}:{SM+12*tl+k+1}], v[{SM+12*tl+k}:{SM+12*tl+k+1}], v[{100+12*(w-1)+k}:{100+12*(w-1)+k+1}]")
    for tl, av in enumerate((161, 162)):
        for u in range(8):
            e(f"ds_read_u16 v{100+tl*8+u}, v{av} offset:{u*40}")
    stamp(e, 9)
    AK = 0
    for tl in range(3):
        D = SM + 12*tl
        for k in range(4): e(f"v_cvt_pk_bf16_f32 v{AK+tl*8+k}, v{D+2*k}, v{D+2*k+1}")
        e(f"v_cvt_pk_bf16_f32 v{AK+tl*8+4}, v{D+8}, v{D+9}")
        for k in range(5, 8): e(f"v_mov_b32 v{AK+tl*8+k}, 0")
    AP = 24
    e("s_waitcnt lgkmcnt(0)")
    for tl in range(2):
        for k in range(4):
            e(f"v_lshl_or_b32 v{AP+tl*4+k}, v{100+tl*8+2*k+1}, 16, v{100+tl*8+2*k}")
    e(f"v_mov_b32 v32, {LOG2E!r}")
    def otile(i, R):
        s = []; a = s.append
        B = QB + 4*i
        P = R; EM = R+8; T = R+13; B0 = R+8+10;
        P = R; EM = R+8; T = R+14; B0 = R+20; B1 = R+24; N = R+28
        a(f"v_mfma_f32_16x16x32_bf16 v[{P}:{P+3}], v[{AP}:{AP+3}], v[{B}:{B+3}], 0")
        a(f"v_mfma_f32_16x16x32_bf16 v[{P+4}:{P+7}], v[{AP+4}:{AP+7}], v[{B}:{B+3}], 0")
        a(f"v_max3_f32 v{T}, v{P}, v{P+1}, v{P+2}"); a(f"v_min3_f32 v{T+1}, v{P}, v{P+1}, v{P+2}")
        a(f"v_max3_f32 v{T}, v{T}, v{P+3}, v{P+4}"); a(f"v_min3_f32 v{T+1}, v{T+1}, v{P+3}, v{P+4}")
        for sw in ("v_permlane16_swap_b32", "v_permlane32_swap_b32"):
            a(f"v_mov_b32 v{T+2}, v{T}"); a(f"v_mov_b32 v{T+3}, v{T+1}")
            a(f"{sw} v{T}, v{T+2}"); a(f"{sw} v{T+1}, v{T+3}")
            a(f"v_max_f32 v{T}, v{T}, v{T+2}"); a(f"v_min_f32 v{T+1}, v{T+1}, v{T+3}")
        a(f"v_mul_f32 v{T}, {-LOG2E!r}, v{T}"); a(f"v_mul_f32 v{T+1}, {LOG2E!r}, v{T+1}")
        for k in range(5): a(f"v_fma_f32 v{EM+k}, -v{P+k}, v32, v{T+1}")
        for k in range(5): a(f"v_fma_f32 v{P+k}, v{P+k}, v32, v{T}")
        for k in range(5): a(f"v_exp_f32 v{P+k}, v{P+k}")
        for k in range(5): a(f"v_exp_f32 v{EM+k}, v{EM+k}")
        a(f"v_add_f32 v{T}, v{P}, v{P+1}"); a(f"v_add_f32 v{T+1}, v{EM}, v{EM+1}")
        for k in range(2, 5):
            a(f"v_add_f32 v{T}, v{T}, v{P+k}"); a(f"v_add_f32 v{T+1}, v{T+1}, v{EM+k}")
        for sw in ("v_permlane16_swap_b32", "v_permlane32_swap_b32"):
            a(f"v_mov_b32 v{T+2}, v{T}"); a(f"v_mov_b32 v{T+3}, v{T+1}")
            a(f"{sw} v{T}, v{T+2}"); a(f"{sw} v{T+1}, v{T+3}")
            a(f"v_add_f32 v{T}, v{T}, v{T+2}"); a(f"v_add_f32 v{T+1}, v{T+1}, v{T+3}")
        a(f"v_rcp_f32 v{T}, v{T}"); a(f"v_rcp_f32 v{T+1}, v{T+1}")
        for k in range(5): a(f"v_mul_f32 v{P+k}, v{P+k}, v{T}")
        for k in range(5): a(f"v_mul_f32 v{EM+k}, v{EM+k}, v{T+1}")
        a(f"v_cvt_pk_bf16_f32 v{B0}, v{P}, v{P+1}"); a(f"v_cvt_pk_bf16_f32 v{B0+1}, v{P+2}, v{P+3}"); a(f"v_cvt_pk_bf16_f32 v{B0+2}, v{P+4}, v{EM}"); a(f"v_cvt_pk_bf16_f32 v{B0+3}, v{EM+1}, v{EM+2}")
        a(f"v_cvt_pk_bf16_f32 v{B1}, v{EM+3}, v{EM+4}"); a(f"v_mov_b32 v{B1+1}, 0"); a(f"v_mov_b32 v{B1+2}, 0"); a(f"v_mov_b32 v{B1+3}, 0")
        for tl in range(3):
            d = N + 4*tl
            a(f"v_mfma_f32_16x16x32_bf16 v[{d}:{d+3}], v[{AK+tl*8}:{AK+tl*8+3}], v[{B0}:{B0+3}], 0")
        for tl in range(3):
            d = N + 4*tl
            a(f"v_mfma_f32_16x16x32_bf16 v[{d}:{d+3}], v[{AK+tl*8+4}:{AK+tl*8+7}], v[{B1}:{B1+3}], v[{d}:{d+3}]")
        a(f"v_add_f32 v{N+8}, {1e-6!r}, v{N+8}"); a(f"v_rcp_f32 v{N+8}, v{N+8}")
        for k in range(8): a(f"v_mul_f32 v{N+k}, v{N+k}, v{N+8}")
        a(f"v_cvt_pk_bf16_f32 v{P}, v{N}, v{N+1}"); a(f"v_cvt_pk_bf16_f32 v{P+1}, v{N+2}, v{N+3}"); a(f"v_cvt_pk_bf16_f32 v{P+2}, v{N+4}, v{N+5}"); a(f"v_cvt_pk_bf16_f32 v{P+3}, v{N+6}, v{N+7}")
        def st():
            e(f"s_add_u32 s41, s52, {i*1024}")
            e(f"buffer_store_dwordx2 v[{P}:{P+1}], v163, {WS}, s41 offen sc1")
            e("s_mov_b64 exec, 0xffff")
            e(f"buffer_store_dwordx2 v[{P+2}:{P+3}], v164, {WS}, s41 offen sc1")
            e("s_mov_b64 exec, -1")
        s.append(st)
        return s
    zip_streams(e, [otile(0, 64), otile(1, 104)])
    stamp(e, 7)
    zip_streams(e, [otile(2, 64), otile(3, 104)])
    stamp(e, 8)
    if STAMPS: e("s_waitcnt vmcnt(0)")
    stamp(e, 2)
    stamp_flush_part(e, 2, [1,2,7,8,9], S_WS, 33, 4, 170)
    e("K2_end:")
    e("CODE_END:")
    return kernel("k2_kernel", e.text(), vgpr=176, accum=176, agpr=80, sgpr=102)
```

```python
from asmgen import *
from gen_common import *
import os
OSC = " sc1" if int(os.environ.get("K1_SC1", 1)) else ""
KSC = " sc1" if int(os.environ.get("K1_KSC", 0)) else ""
WSC = " sc1" if int(os.environ.get("K1_WSC", 1)) else ""
HPL = int(os.environ.get("K1_HPL", 10))

DRY = int(os.environ.get('K1_DRY', 0))
KVOV = int(os.environ.get('K1_KVOV', 1))
EARLYPF = int(os.environ.get('K1_EPF', 1))
SLOT = 53248
NST = 10
S_X = 8; S_W = 12; S_W2 = 16; S_WS = 20
S_WAVE = 24; S_RB = 25; S_CG = 26; S_T0 = 27; S_COL0 = 28; S_COL1 = 29
S_LX = 34; S_LW = 35; S_LW2 = 36; S_N = 37
S_DSLOT = 40; S_XO = 41; S_WO = 42; S_TMP = 43; S_STG = 44; S_RSLOT = 45; S_T46 = 46; S_DELTA = 47; S_M0X = 48; S_M0W = 49; S_M0W2 = 50
S_ISKV = 51; S_EXTRA = 52; S_DBG = 56
S_KROT = 38; S_KST = 39; S_HOOK = 33
S_PTR = 4
VL = 255
POLL_STAGE = 5; FLAG_STAGE = 1
NFLAG = 78

def zip_ratio(e, main, side):
    n, m = len(main), len(side)
    j = 0
    for i, it in enumerate(main):
        it() if callable(it) else e(it)
        while j < m and (j+1)*n <= (i+1)*m + 0:
            side[j]() if callable(side[j]) else e(side[j]); j += 1
    while j < m:
        side[j]() if callable(side[j]) else e(side[j]); j += 1

def zip2(e, a, b):
    n = max(len(a), len(b))
    for i in range(n):
        for s in (a, b):
            if i < len(s): s[i]() if callable(s[i]) else e(s[i])

def place(sched, items, f0, f1):
    M=len(sched); n=len(items)
    for k,it in enumerate(items):
        pos = int((f0 + (f1-f0)*(k+0.5)/n)*M); pos=min(max(pos,0),M-1)
        sched[pos].append(it)
def place_dma(sched, groups, f0, f1):
    M=len(sched); n=len(groups)
    for k,(m0w, ld) in enumerate(groups):
        pos = int((f0 + (f1-f0)*(k+0.5)/n)*M); pos=min(max(pos,0),M-2)
        sched[pos].append(m0w); sched[pos+1].insert(0, ld)

def adv_dma_list(wstride, two_w):
    l = [f"s_add_u32 s{S_KST}, s{S_KST}, 1", f"s_cmp_ge_u32 s{S_KST}, 10\ns_cselect_b32 s{S_KST}, 0, s{S_KST}",
         f"s_lshl_b32 s{S_XO}, s{S_KST}, 7", f"s_mul_i32 s{S_WO}, s{S_KST}, {64*wstride}", f"s_add_u32 s{S_DSLOT}, s{S_DSLOT}, {SLOT}",
         f"s_cmp_ge_u32 s{S_DSLOT}, {3*SLOT}\ns_cselect_b32 s{S_TMP}, {3*SLOT}, 0", f"s_sub_u32 s{S_DSLOT}, s{S_DSLOT}, s{S_TMP}",
         f"s_add_u32 s{S_M0X}, s{S_DSLOT}, s{S_LX}", f"s_add_u32 s{S_M0W}, s{S_DSLOT}, s{S_LW}"]
    if two_w: l.append(f"s_add_u32 s{S_M0W2}, s{S_DSLOT}, s{S_LW2}")
    return l

def dma_init(e, two_w, wstride):
    e(f"s_mov_b32 s{S_DSLOT}, 0"); e(f"s_mov_b32 s{S_KST}, s{S_KROT}"); e(f"s_lshl_b32 s{S_XO}, s{S_KST}, 7"); e(f"s_mul_i32 s{S_WO}, s{S_KST}, {64*wstride}")
    e(f"s_mov_b32 s{S_M0X}, s{S_LX}"); e(f"s_mov_b32 s{S_M0W}, s{S_LW}")
    if two_w: e(f"s_mov_b32 s{S_M0W2}, s{S_LW2}")
def dma_init_x(e, wstride):
    e(f"s_mov_b32 s{S_DSLOT}, 0"); e(f"s_mov_b32 s{S_KST}, s{S_KROT}"); e(f"s_lshl_b32 s{S_XO}, s{S_KST}, 7"); e(f"s_mul_i32 s{S_WO}, s{S_KST}, {64*wstride}")
    e(f"s_mov_b32 s{S_M0X}, s{S_LX}")
def dma_full(e, dg, wstride, two_w):
    for (a,l) in dg: e(a); e(l)
    for s in adv_dma_list(wstride, two_w): e(s)

def emit_mainloop(e, name, NT, NF, XF, WF, dg, reads, bump, wstride, two_w, late_setup, late_groups, is_ffn, first_extra, VP, RSPAN=0.6):
    NTOT = len(dg); half = NTOT//2; M = NT*NF
    def mfmas(setn):
        out=[]
        for tt in range(NT):
            for j in range(NF):
                a = (tt*NF+j)*4
                out.append(f"v_mfma_f32_16x16x32_bf16 v[{a}:{a+3}], a[{WF+(setn*NF+j)*4}:{WF+(setn*NF+j)*4+3}], a[{XF+(setn*NT+tt)*4}:{XF+(setn*NT+tt)*4+3}], v[{a}:{a+3}]")
        return out
    def emit(mf, sched):
        for i,m in enumerate(mf):
            e(m)
            for s in sched[i]: e(s)
    upd = [f"s_add_u32 s{S_T46}, s{S_RSLOT}, {SLOT}", f"s_cmp_ge_u32 s{S_T46}, {3*SLOT}\ns_cselect_b32 s{S_DELTA}, {3*SLOT}, 0", f"s_sub_u32 s{S_T46}, s{S_T46}, s{S_DELTA}",
           f"s_sub_u32 s{S_DELTA}, s{S_T46}, s{S_RSLOT}", f"s_mov_b32 s{S_RSLOT}, s{S_T46}"]
    def k0(dmas, adv, groups=None, last=None):
        sched=[[] for _ in range(M)]
        place(sched, reads(1,1), 0.0, RSPAN)
        if dmas: place_dma(sched, dmas, 0.05, 0.85)
        if groups: place_groups(sched, groups)
        place(sched, upd, 0.0, 0.3)
        place(sched, [f"v_add_u32 v{r}, s{S_DELTA}, v{r}" for r in bump], RSPAN+0.03, 0.98)
        if adv: place(sched, adv_dma_list(wstride, two_w), 0.87, 1.0)
        if last: sched[M-1].append(last)
        emit(mfmas(0), sched)
    def k1(dmas, groups=None, tail=None, do_reads=True):
        sched=[[] for _ in range(M)]
        if do_reads: place(sched, reads(0,0), 0.0, RSPAN)
        if dmas: place_dma(sched, dmas, 0.05, 0.85)
        if groups: place_groups(sched, groups)
        if tail:
            place(sched, tail[:-1], 0.93, 0.95); sched[M-1].append(tail[-1])
        emit(mfmas(1), sched)
    def place_groups(sched, groups):
        n = len(groups)
        for k,(setup, ld) in enumerate(groups):
            pos = int((0.05 + 0.85*(k+0.5)/n)*M); pos = min(max(pos,1), M-1)
            for t in setup: sched[pos-1].append(t)
            sched[pos].append(ld)
    def wait_extra(tag, base):
        e(f"s_cbranch_scc0 {name}_wx{tag}")
        e(f"s_waitcnt vmcnt({base}) lgkmcnt(0)")
        e(f"{name}_w0{tag}:")
    def wait_extra_ool(tag, base, vals):
        e(f"{name}_wx{tag}:")
        for v in vals:
            lab = e.label(f"{name}_x")
            e(f"s_cmp_eq_u32 s{S_EXTRA}, {v}"); e(f"s_cbranch_scc0 {lab}")
            e(f"s_waitcnt vmcnt({min(63, base+v)}) lgkmcnt(0)"); e(f"s_mov_b32 s{S_EXTRA}, 0"); e(f"s_branch {name}_w0{tag}")
            e(f"{lab}:")
        e(f"s_waitcnt vmcnt({base}) lgkmcnt(0)"); e(f"s_mov_b32 s{S_EXTRA}, 0"); e(f"s_branch {name}_w0{tag}")
    stamp(e, 1)
    if STAMPS == 1:
        e("s_memtime s[100:101]"); e("s_waitcnt lgkmcnt(0)"); e("s_mov_b32 s96, s100")
    e(f"v_lshlrev_b32 v{VP+1}, 7, v{VL}"); e(f"v_mov_b32 v{VP}, 0")
    for s in reads(0,0): e(s)
    first_hook = FLAG_STAGE if is_ffn else POLL_STAGE
    e(f"s_cmp_eq_u32 s{S_WAVE}, 0"); e(f"s_cselect_b32 s{S_HOOK}, {first_hook}, 99")
    e("s_waitcnt lgkmcnt(0)")
    e(f"s_mov_b32 s{S_STG}, 0"); e(f"s_mov_b32 s{S_RSLOT}, 0"); e(f"s_mov_b32 s{S_EXTRA}, {first_extra}")
    e(f"{name}_loop:")
    k0(dg[half:], True, last=f"s_cmp_eq_u32 s{S_EXTRA}, 0")
    wait_extra("a", NTOT)
    e("s_barrier")
    e(f"s_cmp_eq_u32 s{S_STG}, s{S_HOOK}"); e(f"s_cbranch_scc1 {name}_hook")
    e(f"{name}_go:")
    if STAMPS == 3:
        e("s_memrealtime s[100:101]"); e("s_waitcnt lgkmcnt(0)"); e(f"s_mov_b32 m0, s{S_STG}"); e("s_nop 0"); e("s_movreld_b32 s68, s100")
    k1(dg[:half], tail=[f"s_add_u32 s{S_STG}, s{S_STG}, 1", f"s_cmp_lt_u32 s{S_STG}, 7"])
    e("s_waitcnt lgkmcnt(0)")
    e(f"s_cbranch_scc1 {name}_loop")
    ng = len(late_groups); n1 = min(half, ng); n2 = min(NTOT-half, ng-n1); n3 = ng-n1-n2
    g1 = late_groups[:n1]; g2 = late_groups[n1:n1+n2]; g3 = late_groups[n1+n2:]
    k0(dg[half:], False, last=f"s_cmp_eq_u32 s{S_EXTRA}, 0")
    wait_extra("b", 0 + (NTOT - half) + half)
    e(f"s_cmp_eq_u32 s{S_WAVE}, 0"); e(f"s_cbranch_scc1 {name}_chk")
    e(f"{name}_bar7:")
    e("s_barrier")
    if STAMPS == 3:
        e("s_memrealtime s[100:101]"); e("s_waitcnt lgkmcnt(0)"); e("s_mov_b32 s75, s100")
    late_setup()
    k1(None, groups=g1)
    e("s_waitcnt lgkmcnt(0)")
    k0(None, False, groups=g2)
    e(f"s_waitcnt vmcnt({n1+n2}) lgkmcnt(0)")
    e("s_barrier")
    if STAMPS == 3:
        e("s_memrealtime s[100:101]"); e("s_waitcnt lgkmcnt(0)"); e("s_mov_b32 s76, s100")
    k1(None, groups=g3 if g3 else None)
    e("s_waitcnt lgkmcnt(0)")
    k0(None, False)
    e("s_waitcnt lgkmcnt(0)")
    if STAMPS == 3:
        e("s_memrealtime s[100:101]"); e("s_waitcnt lgkmcnt(0)"); e("s_mov_b32 s77, s100")
    k1(None, do_reads=False)
    e(f"s_branch {name}_done")
    wait_extra_ool("a", NTOT, sorted(set([1] + ([first_extra] if first_extra else []))))
    wait_extra_ool("b", NTOT, [1])
    e(f"{name}_chk:")
    e(f"s_mov_b32 s53, 0")
    e(f"{name}_chk2:")
    e("s_mov_b64 exec, 3")
    e(f"v_cmp_ne_u32 vcc, {NFLAG}, v{VP}")
    e("s_mov_b64 exec, -1")
    e("s_nop 1")
    e(f"s_cbranch_vccz {name}_bar7")
    e("s_add_u32 s53, s53, 1"); e("s_cmp_ge_u32 s53, 0x40000"); e(f"s_cbranch_scc1 {name}_bar7")
    e("s_sleep 8")
    e("s_mov_b64 exec, 3")
    e(f"buffer_load_dword v{VP}, v{VP+1}, s[{S_DBG}:{S_DBG+3}], 0 offen sc1")
    e("s_mov_b64 exec, -1")
    e("s_waitcnt vmcnt(0)")
    e(f"s_branch {name}_chk2")
    e(f"{name}_hook:")
    if is_ffn:
        e(f"s_cmp_eq_u32 s{S_STG}, {FLAG_STAGE}"); e(f"s_cbranch_scc0 {name}_poll")
        e(f"s_and_b32 s53, s{S_N}, 1"); e("s_lshl_b32 s53, s53, 7"); e(f"v_mov_b32 v{VP+1}, s53"); e(f"v_mov_b32 v{VP}, 1")
        e("s_mov_b64 exec, 1")
        e(f"buffer_atomic_add v{VP}, v{VP+1}, s[{S_DBG}:{S_DBG+3}], 0 offen")
        e("s_mov_b64 exec, -1")
        e(f"s_mov_b32 s{S_HOOK}, {POLL_STAGE}")
        e(f"s_mov_b32 s{S_EXTRA}, 1"); e(f"s_branch {name}_go")
        e(f"{name}_poll:")
    e(f"v_lshlrev_b32 v{VP+1}, 7, v{VL}")
    e("s_mov_b64 exec, 3")
    e(f"buffer_load_dword v{VP}, v{VP+1}, s[{S_DBG}:{S_DBG+3}], 0 offen sc1")
    e("s_mov_b64 exec, -1")
    e(f"s_mov_b32 s{S_HOOK}, 99")
    e(f"s_mov_b32 s{S_EXTRA}, 1"); e(f"s_branch {name}_go")
    e(f"{name}_done:")
    e("s_nop 7")
    stamp(e, 2)
    if STAMPS == 1:
        e("s_memtime s[100:101]"); e("s_waitcnt lgkmcnt(0)"); e("s_sub_u32 s96, s100, s96")
        stamp_flush_part(e, 1, [6], S_WS, S_WAVE, 0, 250)
    flush3(e)

def x_dma_addr(e, DXA, NXD):
    e(f"v_lshrrev_b32 v200, 3, v{VL}"); e(f"v_lshrrev_b32 v201, 4, v{VL}"); e(f"v_and_b32 v202, 7, v{VL}")
    e(f"s_mul_i32 s30, s{S_WAVE}, {NXD*8}"); e(f"s_add_u32 s30, s30, s{S_T0}")
    e(f"s_mul_i32 s31, s{S_WAVE}, {NXD*4}")
    e("v_add_u32 v204, s30, v200"); e("v_mul_u32_u24 v204, 1280, v204")
    for par in range(2):
        e(f"v_add_u32 v203, {4*par}, v201"); e("v_add_u32 v203, s31, v203"); e("v_and_b32 v203, 7, v203"); e("v_xor_b32 v203, v203, v202"); e("v_lshlrev_b32 v203, 4, v203")
        e(f"v_add_u32 v{205+par}, v203, v204")
    for i in range(NXD):
        e(f"v_add_u32 v{DXA+i}, {8*i*1280}, v{205+(i&1)}")
    e(f"s_mul_i32 s{S_LX}, s{S_WAVE}, {NXD*1024}")

def x_read_addr(e, XRD, tok_off_s):
    e(f"v_and_b32 v200, 15, v{VL}"); e(f"v_lshrrev_b32 v201, 4, v{VL}")
    e("v_lshrrev_b32 v202, 1, v200"); e("v_xor_b32 v202, v202, v201"); e("v_and_b32 v202, 7, v202"); e("v_lshlrev_b32 v202, 4, v202")
    e("v_lshlrev_b32 v203, 7, v200"); e("v_add_u32 v203, v203, v202"); e(f"v_add_u32 v{XRD}, s{tok_off_s}, v203"); e(f"v_xor_b32 v{XRD+1}, 64, v{XRD}")

def x_reads(XF, NT, XRD, ks, setn):
    return [f"ds_read_b128 a[{XF+(setn*NT+tt)*4}:{XF+(setn*NT+tt)*4+3}], v{XRD+ks} offset:{tt*2048}" for tt in range(NT)]

def load_stats(e, NT, dst_v, tok0_s, tmp):
    e(f"v_and_b32 v{tmp}, 15, v{VL}"); e(f"v_add_u32 v{tmp}, s{tok0_s}, v{tmp}"); e(f"v_lshlrev_b32 v{tmp}, 3, v{tmp}")
    for tt in range(NT):
        e(f"buffer_load_dwordx2 v[{dst_v+2*tt}:{dst_v+2*tt+1}], v{tmp}, s[{S_WS}:{S_WS+3}], 0 offen offset:{OFF_STATS + tt*128} sc1")

ROT = int(os.environ.get("K1_ROT", 0))
def krot(e):
    if not ROT:
        e(f"s_mov_b32 s{S_KROT}, 0"); return
    e(f"s_mul_i32 s53, s{S_CG}, 3"); e(f"s_add_u32 s53, s53, s{S_RB}"); e(f"s_add_u32 s53, s53, s{S_RB}"); e(f"s_add_u32 s53, s53, s{S_RB}")
    e(f"s_mul_hi_u32 s54, s53, {(1<<32)//10+1}"); e("s_mul_i32 s54, s54, 10"); e(f"s_sub_u32 s{S_KROT}, s53, s54")

def code_prefetch(e):
    e("s_getpc_b64 s[54:55]")
    l = e.label("PC")
    e(f"{l}:")
    e(f"s_sub_u32 s54, s54, {l}-k1_kernel"); e(f"s_subb_u32 s55, s55, 0")
    e("s_lshr_b32 s53, s2, 3"); e("s_lshl_b32 s53, s53, 11"); e("s_min_u32 s53, s53, CODE_END-k1_kernel-2048")
    e(f"s_lshl_b32 s60, s{S_WAVE}, 9"); e("s_add_u32 s53, s53, s60")
    e(f"v_lshlrev_b32 v200, 4, v{VL}"); e("v_add_u32 v200, s53, v200")
    e("s_mov_b32 exec_hi, 0")
    e("global_load_dwordx4 a[252:255], v200, s[54:55]")
    e("s_mov_b64 exec, -1")

def flush3(e):
    if STAMPS != 3: return
    lab = e.label("F3")
    e(f"s_cmp_eq_u32 s{S_WAVE}, 0"); e(f"s_cbranch_scc0 {lab}")
    e(f"s_lshl_b32 s100, s2, 6"); e(f"s_add_u32 s100, s100, {OFF_TS + 256*64}")
    e("s_mov_b64 exec, 1"); e("v_mov_b32 v251, 0")
    for i in range(10):
        e(f"v_mov_b32 v250, s{68+i}"); e(f"buffer_store_dword v250, v251, s[{S_WS}:{S_WS+3}], s100 offen offset:{24+4*i}")
    e("s_mov_b64 exec, -1"); e(f"{lab}:")

TLBW = int(os.environ.get("K1_TLB", 0))
def tlb_warm(e):
    if not TLBW: return
    n = (18 << 20) // TLBW
    e(f"s_lshl_b32 s53, s2, 2"); e(f"s_add_u32 s53, s53, s{S_WAVE}")
    e(f"v_lshlrev_b32 v200, 10, v{VL}"); e("v_add_u32 v200, s53, v200")
    e(f"v_cmp_gt_u32 vcc, {n}, v200"); e(f"s_mov_b32 s54, {TLBW}"); e("v_mul_lo_u32 v200, v200, s54")
    e("s_mov_b64 exec, vcc")
    l = e.label("TW"); e(f"s_cbranch_execz {l}")
    e(f"buffer_load_dword a252, v200, s[{S_WS}:{S_WS+3}], 0 offen")
    e(f"{l}:")
    e("s_mov_b64 exec, -1")

def sentinel(e):
    e("v_mov_b32 v236, -1"); e("v_mov_b32 v237, -1"); e("v_mov_b32 v238, -1"); e("v_mov_b32 v239, -1"); e(f"v_lshlrev_b32 v240, 4, v{VL}")
    e("s_and_b32 s30, s2, 7"); e("s_lshl_b32 s30, s30, 2"); e("s_lshr_b32 s31, s2, 3"); e("s_sub_u32 s31, s31, 28"); e("s_add_u32 s30, s30, s31")
    e("s_mul_i32 s30, s30, 68"); e("s_add_u32 s30, s30, 48"); e("s_lshl_b32 s30, s30, 12"); e(f"s_mul_i32 s31, s{S_WAVE}, 20480"); e("s_add_u32 s30, s30, s31"); e(f"s_add_u32 s30, s30, {OFF_ACT}")
    for k in range(20):
        e(f"buffer_store_dwordx4 v[236:239], v240, s[{S_WS}:{S_WS+3}], s30 offen sc1")
        if k < 19: e("s_add_u32 s30, s30, 1024")

def wf_idle(e):
    e(f"s_load_dwordx2 s[92:93], s[0:1], {KA_WD}"); e(f"s_load_dwordx2 s[94:95], s[0:1], {KA_WO}")
    e(f"v_lshrrev_b32 v196, 3, v{VL}"); e("v_mul_u32_u24 v196, 1280, v196"); e(f"v_and_b32 v197, 7, v{VL}"); e("v_lshlrev_b32 v197, 4, v197"); e("v_add_u32 v196, v196, v197")
    e(f"v_lshrrev_b32 v3, 4, v{VL}"); e(f"v_and_b32 v4, 15, v{VL}"); e("v_lshrrev_b32 v5, 2, v4"); e("v_and_b32 v6, 3, v4")
    e("v_lshlrev_b32 v3, 2, v3"); e("v_add_u32 v3, v3, v5"); e("v_lshlrev_b32 v3, 7, v3"); e("v_lshlrev_b32 v6, 3, v6"); e("v_add_u32 v3, v3, v6")
    e(f"s_lshl_b32 s70, s{S_WAVE}, 12"); e("v_add_u32 v3, s70, v3"); e(f"v_lshlrev_b32 v7, 4, v{VL}")
    e("s_and_b32 s68, s2, 7"); e("s_sub_u32 s68, s68, 4"); e("s_lshl_b32 s68, s68, 2"); e(f"s_add_u32 s68, s68, s{S_WAVE}"); e("s_add_u32 s68, s68, 624"); e("s_mov_b32 s69, 0")
    e("s_waitcnt lgkmcnt(0)")
    l1 = e.label("WFI"); e(f"{l1}:")
    udiv_const(e, 71, 68, 10)
    e("s_mul_i32 s72, s71, 10"); e("s_sub_u32 s72, s68, s72")
    e("s_mov_b32 s64, s94"); e("s_and_b32 s65, s95, 0xffff"); e(f"s_mov_b32 s66, {640*1280}"); e("s_mov_b32 s67, 0x20000")
    e("s_cmp_ge_u32 s68, 680"); e("s_cselect_b32 s66, 0, s66")
    e("s_sub_u32 s73, s71, 48"); e(f"s_mul_i32 s30, s73, {32*1280}"); e("s_lshl_b32 s31, s72, 7"); e("s_add_u32 s30, s30, s31")
    for k in range(4):
        e(f"s_add_u32 m0, s70, {k*1024}")
        e("buffer_load_dwordx4 v196, s[64:67], s30 offen lds")
        if k < 3: e(f"s_add_u32 s30, s30, {8*1280}")
    e("s_waitcnt vmcnt(0)")
    for ft in range(4):
        e(f"ds_read_b64_tr_b16 v[{16+4*ft}:{17+4*ft}], v3 offset:{ft*32}")
        e(f"ds_read_b64_tr_b16 v[{18+4*ft}:{19+4*ft}], v3 offset:{ft*32+16*128}")
    e("s_waitcnt lgkmcnt(0)")
    for ft in range(4):
        e(f"s_lshl_b32 s30, s72, 2"); e(f"s_add_u32 s30, s30, {ft}")
        udiv_const(e, 31, 30, 5)
        e("s_mul_i32 s32, s31, 5"); e("s_sub_u32 s32, s30, s32")
        e("s_mul_i32 s31, s31, 68"); e("s_add_u32 s31, s31, s71"); e("s_mul_i32 s31, s31, 5"); e("s_add_u32 s31, s31, s32"); e("s_lshl_b32 s31, s31, 10"); e(f"s_add_u32 s31, s31, {OFF_WF}")
        e("s_cmp_ge_u32 s68, 680"); e("s_cselect_b32 s31, 0x7ffffff0, s31")
        e(f"buffer_store_dwordx4 v[{16+4*ft}:{19+4*ft}], v7, s[{S_WS}:{S_WS+3}], s31 offen")
    e("s_add_u32 s68, s68, 16"); e("s_add_u32 s69, s69, 1"); e("s_cmp_lt_u32 s69, 4"); e(f"s_cbranch_scc1 {l1}")

def gen_ffn(e):
    NT, NF = 10, 4
    XF = 0; WF = XF + 2*NT*4
    CS = 112
    XRD = 160; WRD = 162; DXA = 164; DWA = 169
    ST = 174
    VP = 194
    SOFF = 80
    e("FFN:")
    krot(e)
    e(f"s_mul_i32 s{S_T0}, s{S_RB}, 160")
    e("s_mov_b32 s4, s74"); e("s_mov_b32 s5, s75"); e("s_mov_b32 s6, s76"); e("s_mov_b32 s7, s77"); e("s_mov_b32 s60, s66"); e("s_mov_b32 s61, s67")
    x_dma_addr(e, DXA, 5)
    dma_init_x(e, 3072)
    for i in range(5): e(f"s_add_u32 m0, s{S_M0X}, {i*1024}"); e(f"buffer_load_dwordx4 v{DXA+i}, s[{S_X}:{S_X+3}], s{S_XO} offen lds")
    e(f"v_lshrrev_b32 v200, 4, v{VL}"); e(f"v_and_b32 v201, 15, v{VL}"); e("v_lshlrev_b32 v202, 1, v200")
    e(f"s_lshl_b32 s31, s{S_CG}, 8")
    e(f"s_lshl_b32 s32, s{S_WAVE}, 4")
    e("v_add_u32 v204, s32, v200"); e("v_mul_u32_u24 v204, 3072, v204"); e("v_add_u32 v204, s31, v204")
    for par in range(2):
        e(f"v_xor_b32 v203, {par<<3}, v202"); e("v_xor_b32 v203, v203, v201"); e("v_lshlrev_b32 v203, 4, v203"); e(f"v_add_u32 v{205+par}, v203, v204")
    for i in range(4): e(f"v_add_u32 v{DWA+i}, {4*i*3072}, v{205+((i>>1)&1)}")
    e(f"s_lshl_b32 s{S_LW}, s{S_WAVE}, 12"); e(f"s_add_u32 s{S_LW2}, s{S_LW}, {20480+16384}"); e(f"s_add_u32 s{S_LW}, s{S_LW}, 20480")
    srd(e, S_W, 4, 640*3072); srd(e, S_W2, 6, 640*3072)
    dg = []
    for i in range(5): dg.append((f"s_add_u32 m0, s{S_M0X}, {i*1024}", f"buffer_load_dwordx4 v{DXA+i}, s[{S_X}:{S_X+3}], s{S_XO} offen lds"))
    for i in range(4): dg.append((f"s_add_u32 m0, s{S_M0W}, {i*1024}", f"buffer_load_dwordx4 v{DWA+i}, s[{S_W}:{S_W+3}], s{S_WO} offen lds"))
    for i in range(4): dg.append((f"s_add_u32 m0, s{S_M0W2}, {i*1024}", f"buffer_load_dwordx4 v{DWA+i}, s[{S_W2}:{S_W2+3}], s{S_WO} offen lds"))
    dg = [dg[0],dg[5],dg[9],dg[1],dg[6],dg[10], dg[2],dg[7],dg[11],dg[3],dg[8],dg[12],dg[4]]
    e(f"s_mov_b32 s{S_M0W}, s{S_LW}"); e(f"s_mov_b32 s{S_M0W2}, s{S_LW2}")
    for (a,l) in dg:
        if f"s[{S_X}:" not in l: e(a); e(l)
    for t in adv_dma_list(3072, True): e(t)
    e("s_cmp_ge_u32 s78, 20"); e("s_cselect_b32 s30, 20, 0"); e("s_cselect_b32 s32, 1024, 0"); e("s_sub_u32 s30, s78, s30")
    e("s_cmp_ge_u32 s30, 16"); e("s_cselect_b32 s62, 0x40000000, 0")
    e("s_lshl_b32 s31, s79, 4"); e("s_add_u32 s30, s30, s31"); e("s_lshl_b32 s30, s30, 4"); e("s_add_u32 s30, s30, s32")
    e(f"s_lshl_b32 s31, s{S_WAVE}, 2"); e("s_add_u32 s30, s30, s31")
    e(f"v_lshrrev_b32 v200, 5, v{VL}"); e("v_add_u32 v196, s30, v200")
    e(f"v_and_b32 v197, 31, v{VL}")
    e("v_mul_u32_u24 v201, 1280, v196"); e("v_lshlrev_b32 v202, 3, v197"); e("v_add_u32 v201, v201, v202")
    e("s_mov_b32 s31, s62"); e("s_add_u32 s32, s31, 2560")
    for ps in range(2):
        for k in range(5):
            e(f"buffer_load_dwordx2 v[{ps*10+2*k}:{ps*10+2*k+1}], v201, s[{S_X}:{S_X+3}], s{31+ps} offen offset:{k*256}")
    e("s_cmp_ge_u32 s78, 24"); e("s_cbranch_scc1 FFN_uq")
    e("s_lshr_b32 s30, s78, 1"); e("s_and_b32 s63, s78, 1"); e("s_mul_i32 s31, s79, 6"); e("s_add_u32 s31, s31, s30")
    e("s_cmp_ge_u32 s30, 6"); e("s_cselect_b32 s30, 48, 30"); e("s_add_u32 s30, s30, s31")
    e("s_branch FFN_ud")
    e("FFN_uq:")
    e("s_mul_i32 s31, s79, 15"); e("s_add_u32 s31, s31, s78"); e("s_sub_u32 s31, s31, 24"); e("s_and_b32 s63, s31, 1"); e("s_lshr_b32 s31, s31, 1")
    udiv_const(e, 30, 31, 3)
    e("s_mul_i32 s33, s30, 3"); e("s_sub_u32 s33, s31, s33"); e("s_mul_i32 s33, s33, 10"); e("s_add_u32 s30, s30, s33")
    e("FFN_ud:")
    e("s_mov_b32 s77, s30")
    e("s_mov_b32 s64, s60"); e("s_and_b32 s65, s61, 0xffff"); e(f"s_mov_b32 s66, {640*3840}"); e("s_mov_b32 s67, 0x20000"); e("s_mov_b32 s33, 3840"); e("s_mov_b32 s32, s30")
    e("s_cmp_ge_u32 s30, 30"); e("s_cbranch_scc0 FFN_msel")
    e("s_mov_b32 s64, s4"); e("s_and_b32 s65, s5, 0xffff"); e(f"s_mov_b32 s66, {640*3072}"); e("s_mov_b32 s33, 3072"); e("s_sub_u32 s32, s30, 30")
    e("s_cmp_ge_u32 s30, 54"); e("s_cbranch_scc0 FFN_msel")
    e("s_mov_b32 s64, s6"); e("s_and_b32 s65, s7, 0xffff"); e("s_sub_u32 s32, s30, 54")
    e("FFN_msel:")
    e("s_mul_i32 s31, s63, 320"); e(f"s_lshl_b32 s53, s{S_WAVE}, 3"); e("s_add_u32 s31, s31, s53")
    e(f"v_lshrrev_b32 v200, 3, v{VL}"); e("v_add_u32 v200, s31, v200"); e("v_mul_lo_u32 v200, v200, s33")
    e(f"v_and_b32 v201, 7, v{VL}"); e("v_lshlrev_b32 v201, 4, v201"); e("s_lshl_b32 s32, s32, 7"); e("v_add_u32 v201, s32, v201"); e("v_add_u32 v200, v200, v201")
    e("s_lshl_b32 s33, s33, 5"); e("s_mov_b32 s31, 0")
    for k in range(10):
        e(f"buffer_load_dwordx4 v[{20+4*k}:{23+4*k}], v200, s[64:67], s31 offen")
        if k < 9: e("s_add_u32 s31, s31, s33")
    dma_full(e, dg, 3072, True)
    e(f"s_mov_b32 s30, 0")
    x_read_addr(e, XRD, 30)
    e(f"v_and_b32 v200, 15, v{VL}"); e(f"v_lshrrev_b32 v201, 4, v{VL}")
    e("v_lshrrev_b32 v202, 2, v200"); e("v_and_b32 v203, 3, v200")
    e("v_lshlrev_b32 v204, 3, v201"); e("v_add_u32 v204, v204, v202"); e("v_lshlrev_b32 v204, 8, v204")
    e("v_lshlrev_b32 v205, 1, v202"); e("v_and_b32 v206, 1, v201"); e("v_lshlrev_b32 v206, 3, v206"); e("v_or_b32 v205, v205, v206")
    e("v_lshrrev_b32 v206, 1, v203"); e(f"s_lshl_b32 s30, s{S_WAVE}, 2"); e("v_add_u32 v206, s30, v206")
    e("v_and_b32 v207, 1, v203"); e("v_lshlrev_b32 v207, 3, v207")
    for j in range(2):
        e(f"v_add_u32 v199, {2*j}, v206"); e("v_xor_b32 v199, v199, v205"); e("v_lshlrev_b32 v199, 4, v199"); e("v_add_u32 v199, v199, v207")
        e("v_add_u32 v199, v199, v204"); e(f"v_add_u32 v{WRD+j}, 20480, v199")
    e(f"s_lshl_b32 s30, s{S_CG}, 2"); e(f"s_add_u32 s30, s30, s{S_WAVE}"); e(f"s_mul_i32 s31, s{S_RB}, 10")
    for tt in range(NT):
        d = SOFF+tt
        e(f"s_add_u32 s32, s31, {tt}"); e("s_lshr_b32 s33, s32, 2"); e("s_mul_i32 s33, s33, 68"); e("s_add_u32 s33, s33, s30"); e("s_lshl_b32 s33, s33, 2")
        e("s_and_b32 s53, s32, 3"); e("s_add_u32 s33, s33, s53"); e("s_lshl_b32 s33, s33, 10"); e(f"s_add_u32 s33, s33, {OFF_ACT}")
        e("s_cmp_ge_u32 s32, 128"); e(f"s_cselect_b32 s{d}, 0x7ffffff0, s33")
    for i in range(60, 160): e(f"v_mov_b32 v{i}, 0")
    e("s_waitcnt vmcnt(13)")
    st = []
    for ps in range(2):
        a = []
        S0 = 200+2*ps; S1 = S0+1
        a.append(f"v_mov_b32 v{S0}, 0"); a.append(f"v_mov_b32 v{S1}, 0")
        for k in range(10):
            a.append(f"v_dot2c_f32_bf16 v{S0}, 0x3f803f80, v{ps*10+k}"); a.append(f"v_dot2c_f32_bf16 v{S1}, v{ps*10+k}, v{ps*10+k}")
        for sh in (1,2,4,8):
            a.append(f"v_add_f32_dpp v{S0}, v{S0}, v{S0} row_shr:{sh} row_mask:0xf bank_mask:0xf bound_ctrl:0")
            a.append(f"v_add_f32_dpp v{S1}, v{S1}, v{S1} row_shr:{sh} row_mask:0xf bank_mask:0xf bound_ctrl:0")
        a.append(f"v_add_f32_dpp v{S0}, v{S0}, v{S0} row_bcast:15 row_mask:0xa bank_mask:0xf")
        a.append(f"v_add_f32_dpp v{S1}, v{S1}, v{S1} row_bcast:15 row_mask:0xa bank_mask:0xf")
        a.append(f"v_mul_f32 v{S0}, {1.0/640!r}, v{S0}"); a.append(f"v_mul_f32 v{S1}, {1.0/640!r}, v{S1}")
        a.append(f"v_fma_f32 v{S1}, -v{S0}, v{S0}, v{S1}"); a.append(f"v_max_f32 v{S1}, 0, v{S1}"); a.append(f"v_add_f32 v{S1}, {1e-5!r}, v{S1}"); a.append(f"v_rsq_f32 v{S1}, v{S1}")
        st.append(a)
    cs = []
    for i in range(8): cs.append(f"v_mov_b32 v{204+i}, 0")
    for k in range(10):
        for d in range(4):
            r = 20+4*k+d
            cs.append(f"v_lshlrev_b32 v212, 16, v{r}"); cs.append(f"v_and_b32 v213, 0xffff0000, v{r}")
            cs.append(f"v_pk_add_f32 v[{204+2*d}:{205+2*d}], v[{204+2*d}:{205+2*d}], v[212:213]")
    zip2(e, st[0], st[1])
    for it in cs: e(it)
    SCR = 2*SLOT
    e(f"s_lshl_b32 s30, s{S_WAVE}, 11"); e(f"v_lshlrev_b32 v214, 5, v{VL}"); e("v_add_u32 v214, s30, v214"); e(f"v_add_u32 v214, {SCR}, v214")
    e("ds_write_b128 v214, v[204:207]"); e("ds_write_b128 v214, v[208:211] offset:16")
    e("v_lshlrev_b32 v196, 3, v196")
    e(f"s_add_u32 s31, s62, {OFF_STATS}"); e("s_add_u32 s32, s31, 16")
    e("v_cmp_eq_u32 vcc, 31, v197"); e("s_mov_b64 exec, vcc")
    e(f"buffer_store_dwordx2 v[200:201], v196, s[{S_WS}:{S_WS+3}], s31 offen sc1")
    e(f"buffer_store_dwordx2 v[202:203], v196, s[{S_WS}:{S_WS+3}], s32 offen sc1")
    e("s_mov_b64 exec, -1")
    for i in range(60): e(f"v_mov_b32 v{i}, 0")
    e("s_waitcnt lgkmcnt(0)"); e("s_barrier")
    e(f"v_and_b32 v200, 15, v{VL}"); e(f"s_lshl_b32 s30, s{S_WAVE}, 4"); e("v_add_u32 v200, s30, v200")
    e("v_lshrrev_b32 v201, 3, v200"); e("v_lshlrev_b32 v201, 5, v201"); e("v_and_b32 v202, 7, v200"); e("v_lshlrev_b32 v202, 2, v202"); e("v_add_u32 v201, v201, v202")
    e(f"v_lshrrev_b32 v202, 4, v{VL}"); e("v_lshlrev_b32 v202, 11, v202"); e("v_add_u32 v201, v201, v202"); e(f"v_add_u32 v201, {SCR}, v201")
    for i in range(8): e(f"ds_read_b32 v{204+i}, v201 offset:{i*256}")
    e("s_waitcnt lgkmcnt(0)")
    e("v_add_f32 v204, v204, v205"); e("v_add_f32 v206, v206, v207"); e("v_add_f32 v208, v208, v209"); e("v_add_f32 v210, v210, v211")
    e("v_add_f32 v204, v204, v206"); e("v_add_f32 v208, v208, v210"); e("v_add_f32 v204, v204, v208")
    for sw in ("v_permlane16_swap_b32", "v_permlane32_swap_b32"):
        e("v_mov_b32 v205, v204"); e(f"{sw} v204, v205"); e("v_add_f32 v204, v204, v205")
    e("s_mul_i32 s30, s63, 4992"); e("s_lshl_b32 s31, s77, 6"); e("s_add_u32 s30, s30, s31"); e("s_lshl_b32 s30, s30, 2"); e(f"s_add_u32 s30, s30, {OFF_CS}")
    e("v_lshlrev_b32 v200, 2, v200")
    e("s_mov_b64 exec, 0xffff")
    e(f"buffer_store_dword v204, v200, s[{S_WS}:{S_WS+3}], s30 offen sc1")
    e("s_mov_b64 exec, -1")
    code_prefetch(e); tlb_warm(e)
    e("s_barrier")
    for (a,l) in dg[:len(dg)//2]: e(a); e(l)
    def reads(ks, setn):
        w = []
        for t4 in range(4):
            r = WF + (setn*NF + t4)*4
            off = (16384 if t4 >= 2 else 0) + ks*8192
            w.append(f"ds_read_b64_tr_b16 a[{r}:{r+1}], v{WRD+(t4&1)} offset:{off}")
            w.append(f"ds_read_b64_tr_b16 a[{r+2}:{r+3}], v{WRD+(t4&1)} offset:{off+1024}")
        xs = x_reads(XF, NT, XRD, ks, setn)
        return xs[:1] + w + xs[1:]
    def late_setup():
        e(f"v_and_b32 v{VP}, 15, v{VL}"); e(f"v_add_u32 v{VP}, s{S_T0}, v{VP}"); e(f"v_lshlrev_b32 v{VP}, 3, v{VP}")
        e(f"v_lshrrev_b32 v{VP+1}, 4, v{VL}"); e(f"v_lshlrev_b32 v{VP+1}, 4, v{VP+1}")
        e(f"s_lshl_b32 s30, s{S_CG}, 7"); e(f"s_lshl_b32 s31, s{S_WAVE}, 5"); e("s_add_u32 s30, s30, s31"); e("s_lshl_b32 s30, s30, 2")
        e(f"v_add_u32 v{VP+1}, s30, v{VP+1}")
    lg = []
    for tt in range(NT):
        lg.append(([], f"buffer_load_dwordx2 v[{ST+2*tt}:{ST+2*tt+1}], v{VP}, s[{S_WS}:{S_WS+3}], 0 offen offset:{OFF_STATS + tt*128} sc1"))
    for p in range(2):
        for t4 in range(4):
            base = (1920 if t4 < 2 else 3456) + 16*(t4 & 1)
            lg.append(([f"s_mov_b32 s31, {OFF_CS + (p*4992 + base)*4}"], f"buffer_load_dwordx4 a[{CS+p*16+t4*4}:{CS+p*16+t4*4+3}], v{VP+1}, s[{S_WS}:{S_WS+3}], s31 offen sc1"))
    emit_mainloop(e, "FFN", NT, NF, XF, WF, dg, reads, [XRD, XRD+1, WRD, WRD+1], 3072, True, late_setup, lg, True, 4, VP)
    e("s_waitcnt vmcnt(0)")
    e("s_barrier")
    e(f"s_load_dwordx2 s[4:5], s[0:1], {KA_WD}"); e(f"s_load_dwordx2 s[6:7], s[0:1], {KA_WO}")
    e(f"v_lshrrev_b32 v196, 3, v{VL}"); e("v_mul_u32_u24 v196, 1280, v196"); e(f"v_and_b32 v197, 7, v{VL}"); e("v_lshlrev_b32 v197, 4, v197"); e("v_add_u32 v196, v196, v197")
    e("s_waitcnt lgkmcnt(0)")
    for rnd in range(1):
        U = 68+rnd*4
        e(f"s_lshl_b32 s{U}, s{S_N}, 2"); e(f"s_add_u32 s{U}, s{U}, s{S_WAVE}")
        if rnd: e(f"s_add_u32 s{U}, s{U}, 624")
        udiv_const(e, U+1, U, 10)
        e(f"s_mul_i32 s{U+2}, s{U+1}, 10"); e(f"s_sub_u32 s{U+2}, s{U}, s{U+2}")
        e("s_mov_b32 s64, s4"); e("s_and_b32 s65, s5, 0xffff"); e(f"s_mov_b32 s66, {1536*1280}"); e("s_mov_b32 s67, 0x20000"); e(f"s_mov_b32 s30, s{U+1}")
        lab = e.label("FFN_ws")
        e(f"s_cmp_ge_u32 s{U+1}, 48"); e(f"s_cbranch_scc0 {lab}")
        e("s_mov_b32 s64, s6"); e("s_and_b32 s65, s7, 0xffff"); e(f"s_mov_b32 s66, {640*1280}"); e(f"s_sub_u32 s30, s{U+1}, 48")
        e(f"{lab}:")
        e(f"s_cmp_ge_u32 s{U}, 680"); e("s_cselect_b32 s66, 0, s66")
        e(f"s_mul_i32 s30, s30, {32*1280}"); e(f"s_lshl_b32 s31, s{U+2}, 7"); e("s_add_u32 s30, s30, s31")
        e(f"s_lshl_b32 s31, s{S_WAVE}, 13"); e(f"s_add_u32 s31, s31, {rnd*4096}")
        for k in range(4):
            e(f"s_add_u32 m0, s31, {k*1024}")
            e("buffer_load_dwordx4 v196, s[64:67], s30 offen lds")
            if k < 3: e(f"s_add_u32 s30, s30, {8*1280}")
    for i in range(16): e(f"v_accvgpr_read_b32 v{224+i}, a{CS+i}")
    for i in range(16): e(f"v_accvgpr_read_b32 v{196+i}, a{CS+16+i}")
    for i in range(0, 16, 2): e(f"v_pk_add_f32 v[{224+i}:{225+i}], v[{224+i}:{225+i}], v[{196+i}:{197+i}]")
    e(f"v_lshlrev_b32 v240, 4, v{VL}")
    def tile(tt, R):
        s = []; a = s.append
        m = ST+2*tt; r = m+1; A = tt*16
        a(f"v_sub_f32 v{R}, 0, v{m}"); a(f"v_mul_f32 v{R+2}, {-LOG2E!r}, v{r}"); a(f"v_mul_f32 v{R+4}, v{r}, v{r}"); a(f"v_rcp_f32 v{R+4}, v{R+4}")
        for k in range(0, 16, 2): a(f"v_pk_fma_f32 v[{A+k}:{A+k+1}], v[{224+k}:{225+k}], v[{R}:{R+1}], v[{A+k}:{A+k+1}] op_sel_hi:[1,0,1]")
        E = R+6
        for k in range(0, 8, 2): a(f"v_pk_mul_f32 v[{E+k}:{E+k+1}], v[{A+k}:{A+k+1}], v[{R+2}:{R+3}] op_sel_hi:[1,0]")
        for k in range(8): a(f"v_exp_f32 v{E+k}, v{E+k}")
        for k in range(0, 8, 2): a(f"v_pk_mul_f32 v[{A+k}:{A+k+1}], v[{A+k}:{A+k+1}], v[{A+8+k}:{A+9+k}]")
        for k in range(0, 8, 2): a(f"v_pk_fma_f32 v[{E+k}:{E+k+1}], v[{E+k}:{E+k+1}], v[{R+4}:{R+5}], v[{R+4}:{R+5}] op_sel_hi:[1,0,0]")
        for k in range(8): a(f"v_rcp_f32 v{E+k}, v{E+k}")
        for k in range(0, 8, 2): a(f"v_pk_mul_f32 v[{A+k}:{A+k+1}], v[{A+k}:{A+k+1}], v[{E+k}:{E+k+1}]")
        for k in range(4): a(f"v_cvt_pk_bf16_f32 v{A+8+k}, v{A+2*k}, v{A+2*k+1}")
        a(f"buffer_store_dwordx4 v[{A+8}:{A+11}], v240, s[{S_WS}:{S_WS+3}], s{SOFF+tt} offen{OSC if tt < HPL else ''}")
        return s
    for tt in range(0, NT, 2): zip2(e, tile(tt, 196), tile(tt+1, 210))
    e("s_waitcnt vmcnt(10)")
    e(f"v_lshrrev_b32 v3, 4, v{VL}"); e(f"v_and_b32 v4, 15, v{VL}"); e("v_lshrrev_b32 v5, 2, v4"); e("v_and_b32 v6, 3, v4")
    e("v_lshlrev_b32 v3, 2, v3"); e("v_add_u32 v3, v3, v5"); e("v_lshlrev_b32 v3, 7, v3"); e("v_lshlrev_b32 v6, 3, v6"); e("v_add_u32 v3, v3, v6")
    e(f"s_lshl_b32 s31, s{S_WAVE}, 13"); e("v_add_u32 v3, s31, v3")
    for rnd in range(1):
        U = 68+rnd*4
        lab = e.label("FFN_wf")
        e(f"s_cmp_ge_u32 s{U}, 680"); e(f"s_cbranch_scc1 {lab}")
        for ft in range(4):
            e(f"ds_read_b64_tr_b16 v[{16+4*ft}:{17+4*ft}], v3 offset:{rnd*4096+ft*32}")
            e(f"ds_read_b64_tr_b16 v[{18+4*ft}:{19+4*ft}], v3 offset:{rnd*4096+ft*32+16*128}")
        e("s_waitcnt lgkmcnt(0)")
        for ft in range(4):
            e(f"s_lshl_b32 s30, s{U+2}, 2"); e(f"s_add_u32 s30, s30, {ft}")
            udiv_const(e, 31, 30, 5)
            e("s_mul_i32 s32, s31, 5"); e("s_sub_u32 s32, s30, s32")
            e("s_mul_i32 s31, s31, 68"); e(f"s_add_u32 s31, s31, s{U+1}"); e("s_mul_i32 s31, s31, 5"); e("s_add_u32 s31, s31, s32"); e("s_lshl_b32 s31, s31, 10"); e(f"s_add_u32 s31, s31, {OFF_WF}")
            e(f"buffer_store_dwordx4 v[{16+4*ft}:{19+4*ft}], v240, s[{S_WS}:{S_WS+3}], s31 offen{WSC}")
        e(f"{lab}:")
    if STAMPS: e("s_waitcnt vmcnt(0)")
    stamp(e, 3); stamp_flush(e, 1, 4, S_WS, S_WAVE)
    e("s_endpgm")

def fperm():
    ft0 = [('p', 5*q+e_) for q in range(4) for e_ in range(4)]
    ft1 = []
    for q in range(4): ft1 += [('p', 5*q+4), ('m', 5*q), ('m', 5*q+1), ('m', 5*q+2)]
    ft2 = [[('m', 5*q+3), ('m', 5*q+4)] for q in range(4)]
    return ft0, ft1, ft2

def gen_att(e):
    NT, NF = 4, 10
    XF = 0; WF = XF + 2*NT*4
    PHI = 112
    CS = 172
    XRD = 160; WRD = 162; DXA = 172; DWA = 180
    VP = 186
    ST = 246
    WPH = 159744
    e("ATT:")
    krot(e)
    e(f"s_lshl_b32 s{S_T0}, s{S_RB}, 8")
    e("s_mov_b32 s4, s66"); e("s_mov_b32 s5, s67"); e("s_mov_b32 s6, s68"); e("s_mov_b32 s7, s69")
    x_dma_addr(e, DXA, 8)
    dma_init_x(e, 3840)
    for i in range(8): e(f"s_add_u32 m0, s{S_M0X}, {i*1024}"); e(f"buffer_load_dwordx4 v{DXA+i}, s[{S_X}:{S_X+3}], s{S_XO} offen lds")
    e(f"s_mul_i32 s30, s{S_WAVE}, 5")
    e(f"s_lshl_b32 s31, s{S_COL0}, 1"); e(f"s_lshl_b32 s32, s{S_COL1}, 1"); e("s_sub_u32 s32, s32, s31"); e("s_sub_u32 s32, s32, 160")
    e("s_mov_b32 s33, 0xCCCD")
    for i in range(5):
        e(f"s_add_u32 s53, s30, {i}"); e("s_lshl_b32 s53, s53, 6")
        e(f"v_add_u32 v200, s53, v{VL}")
        e("v_mul_lo_u32 v201, v200, s33"); e("v_lshrrev_b32 v201, 20, v201")
        e("v_mul_u32_u24 v202, 20, v201"); e("v_sub_u32 v202, v200, v202")
        e("v_lshrrev_b32 v203, 2, v201"); e("v_and_b32 v203, 2, v203"); e("v_xor_b32 v202, v202, v203")
        e("v_cmp_le_u32 vcc, 10, v202"); e("v_mov_b32 v204, s32"); e("v_cndmask_b32 v204, 0, v204, vcc")
        e("v_lshlrev_b32 v202, 4, v202"); e("v_add_u32 v202, v202, v204")
        e("v_mul_u32_u24 v201, 3840, v201"); e("v_add_u32 v201, v201, v202"); e(f"v_add_u32 v{DWA+i}, s31, v201")
    e(f"s_lshl_b32 s{S_LW}, s30, 10"); e(f"s_add_u32 s{S_LW}, s{S_LW}, 32768")
    srd(e, S_W, 4, 640*3840); srd(e, S_W2, 6, 32*800)
    dg = []
    for i in range(8): dg.append((f"s_add_u32 m0, s{S_M0X}, {i*1024}", f"buffer_load_dwordx4 v{DXA+i}, s[{S_X}:{S_X+3}], s{S_XO} offen lds"))
    for i in range(5): dg.append((f"s_add_u32 m0, s{S_M0W}, {i*1024}", f"buffer_load_dwordx4 v{DWA+i}, s[{S_W}:{S_W+3}], s{S_WO} offen lds"))
    dg = [dg[0],dg[8],dg[1],dg[9],dg[2],dg[3],  dg[10],dg[4],dg[5],dg[11],dg[6],dg[12],dg[7]]
    stamp(e, 4)
    e(f"s_mov_b32 s{S_M0W}, s{S_LW}")
    for (a,l) in dg:
        if f"s[{S_X}:" not in l: e(a); e(l)
    for t in adv_dma_list(3840, False): e(t)
    e(f"v_lshlrev_b32 v201, 4, v{VL}")
    e(f"s_mul_i32 s31, s{S_CG}, 3200"); e(f"s_lshl_b32 s32, s{S_WAVE}, 10"); e("s_add_u32 s31, s31, s32")
    e(f"s_add_u32 m0, s32, {WPH}")
    e(f"s_cmp_eq_u32 s{S_WAVE}, 3"); e("s_cselect_b64 s[54:55], 0xff, -1"); e("s_mov_b64 exec, s[54:55]")
    e(f"buffer_load_dwordx4 v201, s[{S_W2}:{S_W2+3}], s31 offen lds")
    e("s_mov_b64 exec, -1")
    e(f"v_mov_b32 v204, 0"); e("v_mov_b32 v205, 0"); e("v_mov_b32 v206, 0"); e("v_mov_b32 v207, 0")
    e(f"v_lshlrev_b32 v203, 4, v{VL}"); e(f"v_add_u32 v203, {WPH+3200}, v203")
    e("s_mov_b32 exec_hi, 0x00ffffff")
    e("ds_write_b128 v203, v[204:207]")
    e("s_mov_b64 exec, -1")
    e(f"s_lshl_b32 s30, s{S_WAVE}, 13")
    x_read_addr(e, XRD, 30)
    e(f"v_and_b32 v200, 15, v{VL}"); e(f"v_lshrrev_b32 v201, 4, v{VL}")
    e("v_lshrrev_b32 v202, 2, v200"); e("v_and_b32 v203, 3, v200")
    e("v_lshlrev_b32 v204, 3, v201"); e("v_add_u32 v204, v204, v202"); e("v_mul_u32_u24 v204, 320, v204")
    e("v_mul_u32_u24 v205, 5, v203")
    e("v_and_b32 v206, 1, v201"); e("v_lshlrev_b32 v206, 2, v206")
    for t in range(10):
        e(f"v_add_u32 v207, {(t%5) + 20*(t//5)}, v205"); e("v_xor_b32 v207, v207, v206"); e("v_lshlrev_b32 v207, 3, v207"); e("v_add_u32 v207, v207, v204"); e(f"v_add_u32 v{WRD+t}, 32768, v207")
    e("v_mul_u32_u24 v208, 800, v201"); e("v_mul_u32_u24 v209, 40, v202"); e("v_add_u32 v208, v208, v209"); e(f"v_add_u32 v245, {WPH}, v208")
    e(f"v_mov_b32 v209, {WPH+3200}")
    e("v_cmp_eq_u32 vcc, v203, v201"); e("v_cndmask_b32 v245, v209, v245, vcc")
    if DRY:
        e(f"s_cmp_eq_u32 s{S_ISKV}, 1"); e("s_cbranch_scc0 KVD_DONE")
        e("s_mov_b32 s53, 0")
        e("s_mov_b64 exec, 0")
        e(f"s_cmp_eq_u32 s{S_WAVE}, 0"); e("s_cbranch_scc1 KVD0")
        e(f"s_cmp_eq_u32 s{S_WAVE}, 1"); e("s_cbranch_scc1 KVD1")
        e(f"s_cmp_eq_u32 s{S_WAVE}, 2"); e("s_cbranch_scc1 KVD2x")
        e("s_branch KVD3x")
        e("KVD_RET:")
        e("s_cmp_eq_u32 s53, 0"); e("s_mov_b32 s53, 1"); e("s_cbranch_scc0 KVD_END")
        e(f"s_cmp_eq_u32 s{S_WAVE}, 0"); e("s_cbranch_scc1 KVD6")
        e(f"s_cmp_eq_u32 s{S_WAVE}, 2"); e("s_cbranch_scc1 KVD4x")
        e("KVD_END:")
        e("s_mov_b64 exec, -1")
        e("s_waitcnt lgkmcnt(0)")
        e("KVD_DONE:")
    for i in range(160): e(f"v_mov_b32 v{i}, 0")
    dma_full(e, dg, 3840, False)
    code_prefetch(e); tlb_warm(e)
    stamp(e, 5)
    e(f"s_waitcnt vmcnt({13+1}) lgkmcnt(0)")
    e("s_barrier")
    for (a,l) in dg[:len(dg)//2]: e(a); e(l)
    def reads(ks, setn):
        w = []
        for t in range(10):
            r = WF + (setn*NF + t)*4
            w.append(f"ds_read_b64_tr_b16 a[{r}:{r+1}], v{WRD+t} offset:{ks*10240}")
            w.append(f"ds_read_b64_tr_b16 a[{r+2}:{r+3}], v{WRD+t} offset:{ks*10240+1280}")
        xs = x_reads(XF, NT, XRD, ks, setn)
        return xs[:1] + w + xs[1:]
    def late_setup():
        e(f"s_lshl_b32 s30, s{S_WAVE}, 6"); e(f"s_add_u32 s30, s30, s{S_T0}")
        e(f"v_and_b32 v{VP}, 15, v{VL}"); e(f"v_add_u32 v{VP}, s30, v{VP}"); e(f"v_lshlrev_b32 v{VP}, 3, v{VP}")
        e(f"v_lshrrev_b32 v{VP+1}, 4, v{VL}"); e(f"v_mul_u32_u24 v{VP+1}, 80, v{VP+1}")
        e(f"s_lshl_b32 s60, s{S_COL0}, 2"); e(f"s_add_u32 s60, s60, {OFF_CS}"); e(f"s_lshl_b32 s61, s{S_COL1}, 2"); e(f"s_add_u32 s61, s61, {OFF_CS}")
        e(f"s_add_u32 s62, s60, {4992*4}"); e(f"s_add_u32 s63, s61, {4992*4}")
    lg = []
    for tt in range(NT):
        lg.append(([], f"buffer_load_dwordx2 v[{ST+2*tt}:{ST+2*tt+1}], v{VP}, s[{S_WS}:{S_WS+3}], 0 offen offset:{OFF_STATS + tt*128} sc1"))
    for p in range(2):
        for half in range(2):
            for j in range(5):
                d = CS + p*40 + (half*5+j)*4
                lg.append(([], f"buffer_load_dwordx4 a[{d}:{d+3}], v{VP+1}, s[{S_WS}:{S_WS+3}], s{60+2*p+half} offen offset:{j*16} sc1"))
    emit_mainloop(e, "ATT", NT, NF, XF, WF, dg, reads, [XRD, XRD+1] + [WRD+t for t in range(10)], 3840, False, late_setup, lg, False, 1, VP)
    e("s_waitcnt vmcnt(0)")
    e(f"s_cmp_eq_u32 s{S_ISKV}, 1"); e("s_cbranch_scc1 KV_EPI")
    sentinel(e)
    for i in range(40): e(f"v_accvgpr_read_b32 v{160+i}, a{CS+i}")
    for i in range(40): e(f"v_accvgpr_read_b32 v{200+i}, a{CS+40+i}")
    for i in range(0, 40, 2): e(f"v_pk_add_f32 v[{160+i}:{161+i}], v[{160+i}:{161+i}], v[{200+i}:{201+i}]")
    e(f"v_lshrrev_b32 v200, 4, v{VL}"); e(f"v_and_b32 v201, 15, v{VL}")
    e(f"v_mul_u32_u24 v202, {128*768}, v200")
    e("v_lshlrev_b32 v203, 4, v201"); e("v_add_u32 v204, v202, v203")
    e(f"s_lshl_b32 s30, s{S_RB}, 4"); e(f"s_lshl_b32 s31, s{S_WAVE}, 2"); e("s_add_u32 s30, s30, s31")
    e(f"s_lshl_b32 s31, s{S_CG}, 3")
    for tt in range(NT):
        m = ST+2*tt; r = m+1
        e(f"v_sub_f32 v208, 0, v{m}"); e(f"v_mov_b32 v210, v{r}")
        strs = []
        for half in range(2):
            s = []; a = s.append
            A = (tt*10 + half*5)*4; C = 160 + half*20
            for k in range(0, 20, 2): a(f"v_pk_fma_f32 v[{A+k}:{A+k+1}], v[{C+k}:{C+k+1}], v[208:209], v[{A+k}:{A+k+1}] op_sel_hi:[1,0,1]")
            for k in range(0, 20, 2): a(f"v_pk_mul_f32 v[{A+k}:{A+k+1}], v[{A+k}:{A+k+1}], v[210:211] op_sel_hi:[1,0]")
            for k in range(10): a(f"v_cvt_pk_bf16_f32 v{A+k}, v{A+2*k}, v{A+2*k+1}")
            a(f"v_mov_b32 v{A+10}, 0"); a(f"v_mov_b32 v{A+11}, 0")
            sx = 60+half
            a(f"s_add_u32 s{sx}, s31, {4*half}"); a(f"s_lshl_b32 s{sx}, s{sx}, 7"); a(f"s_add_u32 s{sx}, s{sx}, s30"); a(f"s_add_u32 s{sx}, s{sx}, {tt}")
            a(f"s_mul_i32 s{sx}, s{sx}, 768"); a(f"s_add_u32 s{sx}, s{sx}, {OFF_QF}")
            a(f"buffer_store_dwordx4 v[{A}:{A+3}], v204, s[{S_WS}:{S_WS+3}], s{sx} offen{OSC}")
            a(f"buffer_store_dwordx4 v[{A+4}:{A+7}], v204, s[{S_WS}:{S_WS+3}], s{sx} offen offset:256{OSC}")
            a(f"buffer_store_dwordx4 v[{A+8}:{A+11}], v204, s[{S_WS}:{S_WS+3}], s{sx} offen offset:512{OSC}")
            strs.append(s)
        zip2(e, strs[0], strs[1])
    if STAMPS: e("s_waitcnt vmcnt(0)")
    stamp(e, 3); stamp_flush(e, 1, 6, S_WS, S_WAVE)
    e("s_endpgm")
    e("KV_EPI:")
    e("s_barrier")
    e("KVD0:")
    for jp in range(5):
        for s in range(3):
            r = PHI + (jp*3+s)*4
            e(f"ds_read_b64_tr_b16 a[{r}:{r+1}], v245 offset:{s*320 + jp*8}")
            e(f"ds_read_b64_tr_b16 a[{r+2}:{r+3}], v245 offset:{s*320 + 160 + jp*8}")
    e(f"v_lshrrev_b32 v200, 4, v{VL}"); e(f"v_and_b32 v201, 15, v{VL}")
    e("v_lshlrev_b32 v202, 15, v200"); e("v_lshlrev_b32 v203, 5, v201"); e("v_add_u32 v202, v202, v203")
    e(f"s_lshl_b32 s30, s{S_WAVE}, 11"); e("v_add_u32 v244, s30, v202")
    for i in range(40): e(f"v_accvgpr_read_b32 v{160+i}, a{CS+i}")
    for i in range(40): e(f"v_accvgpr_read_b32 v{200+i}, a{CS+40+i}")
    for i in range(0, 40, 2): e(f"v_pk_add_f32 v[{160+i}:{161+i}], v[{160+i}:{161+i}], v[{200+i}:{201+i}]")
    def vtile(tt, R):
        s = []; a = s.append
        m = ST+2*tt; r = m+1; A = (tt*10+5)*4
        a(f"v_sub_f32 v{R}, 0, v{m}"); a(f"v_mov_b32 v{R+2}, v{r}")
        for k in range(0, 20, 2): a(f"v_pk_fma_f32 v[{A+k}:{A+k+1}], v[{180+k}:{181+k}], v[{R}:{R+1}], v[{A+k}:{A+k+1}] op_sel_hi:[1,0,1]")
        for k in range(0, 20, 2): a(f"v_pk_mul_f32 v[{A+k}:{A+k+1}], v[{A+k}:{A+k+1}], v[{R+2}:{R+3}] op_sel_hi:[1,0]")
        for k in range(10): a(f"v_cvt_pk_bf16_f32 v{A+k}, v{A+2*k}, v{A+2*k+1}")
        a(f"ds_write_b128 v244, v[{A}:{A+3}] offset:{3*8192 + tt*512}")
        a(f"ds_write_b128 v244, v[{A+4}:{A+7}] offset:{3*8192 + tt*512 + 16}")
        return s
    zip2(e, vtile(0, 200), vtile(1, 204)); zip2(e, vtile(2, 200), vtile(3, 204))
    ft0, ft1, ft2 = fperm()
    Pb = [200, 220]; EM = 180
    def stageA(tt):
        s = []; a = s.append
        m = ST+2*tt; A = tt*40; P = Pb[tt & 1]
        a(f"v_sub_f32 v240, 0, v{m}")
        for k in range(0, 20, 2): a(f"v_pk_fma_f32 v[{A+k}:{A+k+1}], v[{160+k}:{161+k}], v[240:241], v[{A+k}:{A+k+1}] op_sel_hi:[1,0,1]")
        for k in range(10): a(f"v_cvt_pk_bf16_f32 v{A+k}, v{A+2*k}, v{A+2*k+1}")
        a(f"v_mov_b32 v{A+10}, 0"); a(f"v_mov_b32 v{A+11}, 0")
        for sidx in range(3):
            for jp in range(5):
                c = "0" if sidx == 0 else f"v[{P+jp*4}:{P+jp*4+3}]"
                a(f"v_mfma_f32_16x16x32_bf16 v[{P+jp*4}:{P+jp*4+3}], a[{PHI+(jp*3+sidx)*4}:{PHI+(jp*3+sidx)*4+3}], v[{A+sidx*4}:{A+sidx*4+3}], {c}")
        return s
    def stageB(tt):
        s = []; a = s.append
        r = ST+2*tt+1; A = tt*40; AV = A+20; P = Pb[tt & 1]
        C, NC, MXC, MNC, MX, MN, SP, SM_ = AV, AV+2, AV+4, AV+6, AV+10, AV+11, AV+12, AV+14
        a(f"v_mul_f32 v{C}, {LOG2E!r}, v{r}"); a(f"v_sub_f32 v{NC}, 0, v{C}")
        a(f"v_max3_f32 v{MX}, v{P}, v{P+1}, v{P+2}"); a(f"v_min3_f32 v{MN}, v{P}, v{P+1}, v{P+2}")
        for k in range(3, 19, 2):
            a(f"v_max3_f32 v{MX}, v{MX}, v{P+k}, v{P+k+1}"); a(f"v_min3_f32 v{MN}, v{MN}, v{P+k}, v{P+k+1}")
        a(f"v_max_f32 v{MX}, v{MX}, v{P+19}"); a(f"v_min_f32 v{MN}, v{MN}, v{P+19}")
        a(f"v_mul_f32 v{MXC}, v{MX}, v{NC}"); a(f"v_mul_f32 v{MNC}, v{MN}, v{C}")
        for k in range(0, 20, 2): a(f"v_pk_fma_f32 v[{EM+k}:{EM+k+1}], v[{P+k}:{P+k+1}], v[{NC}:{NC+1}], v[{MNC}:{MNC+1}] op_sel_hi:[1,0,0]")
        for k in range(0, 20, 2): a(f"v_pk_fma_f32 v[{P+k}:{P+k+1}], v[{P+k}:{P+k+1}], v[{C}:{C+1}], v[{MXC}:{MXC+1}] op_sel_hi:[1,0,0]")
        for k in range(20): a(f"v_exp_f32 v{EM+k}, v{EM+k}")
        for k in range(20): a(f"v_exp_f32 v{P+k}, v{P+k}")
        a(f"v_pk_add_f32 v[{SM_}:{SM_+1}], v[{EM}:{EM+1}], v[{EM+2}:{EM+3}]"); a(f"v_pk_add_f32 v[{SP}:{SP+1}], v[{P}:{P+1}], v[{P+2}:{P+3}]")
        for k in range(4, 20, 2):
            a(f"v_pk_add_f32 v[{SM_}:{SM_+1}], v[{SM_}:{SM_+1}], v[{EM+k}:{EM+k+1}]"); a(f"v_pk_add_f32 v[{SP}:{SP+1}], v[{SP}:{SP+1}], v[{P+k}:{P+k+1}]")
        a(f"v_add_f32 v{SM_}, v{SM_}, v{SM_+1}"); a(f"v_add_f32 v{SP}, v{SP}, v{SP+1}")
        a(f"v_rcp_f32 v{SM_}, v{SM_}"); a(f"v_rcp_f32 v{SP}, v{SP}")
        for k in range(0, 20, 2):
            a(f"v_pk_mul_f32 v[{EM+k}:{EM+k+1}], v[{EM+k}:{EM+k+1}], v[{SM_}:{SM_+1}] op_sel_hi:[1,0]")
            a(f"v_pk_mul_f32 v[{P+k}:{P+k+1}], v[{P+k}:{P+k+1}], v[{SP}:{SP+1}] op_sel_hi:[1,0]")
        def reg(x): return (P if x[0] == 'p' else EM) + x[1]
        I = AV+12
        for k in range(8): a(f"v_cvt_pk_bf16_f32 v{A+k}, v{reg(ft0[2*k])}, v{reg(ft0[2*k+1])}")
        a(f"ds_write_b128 v244, v[{A}:{A+3}] offset:{tt*512}"); a(f"ds_write_b128 v244, v[{A+4}:{A+7}] offset:{tt*512+16}")
        for k in range(8): a(f"v_cvt_pk_bf16_f32 v{A+8+k}, v{reg(ft1[2*k])}, v{reg(ft1[2*k+1])}")
        a(f"ds_write_b128 v244, v[{A+8}:{A+11}] offset:{8192+tt*512}"); a(f"ds_write_b128 v244, v[{A+12}:{A+15}] offset:{8192+tt*512+16}")
        for q in range(4): a(f"v_cvt_pk_bf16_f32 v{I+2*q}, v{reg(ft2[q][0])}, v{reg(ft2[q][1])}")
        a(f"v_mov_b32 v{I+1}, v{AV+8}"); a(f"v_mov_b32 v{I+3}, v{AV+9}"); a(f"v_mov_b32 v{I+5}, 0x3f80"); a(f"v_mov_b32 v{I+7}, 0")
        a(f"ds_write_b128 v244, v[{I}:{I+3}] offset:{2*8192+tt*512}"); a(f"ds_write_b128 v244, v[{I+4}:{I+7}] offset:{2*8192+tt*512+16}")
        return s
    e("s_waitcnt lgkmcnt(0)")
    e("s_cbranch_execz KVD_RET") if DRY else None; e("KVD1:")
    KA = 0; FR = 32; VA = 64
    def kvr(ks, st_):
        out = []
        for sub in range(4):
            rr = FR + (st_*4+sub)*4
            out.append(f"ds_read_b64_tr_b16 v[{rr}:{rr+1}], v{VA} offset:{sub*8192 + ks*1024}")
            out.append(f"ds_read_b64_tr_b16 v[{rr+2}:{rr+3}], v{VA} offset:{sub*8192 + ks*1024 + 512}")
        return out
    def kvm(st_, first):
        out = []
        for ft in range(3):
            for dt in range(2):
                a_ = KA + (ft*2+dt)*4
                Af = FR + (st_*4+ft)*4
                Bf = FR + (st_*4 + (3 if dt == 0 else 2))*4
                c = "0" if first else f"v[{a_}:{a_+3}]"
                out.append(f"v_mfma_f32_16x16x32_bf16 v[{a_}:{a_+3}], v[{Af}:{Af+3}], v[{Bf}:{Bf+3}], {c}")
        return out
    def merge_spread(main, side):
        out = []; n, m = len(main), len(side); j = 0
        for i, it in enumerate(main):
            out.append(it)
            while j < m and (j+1)*n <= (i+1)*m: out.append(side[j]); j += 1
        out += side[j:]
        return out
    for it in stageA(0): e(it)
    zip_ratio(e, stageB(0), stageA(1))
    zip_ratio(e, stageB(1), stageA(2))
    if KVOV:
        e("s_waitcnt lgkmcnt(0)"); e("s_barrier")
        addr = [f"v_lshrrev_b32 v{VA}, 4, v{VL}", f"v_and_b32 v65, 15, v{VL}", "v_lshrrev_b32 v66, 2, v65", "v_and_b32 v67, 3, v65",
                f"v_lshlrev_b32 v{VA}, 2, v{VA}", f"v_add_u32 v{VA}, v{VA}, v66", f"v_lshlrev_b32 v{VA}, 5, v{VA}", "v_lshlrev_b32 v67, 3, v67", f"v_add_u32 v{VA}, v{VA}, v67",
                f"s_lshl_b32 s30, s{S_WAVE}, 15", f"v_add_u32 v{VA}, s30, v{VA}"]
        W0 = "s_waitcnt lgkmcnt(0)"
        kv1 = addr + kvr(0, 0) + kvr(2, 1) + [W0] + kvm(0, True) + kvr(4, 0) + [W0] + kvm(1, False) + kvr(6, 1) + [W0] + kvm(0, False) + [W0] + kvm(1, False)
        mainl = merge_spread(stageB(2), stageA(3)) + stageB(3)
        for it in merge_spread(mainl, kv1): e(it)
        e("s_waitcnt lgkmcnt(0)")
        stamp(e, 4)
        e("s_barrier")
        stamp(e, 5)
        for it in kvr(1, 0) + kvr(3, 1): e(it)
        e("s_waitcnt lgkmcnt(8)")
        for it in kvm(0, False) + kvr(5, 0): e(it)
        e("s_waitcnt lgkmcnt(8)")
        for it in kvm(1, False) + kvr(7, 1): e(it)
        e("s_waitcnt lgkmcnt(8)")
        for it in kvm(0, False): e(it)
        e("s_waitcnt lgkmcnt(0)")
        for it in kvm(1, False): e(it)
    else:
        zip_ratio(e, stageB(2), stageA(3))
        for it in stageB(3): e(it)
        e("s_waitcnt lgkmcnt(0)")
        stamp(e, 4)
        e("s_barrier")
        stamp(e, 5)
        e(f"v_lshrrev_b32 v{VA}, 4, v{VL}"); e(f"v_and_b32 v65, 15, v{VL}"); e("v_lshrrev_b32 v66, 2, v65"); e("v_and_b32 v67, 3, v65")
        e(f"v_lshlrev_b32 v{VA}, 2, v{VA}"); e(f"v_add_u32 v{VA}, v{VA}, v66"); e(f"v_lshlrev_b32 v{VA}, 5, v{VA}"); e("v_lshlrev_b32 v67, 3, v67"); e(f"v_add_u32 v{VA}, v{VA}, v67")
        e(f"s_lshl_b32 s30, s{S_WAVE}, 15"); e(f"v_add_u32 v{VA}, s30, v{VA}")
        for it in kvr(0, 0): e(it)
        for ks in range(8):
            if ks < 7:
                for it in kvr(ks+1, (ks+1) & 1): e(it)
                e("s_waitcnt lgkmcnt(8)")
            else:
                e("s_waitcnt lgkmcnt(0)")
            for it in kvm(ks & 1, ks == 0): e(it)
    e("s_cbranch_execz KVD_RET") if DRY else None
    e(f"s_lshl_b32 s30, s{S_RB}, 5"); e(f"s_lshl_b32 s31, s{S_CG}, 2"); e("s_add_u32 s30, s30, s31"); e(f"s_add_u32 s30, s30, s{S_WAVE}")
    e("s_mul_i32 s30, s30, 5120"); e(f"s_add_u32 s30, s30, {OFF_KVP}")
    e(f"v_lshlrev_b32 v201, 5, v{VL}"); e(f"v_lshlrev_b32 v202, 3, v{VL}")
    for dt in range(2):
        a0 = KA + (0*2+dt)*4; a1 = KA + (1*2+dt)*4; a2 = KA + (2*2+dt)*4
        if dt == 1: e("s_add_u32 s30, s30, 2560")
        e(f"buffer_store_dwordx4 v[{a0}:{a0+3}], v201, s[{S_WS}:{S_WS+3}], s30 offen{KSC}")
        e(f"buffer_store_dwordx4 v[{a1}:{a1+3}], v201, s[{S_WS}:{S_WS+3}], s30 offen offset:16{KSC}")
        e(f"buffer_store_dwordx2 v[{a2}:{a2+1}], v202, s[{S_WS}:{S_WS+3}], s30 offen offset:2048{KSC}")
    if STAMPS: e("s_waitcnt vmcnt(0)")
    stamp(e, 3); stamp_flush(e, 1, 6, S_WS, S_WAVE)
    e("s_endpgm")

def gen_k1():
    e = Em()
    STAMP_BASE[0] = 90
    e("s_cmp_ge_u32 s2, 256"); e("s_cbranch_scc1 K1_end")
    e(f"s_load_dwordx16 s[64:79], s[0:1], 0"); e(f"s_load_dwordx4 s[92:95], s[0:1], {KA_DBG}")
    e("v_lshrrev_b32 v1, 6, v0"); e(f"v_and_b32 v{VL}, 63, v0"); e(f"v_readfirstlane_b32 s{S_WAVE}, v1")
    if EARLYPF:
        e("s_getpc_b64 s[54:55]")
        e("EPF_pc:")
        e("s_mov_b32 s53, ATT-EPF_pc"); e("s_mov_b32 s60, FFN-EPF_pc"); e(f"s_cmp_ge_u32 s{S_WAVE}, 2"); e("s_cselect_b32 s53, s60, s53")
        e(f"s_and_b32 s60, s{S_WAVE}, 1"); e("s_lshl_b32 s60, s60, 10"); e("s_add_u32 s53, s53, s60")
        e(f"v_lshlrev_b32 v2, 4, v{VL}"); e("v_add_u32 v2, s53, v2")
        e("global_load_dwordx4 a[252:255], v2, s[54:55]")
    stamp(e, 0)
    e("s_and_b32 s30, s2, 7"); e("s_lshr_b32 s31, s2, 3")
    e("s_lshr_b32 s32, s30, 2"); e("s_and_b32 s33, s30, 3")
    e("s_waitcnt lgkmcnt(0)")
    srd(e, S_X, 64, 2048*1280); srd(e, S_WS, 94, WS_BYTES); srd(e, S_DBG, 92, 256)
    e("s_cmp_ge_u32 s31, 28"); e("s_cbranch_scc1 K1_q")
    e("s_cmp_ge_u32 s31, 20"); e("s_cbranch_scc1 K1_kv")
    e("s_mul_i32 s35, s32, 20"); e("s_add_u32 s34, s31, s35")
    e("s_cmp_ge_u32 s34, 39"); e("s_cbranch_scc1 K1_idle")
    udiv_const(e, S_RB, 34, 3)
    e(f"s_mul_i32 s35, s{S_RB}, 3"); e("s_sub_u32 s35, s34, s35"); e("s_mul_i32 s36, s33, 3"); e(f"s_add_u32 s{S_CG}, s35, s36")
    e(f"s_mul_i32 s{S_N}, s33, 39"); e(f"s_add_u32 s{S_N}, s{S_N}, s34")
    e("s_mov_b32 s78, s34"); e("s_mov_b32 s79, s33")
    e("s_branch FFN")
    e("K1_kv:")
    e("s_sub_u32 s31, s31, 20")
    e("s_lshl_b32 s34, s33, 1"); e("s_and_b32 s35, s31, 1"); e(f"s_add_u32 s{S_CG}, s34, s35")
    e("s_lshl_b32 s34, s32, 2"); e("s_lshr_b32 s35, s31, 1"); e(f"s_add_u32 s{S_RB}, s34, s35")
    e(f"s_mul_i32 s34, s{S_CG}, 80"); e(f"s_add_u32 s{S_COL0}, s34, 640"); e(f"s_add_u32 s{S_COL1}, s34, 1280"); e(f"s_mov_b32 s{S_ISKV}, 1")
    e("s_branch ATT")
    e("K1_q:")
    e(f"s_mov_b32 s{S_CG}, s33"); e("s_lshl_b32 s34, s32, 2"); e("s_sub_u32 s35, s31, 28"); e(f"s_add_u32 s{S_RB}, s34, s35")
    e(f"s_mul_i32 s{S_COL0}, s33, 160"); e(f"s_add_u32 s{S_COL1}, s{S_COL0}, 80"); e(f"s_mov_b32 s{S_ISKV}, 0")
    e("s_branch ATT")
    e("K1_idle:")
    wf_idle(e)
    e("s_endpgm")
    gen_ffn(e)
    gen_att(e)
    e("K1_end:")
    return kernel("k1_kernel", e.text(), vgpr=256, accum=256, agpr=256, sgpr=102)
```
